```python
import torch

def _softmax(x, axis=-1):
    return torch.softmax(x, dim=axis)
def _gelu(x):
    return torch.nn.functional.gelu(x, approximate="tanh")
def _silu(x):
    return torch.nn.functional.silu(x)
def _sigmoid(x):
    return torch.sigmoid(x)
def _layernorm(x, axis=-1, eps=1e-5):
    m = x.mean(dim=axis, keepdim=True)
    v = x.var(dim=axis, keepdim=True, unbiased=False)
    return (x - m) / torch.sqrt(v + eps)
def _scatter_add(tgt, idx, src, axis=0):
    return tgt.clone().index_add_(axis, idx, src)
def _segment_sum(src, seg, n):
    out = torch.zeros((n,) + src.shape[1:], dtype=src.dtype)
    return out.index_add_(0, seg, src)
def _pad(x, pw):
    flat = tuple(v for pair in reversed(pw) for v in pair)
    return torch.nn.functional.pad(x, flat)

kernel_name = 'parallel_sum__spectral_fnet__dense_activation_relu__prompt'

def setup_inputs():

    _w = (lambda a: (lambda t: t.to(torch.bfloat16) if t.is_floating_point() else t)(torch.as_tensor(a)))
    def _A_setup():
        B, S, D = 1, 2048, 576
        ns = torch.arange(S)[:, None] * torch.arange(S)[None, :]
        nd = torch.arange(D)[:, None] * torch.arange(D)[None, :]
        Ws_re = torch.cos(-2.0 * torch.pi * ns / S).to(float)
        Ws_im = torch.sin(-2.0 * torch.pi * ns / S).to(float)
        Wd_re = torch.cos(-2.0 * torch.pi * nd / D).to(float)
        Wd_im = torch.sin(-2.0 * torch.pi * nd / D).to(float)
        return {
            "x": _w((lambda *s: torch.randn(*s, dtype=torch.bfloat16) * 0.05)(B, S, D)),
            "dft_seq_re": _w(Ws_re),
            "dft_seq_im": _w(Ws_im),
            "dft_hid_re": _w(Wd_re),
            "dft_hid_im": _w(Wd_im),
        }
    _A_in = _A_setup()

    def _B_setup():
        B, S, D, Dff = 1, 2048, 576, 4608
        return {
            "x": _w((lambda *s: torch.randn(*s, dtype=torch.bfloat16) * 0.05)(B, S, D)),
            "w1": _w((lambda *s: torch.randn(*s, dtype=torch.bfloat16) * 0.4)(D, Dff)),
            "w2": _w((lambda *s: torch.randn(*s, dtype=torch.bfloat16) * 0.4)(Dff, D)),
        }
    _B_in = _B_setup()

    return {
        "A_x": _A_in["x"],
        "A_dft_seq_re": _A_in["dft_seq_re"],
        "A_dft_seq_im": _A_in["dft_seq_im"],
        "A_dft_hid_re": _A_in["dft_hid_re"],
        "A_dft_hid_im": _A_in["dft_hid_im"],
        "B_x": _B_in["x"],
        "B_w1": _B_in["w1"],
        "B_w2": _B_in["w2"],
    }

def reference(A_x, A_dft_seq_re, A_dft_seq_im, A_dft_hid_re, A_dft_hid_im, B_x, B_w1, B_w2):
    def _A_ref(x, dft_seq_re, dft_seq_im, dft_hid_re, dft_hid_im):
        a = torch.einsum("bsd,ed->bse", x, dft_hid_re)
        b = torch.einsum("bsd,ed->bse", x, dft_hid_im)
        y = torch.einsum("ts,bse->bte", dft_seq_re, a) - torch.einsum("ts,bse->bte", dft_seq_im, b)
        return y

    def _B_ref(x, w1, w2):
        h = torch.einsum("bsd,df->bsf", x, w1)
        zero = torch.zeros_like(h)
        h = torch.maximum(h, zero)
        return torch.einsum("bsf,fd->bsd", h, w2)

    x = A_x
    xn = _layernorm(x, axis=-1)
    return x + _A_ref(xn, A_dft_seq_re, A_dft_seq_im, A_dft_hid_re, A_dft_hid_im) + _B_ref(xn, B_w1, B_w2)
```

```python
import sys

NAME = "parallel_sum__spectral_fnet__dense_activation_relu__prompt"
OUT = "cdna_kernels/%s.s" % NAME

WS_XN = 0x0
WS_AB = 0x400000
WS_H = 0x1000000
WS_P = 0x4000000
XN_BYTES = 2048 * 576 * 2
AB_BYTES = 4096 * 576 * 2
PANEL = 2048 * 2048 * 2
W1_BYTES = 576 * 4608 * 2
W2_BYTES = 4608 * 576 * 2
WD_BYTES = 576 * 576 * 2

NSPLIT = 5
G2_TILES = 48
G2_WGS = NSPLIT * G2_TILES
P_TILE = 128 * 192 * 4
P_BYTES = G2_WGS * P_TILE


class Asm:
    def __init__(self):
        self.lines = []

    def __call__(self, s=""):
        for l in s.split("\n"):
            l = l.strip()
            if l:
                self.lines.append("    " + l if not l.endswith(":") else l)

    def label(self, s):
        self.lines.append(s + ":")

    def text(self):
        return "\n".join(self.lines) + "\n"


def srd(a, d, lo, hi, size):
    a(f"s_mov_b32 s{d}, s{lo}")
    a(f"s_and_b32 s{d+1}, s{hi}, 0xffff")
    a(f"s_mov_b32 s{d+2}, {size}")
    a(f"s_mov_b32 s{d+3}, 0x00020000")


def srd_off(a, d, lo, hi, off, size):
    a(f"s_add_u32 s{d}, s{lo}, {off}")
    a(f"s_addc_u32 s{d+1}, s{hi}, 0")
    a(f"s_and_b32 s{d+1}, s{d+1}, 0xffff")
    a(f"s_mov_b32 s{d+2}, {size}")
    a(f"s_mov_b32 s{d+3}, 0x00020000")


def kernel_head(a, name):
    a.lines.append(f".globl {name}")
    a.lines.append(".p2align 8")
    a.lines.append(f".type {name},@function")
    a.label(name)


def kd(name, vgpr, sgpr=102):
    acc = (vgpr + 3) // 4 * 4
    return f""".p2align 6
.amdhsa_kernel {name}
  .amdhsa_next_free_vgpr {vgpr}
  .amdhsa_next_free_sgpr {sgpr}
  .amdhsa_accum_offset {acc}
  .amdhsa_group_segment_fixed_size 0
  .amdhsa_kernarg_size 88
  .amdhsa_user_sgpr_count 2
  .amdhsa_user_sgpr_kernarg_segment_ptr 1
  .amdhsa_system_sgpr_workgroup_id_x 1
  .amdhsa_float_denorm_mode_32 3
  .amdhsa_float_denorm_mode_16_64 3
.end_amdhsa_kernel
"""


def gen_ln(a):
    name = "ln_kernel"
    kernel_head(a, name)
    a(f"""
    s_cmp_ge_u32 s2, 256
    s_cbranch_scc1 LN_done
    s_load_dwordx2 s[4:5], s[0:1], 0
    s_load_dwordx2 s[6:7], s[0:1], 80
    v_lshrrev_b32 v1, 4, v0
    s_lshl_b32 s3, s2, 3
    v_add_u32 v1, s3, v1
    v_mul_u32_u24 v1, 1152, v1
    v_and_b32 v2, 15, v0
    v_lshlrev_b32 v2, 3, v2
    v_add_u32 v1, v1, v2
    s_waitcnt lgkmcnt(0)
    """)
    srd(a, 8, 4, 5, XN_BYTES)
    srd_off(a, 12, 6, 7, WS_XN, XN_BYTES)
    for p in range(9):
        a(f"buffer_load_dwordx2 v[{4+2*p}:{5+2*p}], v1, s[8:11], 0 offen offset:{p*128}")
    X = 24
    for p in range(9):
        a(f"s_waitcnt vmcnt({8-p})")
        for j in range(2):
            src = 4 + 2 * p + j
            a(f"v_lshlrev_b32 v{X+4*p+2*j}, 16, v{src}")
            a(f"v_and_b32 v{X+4*p+2*j+1}, 0xffff0000, v{src}")
    a(f"v_add_f32 v60, v{X}, v{X+1}")
    a(f"v_add_f32 v61, v{X+2}, v{X+3}")
    for i in range(4, 36, 2):
        a(f"v_add_f32 v60, v60, v{X+i}")
        a(f"v_add_f32 v61, v61, v{X+i+1}")
    a("v_add_f32 v60, v60, v61")

    def allreduce(r, t):
        for sh in (8, 4, 2, 1):
            a("s_nop 1")
            a(f"v_add_f32_dpp v{t}, v{r}, v{r} row_ror:{sh} row_mask:0xf bank_mask:0xf")
            a(f"v_mov_b32 v{r}, v{t}")
    allreduce(60, 61)
    a("v_mul_f32 v60, 0x3ae38e39, v60")
    a(f"v_sub_f32 v62, v{X}, v60")
    a("v_mul_f32 v63, v62, v62")
    a(f"v_sub_f32 v62, v{X+1}, v60")
    a("v_mul_f32 v64, v62, v62")
    for i in range(2, 36, 2):
        a(f"v_sub_f32 v62, v{X+i}, v60")
        a(f"v_sub_f32 v65, v{X+i+1}, v60")
        a("v_fmac_f32 v63, v62, v62")
        a("v_fmac_f32 v64, v65, v65")
    a("v_add_f32 v63, v63, v64")
    allreduce(63, 61)
    a("v_mul_f32 v63, 0x3ae38e39, v63")
    a("v_cvt_pk_bf16_f32 v61, v60, v63")
    a("v_lshlrev_b32 v60, 16, v61")
    a("v_and_b32 v63, 0xffff0000, v61")
    a("v_add_f32 v63, 0x3727c5ac, v63")
    a("v_cvt_pk_bf16_f32 v63, v63, v63")
    a("v_and_b32 v63, 0xffff0000, v63")
    a("v_sqrt_f32 v63, v63")
    a("s_nop 0")
    a("v_cvt_pk_bf16_f32 v63, v63, v63")
    a("v_and_b32 v63, 0xffff0000, v63")
    a("v_rcp_f32 v64, v63")
    a("s_nop 0")
    for p in range(9):
        for j in range(2):
            e0 = X + 4 * p + 2 * j
            e1 = e0 + 1
            a(f"v_sub_f32 v{e0}, v{e0}, v60")
            a(f"v_sub_f32 v{e1}, v{e1}, v60")
            a(f"v_cvt_pk_bf16_f32 v66, v{e0}, v{e1}")
            a(f"v_lshlrev_b32 v{e0}, 16, v66")
            a(f"v_and_b32 v{e1}, 0xffff0000, v66")
            a(f"v_mul_f32 v66, v{e0}, v64")
            a(f"v_mul_f32 v67, v{e1}, v64")
            a(f"v_fma_f32 v68, -v66, v63, v{e0}")
            a(f"v_fma_f32 v69, -v67, v63, v{e1}")
            a("v_fmac_f32 v66, v68, v64")
            a("v_fmac_f32 v67, v69, v64")
            a(f"v_cvt_pk_bf16_f32 v{4+2*p+j}, v66, v67")
        a(f"buffer_store_dwordx2 v[{4+2*p}:{5+2*p}], v1, s[12:15], 0 offen offset:{p*128}")
    a.label("LN_done")
    a("s_endpgm")
    return name, 72


V_AB = 1
V_AA = 5
V_BB = 9
V_BA = 13
FR0 = 20
FR1 = 40
ACC = 64
LDS_B = 65536


def frag(setb, which):
    return setb + {"A0": 0, "A1": 4, "B0": 8, "B1": 12, "B2": 16}[which]


def reads_for(btype, setb, j):
    r = []

    def aread(mi):
        d = frag(setb, f"A{mi}")
        return (f"A{mi}", f"ds_read_b128 v[{d}:{d+3}], v{V_AA+j} offset:{4096*mi}")

    def bread(ni):
        d = frag(setb, f"B{ni}")
        if btype == "NK":
            return [(f"B{ni}", f"ds_read_b128 v[{d}:{d+3}], v{V_BA+j} offset:{4096*ni}")]
        return [(f"B{ni}", f"ds_read_b64_tr_b16 v[{d}:{d+1}], v{V_BA+ni} offset:{(16*j)*384}"),
                (f"B{ni}", f"ds_read_b64_tr_b16 v[{d+2}:{d+3}], v{V_BA+ni} offset:{(16*j+4)*384}")]
    r.append(aread(0))
    r += bread(0)
    r += bread(1)
    r += bread(2)
    r.append(aread(1))
    return r


class LgkmTracker:
    def __init__(self, a):
        self.a = a
        self.out = []

    def issue(self, tag, instr):
        self.a(instr)
        self.out.append(tag)

    def need(self, tags):
        last = -1
        for i, t in enumerate(self.out):
            if t in tags:
                last = i
        if last < 0:
            return
        n = len(self.out) - 1 - last
        assert n <= 15
        self.a(f"s_waitcnt lgkmcnt({n})")
        self.out = self.out[last + 1:]

    def drain(self):
        self.a("s_waitcnt lgkmcnt(0)")
        self.out = []


def substep(a, trk, cur, nxt_reads, curtag, nxttag):
    order = [(0, 0), (0, 1), (0, 2), (1, 0), (1, 1), (1, 2)]
    nr = len(nxt_reads)
    if nr == 8:
        per = [2, 2, 2, 2, 0, 0]
    elif nr == 5:
        per = [2, 1, 1, 1, 0, 0]
    else:
        per = [0] * 6
    ri = 0
    for idx, (mi, ni) in enumerate(order):
        trk.need([curtag + f"A{mi}", curtag + f"B{ni}"])
        A = frag(cur, f"A{mi}")
        B = frag(cur, f"B{ni}")
        c = ACC + 16 * (3 * mi + ni)
        a(f"v_mfma_f32_32x32x16_bf16 v[{c}:{c+15}], v[{B}:{B+3}], v[{A}:{A+3}], v[{c}:{c+15}]")
        for _ in range(per[idx]):
            t, ins = nxt_reads[ri]
            trk.issue(nxttag + t, ins)
            ri += 1
    assert ri == nr


def consumer_addr_setup(a, btype, s_wm, s_wn):
    a(f"""
    v_and_b32 v60, 63, v0
    v_and_b32 v61, 31, v60
    v_lshrrev_b32 v62, 5, v60
    v_lshrrev_b32 v63, 1, v60
    v_and_b32 v63, 7, v63
    s_lshl_b32 s40, s{s_wm}, 6
    v_add_u32 v17, s40, v61
    v_lshlrev_b32 v17, 7, v17
    """)
    for j in range(4):
        a(f"v_add_u32 v18, {2*j}, v62")
        a("v_xor_b32 v18, v18, v63")
        a(f"v_lshl_add_u32 v{V_AB+j}, v18, 4, v17")
    if btype == "NK":
        a(f"""
        s_mul_i32 s40, s{s_wn}, 96
        v_add_u32 v17, s40, v61
        v_lshlrev_b32 v17, 7, v17
        v_add_u32 v17, {LDS_B}, v17
        """)
        for j in range(4):
            a(f"v_add_u32 v18, {2*j}, v62")
            a("v_xor_b32 v18, v18, v63")
            a(f"v_lshl_add_u32 v{V_BB+j}, v18, 4, v17")
    else:
        a(f"""
        v_and_b32 v17, 15, v60
        v_lshrrev_b32 v18, 2, v17
        v_lshl_add_u32 v18, v62, 3, v18
        v_mul_u32_u24 v18, 384, v18
        v_add_u32 v18, {LDS_B}, v18
        v_bfe_u32 v19, v60, 4, 1
        v_lshlrev_b32 v19, 5, v19
        v_add_u32 v18, v18, v19
        v_and_b32 v19, 3, v17
        v_lshlrev_b32 v19, 3, v19
        v_add_u32 v18, v18, v19
        v_lshrrev_b32 v19, 3, v17
        s_mul_i32 s40, s{s_wn}, 3
        """)
        for ni in range(3):
            a(f"s_add_u32 s41, s40, {ni}")
            a("v_xor_b32 v17, s41, v19")
            a(f"v_lshl_add_u32 v{V_BB+ni}, v17, 6, v18")


def consumer_loop(a, pfx, btype, SA, NSA, SB, NSB, s_nsteps):
    nb = 4 if btype == "NK" else 3
    for i in range(96):
        a(f"v_mov_b32 v{ACC+i}, 0")
    a("s_mov_b32 s44, 0")
    a("s_mov_b32 s45, 0")
    a("s_mov_b32 s46, 0")
    for j in range(4):
        a(f"v_mov_b32 v{V_AA+j}, v{V_AB+j}")
    for j in range(nb):
        a(f"v_mov_b32 v{V_BA+j}, v{V_BB+j}")
    a("s_barrier")
    trk = LgkmTracker(a)
    for t, ins in reads_for(btype, FR0, 0):
        trk.issue("s0" + t, ins)
    a.label(f"{pfx}_loop")
    entry_state = list(trk.out)
    substep(a, trk, FR0, reads_for(btype, FR1, 1), "s0", "s1")
    substep(a, trk, FR1, reads_for(btype, FR0, 2), "s1", "s2")
    substep(a, trk, FR0, reads_for(btype, FR1, 3), "s2", "s3")
    a(f"""
    s_add_u32 s44, s44, {SA}
    s_cmp_ge_u32 s44, {SA*NSA}
    s_cselect_b32 s44, 0, s44
    s_add_u32 s45, s45, {SB}
    s_cmp_ge_u32 s45, {SB*NSB}
    s_cselect_b32 s45, 0, s45
    """)
    trk.drain()
    for j in range(4):
        a(f"v_add_u32 v{V_AA+j}, s44, v{V_AB+j}")
    for j in range(nb):
        a(f"v_add_u32 v{V_BA+j}, s45, v{V_BB+j}")
    a("s_barrier")
    substep(a, trk, FR1, reads_for(btype, FR0, 0), "s3", "s0")
    assert trk.out == entry_state, (trk.out, entry_state)
    a(f"""
    s_add_u32 s46, s46, 1
    s_cmp_lt_u32 s46, s{s_nsteps}
    s_cbranch_scc1 {pfx}_loop
    s_waitcnt lgkmcnt(0)
    s_nop 15
    s_nop 3
    """)


def loader_loop(a, pfx, NS, L, slot_bytes, ring_base, issue_fn, s_nsteps):
    a(f"s_mov_b32 s50, 0")
    a(f"s_mov_b32 s51, {ring_base}")
    for j in range(NS):
        issue_fn()
        a("s_add_u32 s50, s50, 1")
        a(f"s_add_u32 s51, s51, {slot_bytes}")
    a(f"s_mov_b32 s51, {ring_base}")
    a(f"s_waitcnt vmcnt({(NS-1)*L})")
    a("s_barrier")
    a("s_mov_b32 s52, 0")
    a.label(f"{pfx}_loop")
    a(f"s_sub_i32 s53, s{s_nsteps}, s52")
    a("s_sub_i32 s53, s53, 2")
    for c in range(NS - 2, 0, -1):
        a(f"s_cmp_ge_i32 s53, {c}")
        a(f"s_cbranch_scc1 {pfx}_w{c}")
    a("s_waitcnt vmcnt(0)")
    a(f"s_branch {pfx}_bar")
    for c in range(1, NS - 1):
        a.label(f"{pfx}_w{c}")
        a(f"s_waitcnt vmcnt({c*L})")
        if c != NS - 2:
            a(f"s_branch {pfx}_bar")
    a.label(f"{pfx}_bar")
    a("s_barrier")
    a(f"s_cmp_ge_u32 s50, s{s_nsteps}")
    a(f"s_cbranch_scc1 {pfx}_skip")
    issue_fn()
    a("s_add_u32 s50, s50, 1")
    a(f"s_add_u32 s51, s51, {slot_bytes}")
    a(f"s_cmp_ge_u32 s51, {ring_base + NS*slot_bytes}")
    a(f"s_cselect_b32 s51, {ring_base}, s51")
    a.label(f"{pfx}_skip")
    a(f"""
    s_add_u32 s52, s52, 1
    s_cmp_lt_u32 s52, s{s_nsteps}
    s_cbranch_scc1 {pfx}_loop
    s_endpgm
    """)


def voff_ktype(a, stride, ve, vo):
    a(f"""
    v_and_b32 v60, 63, v0
    v_lshrrev_b32 v61, 3, v60
    v_mul_u32_u24 v61, {stride}, v61
    v_and_b32 v62, 7, v60
    v_lshrrev_b32 v63, 4, v60
    v_xor_b32 v62, v62, v63
    v_lshl_add_u32 v{ve}, v62, 4, v61
    v_xor_b32 v62, 4, v62
    v_lshl_add_u32 v{vo}, v62, 4, v61
    """)


def voff_ntype(a, stride, vb):
    for p in range(192):
        assert (p * 2731) >> 16 == p // 24
    a("v_and_b32 v60, 63, v0")
    for b in range(3):
        a(f"""
        v_add_u32 v61, {64*b}, v60
        v_mul_u32_u24 v62, 2731, v61
        v_lshrrev_b32 v62, 16, v62
        v_mul_u32_u24 v63, 24, v62
        v_sub_u32 v61, v61, v63
        v_and_b32 v63, 2, v62
        v_lshlrev_b32 v63, 1, v63
        v_xor_b32 v61, v61, v63
        v_mul_u32_u24 v62, {stride}, v62
        v_lshl_add_u32 v{vb+b}, v61, 4, v62
        """)


def issue_ktype(a, srd_r, s_base, stride, q0, nq, ve, vo):
    for q in range(q0, q0 + nq):
        a(f"s_add_u32 m0, s51, {q*1024}")
        a(f"s_add_u32 s54, s{s_base}, {q*8*stride}")
        a(f"buffer_load_dwordx4 v{vo if q & 1 else ve}, s[{srd_r}:{srd_r+3}], s54 offen lds")


def issue_ntype(a, srd_r, s_base, stride, a0, na, vb):
    for aa in range(a0, a0 + na):
        for b in range(3):
            a(f"s_add_u32 m0, s51, {(3*aa+b)*1024}")
            if b == 0:
                a(f"s_add_u32 s54, s{s_base}, {aa*8*stride}")
            else:
                a("s_nop 0")
            a(f"buffer_load_dwordx4 v{vb+b}, s[{srd_r}:{srd_r+3}], s54 offen lds")


def gen_gemm1(a):
    name = "gemm1_kernel"
    SA, NSA, SB, NSB = 32768, 2, 24576, 4
    RS = 400
    kernel_head(a, name)
    a(f"""
    s_cmp_ge_u32 s2, 240
    s_cbranch_scc1 G1_done
    s_load_dwordx4 s[4:7], s[0:1], 24
    s_load_dwordx2 s[8:9], s[0:1], 48
    s_load_dwordx2 s[10:11], s[0:1], 80
    v_lshrrev_b32 v1, 6, v0
    s_and_b32 s33, s2, 7
    s_mul_i32 s33, s33, 30
    s_lshr_b32 s34, s2, 3
    v_readfirstlane_b32 s3, v1
    s_add_u32 s33, s33, s34
    s_lshr_b32 s34, s33, 3
    s_and_b32 s35, s33, 7
    s_mov_b32 s36, 9
    s_waitcnt lgkmcnt(0)
    """)
    a("s_cmp_ge_u32 s3, 8")
    a("s_cbranch_scc1 G1_loader")
    a("s_lshr_b32 s37, s3, 1")
    a("s_and_b32 s38, s3, 1")
    a("s_cmp_ge_u32 s34, 6")
    a("s_cbranch_scc1 G1_consKN")
    consumer_addr_setup(a, "NK", 37, 38)
    consumer_loop(a, "G1cNK", "NK", SA, NSA, SB, NSB, 36)
    a("s_branch G1_epi")
    a.label("G1_consKN")
    consumer_addr_setup(a, "KN", 37, 38)
    consumer_loop(a, "G1cKN", "KN", SA, NSA, SB, NSB, 36)
    a.label("G1_epi")
    a(f"""
    s_mov_b32 s42, 0
    s_cmp_ge_u32 s34, 3
    s_cselect_b32 s42, 0x80008000, s42
    s_cmp_ge_u32 s34, 6
    s_cselect_b32 s42, 0, s42
    s_mov_b32 s43, 0xff800000
    s_cselect_b32 s43, 0, s43
    v_and_b32 v60, 63, v0
    v_and_b32 v61, 31, v60
    v_lshrrev_b32 v62, 5, v60
    s_lshl_b32 s40, s37, 6
    v_add_u32 v61, s40, v61
    v_mul_u32_u24 v61, {RS}, v61
    s_mul_i32 s40, s38, 192
    v_lshl_add_u32 v61, v62, 3, v61
    v_add_u32 v61, s40, v61
    """)
    for mi in range(2):
        for ni in range(3):
            for g in range(4):
                c = ACC + 16 * (3 * mi + ni) + 4 * g
                t = 20 + 2 * ((ni * 4 + g) & 7)
                for r in range(4):
                    a(f"v_max_f32 v{c+r}, s43, v{c+r}")
                a(f"v_cvt_pk_bf16_f32 v{t}, v{c}, v{c+1}")
                a(f"v_cvt_pk_bf16_f32 v{t+1}, v{c+2}, v{c+3}")
                a(f"v_xor_b32 v{t}, s42, v{t}")
                a(f"v_xor_b32 v{t+1}, s42, v{t+1}")
                a(f"ds_write_b64 v61, v[{t}:{t+1}] offset:{mi*32*RS + ni*64 + g*16}")
    a("s_waitcnt lgkmcnt(0)")
    a("s_barrier")
    srd_off(a, 12, 10, 11, WS_AB, AB_BYTES)
    srd_off(a, 16, 10, 11, WS_H, 3 * PANEL)
    a(f"""
    s_lshl_b32 s49, s35, 8
    s_cmp_ge_u32 s34, 6
    s_cbranch_scc1 G1_epiH
    s_cmp_ge_u32 s34, 3
    s_cselect_b32 s41, 2048, 0
    s_cselect_b32 s40, 3, 0
    s_add_u32 s49, s49, s41
    s_sub_u32 s40, s34, s40
    s_mul_i32 s48, s40, 192
    s_mov_b32 s47, 1152
    s_branch G1_epiS
    """)
    a.label("G1_epiH")
    a(f"""
    s_mov_b32 s12, s16
    s_mov_b32 s13, s17
    s_mov_b32 s14, s18
    s_sub_u32 s40, s34, 6
    s_mul_i32 s48, s40, 192
    s_mov_b32 s47, 4096
    """)
    a.label("G1_epiS")
    for q in range(6144):
        assert (q * 2731) >> 16 == q // 24
    for it in range(12):
        t = 20 + 4 * (it % 8)
        a(f"""
        v_add_u32 v60, {512*it}, v0
        v_mul_u32_u24 v61, 2731, v60
        v_lshrrev_b32 v61, 16, v61
        v_mul_u32_u24 v62, 24, v61
        v_sub_u32 v62, v60, v62
        v_mul_u32_u24 v63, {RS}, v61
        v_lshl_add_u32 v63, v62, 4, v63
        ds_read_b128 v[{t}:{t+3}], v63
        v_lshl_add_u32 v62, v62, 3, s48
        v_add_u32 v61, s49, v61
        v_mul_lo_u32 v61, v61, s47
        v_lshrrev_b32 v63, 11, v62
        v_lshlrev_b32 v63, 23, v63
        v_and_b32 v62, 2047, v62
        v_add_u32 v61, v61, v63
        v_lshl_add_u32 v{52+(it%8)}, v62, 1, v61
        """)
        if it % 4 == 3:
            for jt in range(it - 3, it + 1):
                t = 20 + 4 * (jt % 8)
                a(f"s_waitcnt lgkmcnt({it-jt})")
                a(f"buffer_store_dwordx4 v[{t}:{t+3}], v{52+(jt%8)}, s[12:15], 0 offen")
    a("s_endpgm")
    a.label("G1_loader")
    a("s_cmp_ge_u32 s3, 10")
    a("s_cbranch_scc1 G1_loadB")
    srd_off(a, 12, 10, 11, WS_XN, XN_BYTES)
    voff_ktype(a, 1152, 1, 2)
    a(f"""
    s_sub_u32 s40, s3, 8
    s_lshl_b32 s41, s35, 8
    s_lshl_b32 s56, s40, 7
    s_add_u32 s41, s41, s56
    s_mul_i32 s55, s41, 1152
    s_lshl_b32 s56, s40, 14
    """)

    def issueA():
        a("s_lshl_b32 s57, s50, 7")
        a("s_add_u32 s57, s57, s55")
        a("s_add_u32 s58, s51, s56")
        for q in range(16):
            a(f"s_add_u32 m0, s58, {q*1024}")
            a(f"s_add_u32 s54, s57, {q*8*1152}")
            a(f"buffer_load_dwordx4 v{2 if q & 1 else 1}, s[12:15], s54 offen lds")
    loader_loop(a, "G1lA", NSA, 16, SA, 0, issueA, 36)
    a.label("G1_loadB")
    a("s_sub_u32 s40, s3, 10")
    a("s_cmp_ge_u32 s34, 6")
    a("s_cbranch_scc1 G1_loadBKN")
    a(f"""
    s_cmp_ge_u32 s34, 3
    s_cselect_b32 s20, s6, s4
    s_cselect_b32 s21, s7, s5
    s_cselect_b32 s41, 3, 0
    s_sub_u32 s41, s34, s41
    s_mul_i32 s41, s41, 192
    s_mul_i32 s56, s40, 96
    s_add_u32 s41, s41, s56
    s_mul_i32 s55, s41, 1152
    s_mul_i32 s56, s40, 12288
    """)
    srd(a, 12, 20, 21, WD_BYTES)
    voff_ktype(a, 1152, 1, 2)

    def issueBNK():
        a("s_lshl_b32 s57, s50, 7")
        a("s_add_u32 s57, s57, s55")
        a("s_add_u32 s58, s51, s56")
        for q in range(12):
            a(f"s_add_u32 m0, s58, {q*1024}")
            a(f"s_add_u32 s54, s57, {q*8*1152}")
            a(f"buffer_load_dwordx4 v{2 if q & 1 else 1}, s[12:15], s54 offen lds")
    loader_loop(a, "G1lBNK", NSB, 12, SB, LDS_B, issueBNK, 36)
    a.label("G1_loadBKN")
    srd(a, 12, 8, 9, W1_BYTES)
    voff_ntype(a, 9216, 1)
    a(f"""
    s_sub_u32 s41, s34, 6
    s_mul_i32 s55, s41, 384
    s_mul_i32 s56, s40, {32*9216}
    s_add_u32 s55, s55, s56
    s_mul_i32 s56, s40, 12288
    """)

    def issueBKN():
        a(f"s_mul_i32 s57, s50, {64*9216}")
        a("s_add_u32 s57, s57, s55")
        a("s_add_u32 s58, s51, s56")
        for aa in range(4):
            for b in range(3):
                a(f"s_add_u32 m0, s58, {(3*aa+b)*1024}")
                a(f"s_add_u32 s54, s57, {aa*8*9216}")
                a(f"buffer_load_dwordx4 v{1+b}, s[12:15], s54 offen lds")
    loader_loop(a, "G1lBKN", NSB, 12, SB, LDS_B, issueBKN, 36)
    a.label("G1_done")
    a("s_endpgm")
    return name, 160


def gen_gemm2(a):
    name = "gemm2_kernel"
    SA, NSA, SB, NSB = 16384, 4, 24576, 4
    kernel_head(a, name)
    a(f"""
    s_cmp_ge_u32 s2, {G2_WGS}
    s_cbranch_scc1 G2_done
    s_load_dwordx4 s[4:7], s[0:1], 8
    s_load_dwordx2 s[8:9], s[0:1], 56
    s_load_dwordx2 s[10:11], s[0:1], 80
    v_lshrrev_b32 v1, 6, v0
    s_and_b32 s33, s2, 7
    s_mul_i32 s33, s33, 30
    s_lshr_b32 s34, s2, 3
    v_readfirstlane_b32 s3, v1
    s_add_u32 s33, s33, s34
    s_mul_i32 s30, s33, 1366
    s_lshr_b32 s30, s30, 16
    s_mul_i32 s31, s30, 48
    s_sub_u32 s31, s33, s31
    s_mul_i32 s35, s31, 21846
    s_lshr_b32 s35, s35, 16
    s_mul_i32 s34, s35, 3
    s_sub_u32 s34, s31, s34
    s_mul_i32 s39, s30, 27
    s_add_u32 s39, s39, 1
    s_mov_b32 s36, 27
    s_cmp_eq_u32 s30, 0
    s_cselect_b32 s39, 0, s39
    s_cselect_b32 s36, 28, s36
    s_waitcnt lgkmcnt(0)
    """)
    for L in range(240):
        assert (L * 1366) >> 16 == L // 48
    for r in range(48):
        assert (r * 21846) >> 16 == r // 3
    a("s_cmp_ge_u32 s3, 4")
    a("s_cbranch_scc1 G2_loader")
    a("s_lshr_b32 s37, s3, 1")
    a("s_and_b32 s38, s3, 1")
    consumer_addr_setup(a, "KN", 37, 38)
    consumer_loop(a, "G2c", "KN", SA, NSA, SB, NSB, 36)
    srd_off(a, 12, 10, 11, WS_P, P_BYTES)
    a(f"""
    s_mul_i32 s40, s33, {P_TILE}
    s_mul_i32 s41, s3, 24576
    s_add_u32 s40, s40, s41
    v_and_b32 v60, 63, v0
    v_lshlrev_b32 v60, 4, v60
    """)
    for u in range(24):
        if u % 4 == 0:
            a(f"s_add_u32 s41, s40, {u*1024}")
        c = ACC + 4 * u
        a(f"buffer_store_dwordx4 v[{c}:{c+3}], v60, s[12:15], s41 offen offset:{(u%4)*1024}")
    a("s_endpgm")
    a.label("G2_loader")
    a("s_cmp_ge_u32 s3, 6")
    a("s_cbranch_scc1 G2_loadB")
    a(f"""
    s_add_u32 s16, s10, {WS_H}
    s_addc_u32 s17, s11, 0
    s_mov_b32 s14, {PANEL}
    s_mov_b32 s15, 0x00020000
    s_sub_u32 s40, s3, 4
    s_lshl_b32 s41, s35, 7
    s_lshl_b32 s56, s40, 6
    s_add_u32 s41, s41, s56
    s_lshl_b32 s55, s41, 12
    s_lshl_b32 s56, s40, 13
    """)
    voff_ktype(a, 4096, 1, 2)

    def issueA():
        a(f"""
        s_add_u32 s59, s50, s39
        s_lshr_b32 s60, s59, 5
        s_sub_u32 s61, s60, 2
        s_lshl_b32 s61, s61, 23
        s_add_u32 s12, s16, s61
        s_addc_u32 s13, s17, 0
        s_cmp_eq_u32 s60, 0
        s_cselect_b32 s12, s4, s12
        s_cselect_b32 s13, s5, s13
        s_cmp_eq_u32 s60, 1
        s_cselect_b32 s12, s6, s12
        s_cselect_b32 s13, s7, s13
        s_and_b32 s13, s13, 0xffff
        s_and_b32 s57, s59, 31
        s_lshl_b32 s57, s57, 7
        s_add_u32 s57, s57, s55
        s_add_u32 s58, s51, s56
        """)
        for q in range(8):
            a(f"s_add_u32 m0, s58, {q*1024}")
            a(f"s_add_u32 s54, s57, {q*8*4096}")
            a(f"buffer_load_dwordx4 v{2 if q & 1 else 1}, s[12:15], s54 offen lds")
    loader_loop(a, "G2lA", NSA, 8, SA, 0, issueA, 36)
    a.label("G2_loadB")
    a(f"""
    s_add_u32 s16, s10, {WS_AB}
    s_addc_u32 s17, s11, 0
    s_mov_b32 s15, 0x00020000
    s_sub_u32 s40, s3, 6
    s_mul_i32 s55, s34, 384
    s_mul_i32 s56, s40, {32*1152}
    s_add_u32 s55, s55, s56
    s_mul_i32 s56, s40, 12288
    """)
    voff_ntype(a, 1152, 1)

    def issueB():
        a(f"""
        s_add_u32 s59, s50, s39
        s_sub_u32 s60, s59, 64
        s_cmp_lt_u32 s59, 64
        s_cselect_b32 s60, s59, s60
        s_cselect_b32 s12, s16, s8
        s_cselect_b32 s13, s17, s9
        s_mov_b32 s14, {W2_BYTES}
        s_cselect_b32 s14, {AB_BYTES}, s14
        s_and_b32 s13, s13, 0xffff
        s_mul_i32 s57, s60, {64*1152}
        s_add_u32 s57, s57, s55
        s_add_u32 s58, s51, s56
        """)
        for aa in range(4):
            for b in range(3):
                a(f"s_add_u32 m0, s58, {(3*aa+b)*1024}")
                a(f"s_add_u32 s54, s57, {aa*8*1152}")
                a(f"buffer_load_dwordx4 v{1+b}, s[12:15], s54 offen lds")
    loader_loop(a, "G2lB", NSB, 12, SB, LDS_B, issueB, 36)
    a.label("G2_done")
    a("s_endpgm")
    return name, 160


def gen_reduce(a):
    name = "reduce_kernel"
    kernel_head(a, name)
    a(f"""
    s_cmp_ge_u32 s2, 288
    s_cbranch_scc1 R_done
    s_load_dwordx2 s[4:5], s[0:1], 0
    s_load_dwordx2 s[6:7], s[0:1], 64
    s_load_dwordx2 s[10:11], s[0:1], 80
    v_lshrrev_b32 v1, 6, v0
    s_nop 0
    v_readfirstlane_b32 s3, v1
    s_lshl_b32 s20, s2, 2
    s_add_u32 s20, s20, s3
    s_mul_i32 s21, s20, 2731
    s_lshr_b32 s21, s21, 16
    s_mul_i32 s22, s21, 24
    s_sub_u32 s22, s20, s22
    s_mul_i32 s23, s22, 10923
    s_lshr_b32 s23, s23, 16
    s_mul_i32 s24, s23, 6
    s_sub_u32 s24, s22, s24
    s_mul_i32 s25, s24, 21846
    s_lshr_b32 s25, s25, 16
    s_mul_i32 s26, s25, 3
    s_sub_u32 s26, s24, s26
    s_mul_i32 s27, s21, 21846
    s_lshr_b32 s27, s27, 16
    s_mul_i32 s28, s27, 3
    s_sub_u32 s28, s21, s28
    s_waitcnt lgkmcnt(0)
    """)
    for r in range(24):
        assert (r * 10923) >> 16 == r // 6
    for W in range(1152):
        assert (W * 2731) >> 16 == W // 24
    srd(a, 12, 4, 5, XN_BYTES)
    srd(a, 16, 6, 7, XN_BYTES)
    srd_off(a, 32, 10, 11, WS_P, P_BYTES)
    a(f"""
    s_mul_i32 s36, s21, {P_TILE}
    s_mul_i32 s37, s23, 24576
    s_add_u32 s36, s36, s37
    s_lshl_b32 s37, s24, 12
    s_add_u32 s36, s36, s37
    v_and_b32 v2, 63, v0
    v_lshlrev_b32 v3, 4, v2
    """)
    for s in range(NSPLIT):
        if s:
            a(f"s_add_u32 s36, s36, {G2_TILES*P_TILE}")
        for g in range(4):
            d = 16 + 16 * s + 4 * g
            a(f"buffer_load_dwordx4 v[{d}:{d+3}], v3, s[32:35], s36 offen offset:{g*1024}")
    a(f"""
    s_lshl_b32 s38, s27, 7
    s_lshr_b32 s39, s23, 1
    s_lshl_b32 s39, s39, 6
    s_add_u32 s38, s38, s39
    s_lshl_b32 s39, s25, 5
    s_add_u32 s38, s38, s39
    s_mul_i32 s39, s28, 192
    s_and_b32 s40, s23, 1
    s_mul_i32 s40, s40, 96
    s_add_u32 s39, s39, s40
    s_lshl_b32 s40, s26, 5
    s_add_u32 s39, s39, s40
    s_lshl_b32 s39, s39, 1
    v_and_b32 v4, 31, v2
    v_add_u32 v4, s38, v4
    v_mul_u32_u24 v4, 1152, v4
    v_lshrrev_b32 v5, 5, v2
    v_lshl_add_u32 v4, v5, 3, v4
    v_add_u32 v4, s39, v4
    """)
    for g in range(4):
        a(f"buffer_load_dwordx2 v[{100+2*g}:{101+2*g}], v4, s[12:15], 0 offen offset:{g*16}")
    a("s_waitcnt vmcnt(4)")
    for g in range(4):
        for r in range(4):
            d = 16 + 4 * g + r
            for s in range(1, NSPLIT):
                a(f"v_add_f32 v{d}, v{d}, v{d+16*s}")
    a("s_waitcnt vmcnt(0)")
    for g in range(4):
        d = 16 + 4 * g
        a(f"""
        v_lshlrev_b32 v6, 16, v{100+2*g}
        v_and_b32 v7, 0xffff0000, v{100+2*g}
        v_lshlrev_b32 v8, 16, v{101+2*g}
        v_and_b32 v9, 0xffff0000, v{101+2*g}
        v_add_f32 v{d}, v{d}, v6
        v_add_f32 v{d+1}, v{d+1}, v7
        v_add_f32 v{d+2}, v{d+2}, v8
        v_add_f32 v{d+3}, v{d+3}, v9
        v_cvt_pk_bf16_f32 v{100+2*g}, v{d}, v{d+1}
        v_cvt_pk_bf16_f32 v{101+2*g}, v{d+2}, v{d+3}
        buffer_store_dwordx2 v[{100+2*g}:{101+2*g}], v4, s[16:19], 0 offen offset:{g*16}
        """)
    a.label("R_done")
    a("s_endpgm")
    return name, 108


def main():
    only = sys.argv[1:] if len(sys.argv) > 1 else None
    a = Asm()
    ks = []
    ks.append(gen_ln(a) + ((256, 128, 0),))
    ks.append(gen_gemm1(a) + ((240, 768, 163840),))
    ks.append(gen_gemm2(a) + ((G2_WGS, 512, 163840),))
    ks.append(gen_reduce(a) + ((288, 256, 0),))
    head = "; generated by gen.py\n"
    for name, vg, (g, b, lds) in ks:
        head += f"; @launch kernel={name} grid=({g},1,1) block=({b},1,1) lds={lds}\n"
    head += '.amdgcn_target "amdgcn-amd-amdhsa--gfx950"\n.text\n'
    tail = '.section .rodata,"a"\n'
    for name, vg, _ in ks:
        tail += kd(name, vg)
    open(OUT, "w").write(head + a.text() + tail)


if __name__ == "__main__":
    main()
```

```python
import sys, os
NOLOAD = int(os.environ.get("NOLOAD", "0"))
NOCOMP = int(os.environ.get("NOCOMP", "0"))
STAMP = int(os.environ.get("STAMP", "0"))
WS_STAMP = 0x8000000

NAME = "parallel_sum__spectral_fnet__dense_activation_relu__prompt"
OUT = os.environ.get("OUT", "cdna_kernels/%s.s" % NAME)

WS_XN = 0x0
WS_AB = 0x400000
WS_H = 0x1000000
WS_P = 0x4000000
XN_BYTES = 2048 * 576 * 2
AB_BYTES = 4096 * 576 * 2
PANEL = 2048 * 2048 * 2
W1_BYTES = 576 * 4608 * 2
W2_BYTES = 4608 * 576 * 2
WD_BYTES = 576 * 576 * 2
NSPLIT = 5
G2_TILES = 48
NWG = 240
P_TILE = 128 * 192 * 4
P_BYTES = NWG * P_TILE

C_LN, C_AB, C_H, C_P = 0, 8, 16, 40

S_X, S_WSRE, S_WSIM, S_WDRE, S_WDIM, S_W1, S_W2, S_OUT, S_DBG, S_WS = 4, 6, 8, 10, 12, 16, 18, 20, 22, 24
S_SPLIT, S_TILE, S_MT2, S_NT2, S_K0, S_N2 = 26, 27, 32, 39, 66, 67
SRD_DBG = 28
S_L, S_NT1, S_MT1, S_NS, S_WM, S_WN = 33, 34, 35, 36, 37, 38
SRD_A, SRD_B, SRD_C = 68, 72, 76
SRD_F = 92


class Asm:
    def __init__(self):
        self.lines = []
        self.uid = 0

    def __call__(self, s=""):
        for l in s.split("\n"):
            l = l.strip()
            if NOLOAD and l.endswith(" lds"):
                continue
            if NOCOMP and (l.startswith("v_mfma") or l.startswith("ds_read_b64_tr") or (l.startswith("ds_read_b128") and "offset" in l)):
                continue
            if l:
                self.lines.append("    " + l if not l.endswith(":") else l)

    def label(self, s):
        self.lines.append(s + ":")

    def new(self, p):
        self.uid += 1
        return f"{p}_{self.uid}"

    def text(self):
        return "\n".join(self.lines) + "\n"


def srd(a, d, lo, size):
    a(f"s_mov_b32 s{d}, s{lo}")
    a(f"s_and_b32 s{d+1}, s{lo+1}, 0xffff")
    a(f"s_mov_b32 s{d+2}, {size}")
    a(f"s_mov_b32 s{d+3}, 0x00020000")


def srd_off(a, d, lo, off, size):
    a(f"s_add_u32 s{d}, s{lo}, {off}")
    a(f"s_addc_u32 s{d+1}, s{lo+1}, 0")
    a(f"s_and_b32 s{d+1}, s{d+1}, 0xffff")
    a(f"s_mov_b32 s{d+2}, {size}")
    a(f"s_mov_b32 s{d+3}, 0x00020000")


def stamp(a, i, wait=False):
    if STAMP:
        a("s_memrealtime s[98:99]")
        a("s_waitcnt lgkmcnt(0)")
        a(f"s_mov_b32 s{80+i}, s98")


def flush_stamps(a, n):
    if not STAMP:
        return
    lbl = a.new("ST_skip")
    a("s_cmp_lg_u32 s3, 0")
    a(f"s_cbranch_scc1 {lbl}")
    stamp(a, n - 1)
    srd_off(a, SRD_A, S_WS, WS_STAMP, 0x10000)
    a("s_lshl_b32 s100, s2, 6")
    a("v_mov_b32 v1, 0")
    a("s_waitcnt lgkmcnt(0)")
    for i in range(n):
        a(f"v_mov_b32 v2, s{80+i}")
        a(f"buffer_store_dword v2, v1, s[{SRD_A}:{SRD_A+3}], s100 offen offset:{4*i}")
    a.label(lbl)


WS_F = 0x3000000
F_BYTES = 96 * 256
S_NLO, S_NHI = 14, 15
POLL_SLEEP = int(os.environ.get("POLL_SLEEP", "4"))


def get_nonce(a):
    l = a.new("nonce")
    d = a.new("nonced")
    a("v_mov_b32 v63, 0")
    a("s_mov_b32 s101, 0")
    a.label(l)
    a("s_add_u32 s101, s101, 1")
    a("s_cmp_ge_u32 s101, 0x40000")
    a(f"s_cbranch_scc1 {d}")
    a(f"buffer_load_dwordx2 v[60:61], v63, s[{SRD_DBG}:{SRD_DBG+3}], 0 offen sc1")
    a("s_waitcnt vmcnt(0)")
    a(f"v_readfirstlane_b32 s{S_NLO}, v60")
    a(f"v_readfirstlane_b32 s{S_NHI}, v61")
    a(f"s_or_b32 s40, s{S_NLO}, s{S_NHI}")
    a("s_cmp_lg_u32 s40, 0")
    a(f"s_cbranch_scc1 {d}")
    a("s_sleep 2")
    a(f"s_branch {l}")
    a.label(d)


def signal(a, s_off):
    a(f"""
    v_mov_b32 v60, s{S_NLO}
    v_mov_b32 v61, s{S_NHI}
    v_mov_b32 v63, 0
    s_mov_b64 exec, 1
    buffer_store_dwordx2 v[60:61], v63, s[{SRD_F}:{SRD_F+3}], s{s_off} offen sc1
    s_mov_b64 exec, -1
    """)


def poll(a, s_off, mask):
    l = a.new("poll")
    d = a.new("polld")
    a("v_and_b32 v63, 31, v0")
    a("v_lshlrev_b32 v63, 3, v63")
    a("s_mov_b32 s101, 0")
    a.label(l)
    a("s_add_u32 s101, s101, 1")
    a("s_cmp_ge_u32 s101, 0x40000")
    a(f"s_cbranch_scc1 {d}")
    a(f"buffer_load_dwordx2 v[60:61], v63, s[{SRD_F}:{SRD_F+3}], s{s_off} offen sc1")
    a("s_waitcnt vmcnt(0)")
    a(f"v_cmp_eq_u32 s[62:63], s{S_NLO}, v60")
    a(f"v_cmp_eq_u32 vcc, s{S_NHI}, v61")
    a("s_nop 1")
    a("s_and_b32 s40, s62, vcc_lo")
    a(f"s_and_b32 s40, s40, {mask}")
    a(f"s_cmp_eq_u32 s40, {mask}")
    a(f"s_cbranch_scc1 {d}")
    a(f"s_sleep {POLL_SLEEP}")
    a(f"s_branch {l}")
    a.label(d)


def ln_phase(a):
    a(f"""
    v_lshrrev_b32 v1, 4, v0
    v_mul_u32_u24 v2, 30, v1
    v_add_u32 v2, s{S_NT1}, v2
    s_lshl_b32 s40, s{S_MT1}, 8
    v_add_u32 v3, s40, v2
    v_mul_u32_u24 v3, 1152, v3
    v_and_b32 v4, 15, v0
    v_lshl_add_u32 v3, v4, 3, v3
    v_mov_b32 v4, 0x7f000000
    v_cmp_gt_u32 vcc, 256, v2
    s_nop 1
    v_cndmask_b32 v1, v4, v3, vcc
    """)
    srd(a, SRD_A, S_X, XN_BYTES)
    srd_off(a, SRD_B, S_WS, WS_XN, XN_BYTES)
    for p in range(9):
        a(f"buffer_load_dwordx2 v[{4+2*p}:{5+2*p}], v1, s[{SRD_A}:{SRD_A+3}], 0 offen offset:{p*128}")
    X = 24
    for p in range(9):
        a(f"s_waitcnt vmcnt({8-p})")
        for j in range(2):
            src = 4 + 2 * p + j
            a(f"v_lshlrev_b32 v{X+4*p+2*j}, 16, v{src}")
            a(f"v_and_b32 v{X+4*p+2*j+1}, 0xffff0000, v{src}")
    a(f"v_add_f32 v60, v{X}, v{X+1}")
    a(f"v_add_f32 v61, v{X+2}, v{X+3}")
    for i in range(4, 36, 2):
        a(f"v_add_f32 v60, v60, v{X+i}")
        a(f"v_add_f32 v61, v61, v{X+i+1}")
    a("v_add_f32 v60, v60, v61")

    def allreduce(r, t):
        for sh in (8, 4, 2, 1):
            a("s_nop 1")
            a(f"v_add_f32_dpp v{t}, v{r}, v{r} row_ror:{sh} row_mask:0xf bank_mask:0xf")
            a(f"v_mov_b32 v{r}, v{t}")
    allreduce(60, 61)
    a("v_mul_f32 v60, 0x3ae38e39, v60")
    a(f"v_sub_f32 v62, v{X}, v60")
    a("v_mul_f32 v63, v62, v62")
    a(f"v_sub_f32 v62, v{X+1}, v60")
    a("v_mul_f32 v64, v62, v62")
    for i in range(2, 36, 2):
        a(f"v_sub_f32 v62, v{X+i}, v60")
        a(f"v_sub_f32 v65, v{X+i+1}, v60")
        a("v_fmac_f32 v63, v62, v62")
        a("v_fmac_f32 v64, v65, v65")
    a("v_add_f32 v63, v63, v64")
    allreduce(63, 61)
    a("""
    v_mul_f32 v63, 0x3ae38e39, v63
    v_cvt_pk_bf16_f32 v61, v60, v63
    v_lshlrev_b32 v60, 16, v61
    v_and_b32 v63, 0xffff0000, v61
    v_add_f32 v63, 0x3727c5ac, v63
    v_cvt_pk_bf16_f32 v63, v63, v63
    v_and_b32 v63, 0xffff0000, v63
    v_sqrt_f32 v63, v63
    s_nop 0
    v_cvt_pk_bf16_f32 v63, v63, v63
    v_and_b32 v63, 0xffff0000, v63
    v_rcp_f32 v64, v63
    s_nop 0
    """)
    for p in range(9):
        for j in range(2):
            e0 = X + 4 * p + 2 * j
            e1 = e0 + 1
            a(f"""
            v_sub_f32 v{e0}, v{e0}, v60
            v_sub_f32 v{e1}, v{e1}, v60
            v_cvt_pk_bf16_f32 v66, v{e0}, v{e1}
            v_lshlrev_b32 v{e0}, 16, v66
            v_and_b32 v{e1}, 0xffff0000, v66
            v_mul_f32 v66, v{e0}, v64
            v_mul_f32 v67, v{e1}, v64
            v_fma_f32 v68, -v66, v63, v{e0}
            v_fma_f32 v69, -v67, v63, v{e1}
            v_fmac_f32 v66, v68, v64
            v_fmac_f32 v67, v69, v64
            v_cvt_pk_bf16_f32 v{4+2*p+j}, v66, v67
            """)
        a(f"buffer_store_dwordx2 v[{4+2*p}:{5+2*p}], v1, s[{SRD_B}:{SRD_B+3}], 0 offen offset:{p*128} sc1")
    a("s_waitcnt vmcnt(0)")


V_AB, V_AA, V_BB, V_BA = 1, 5, 9, 13
FR0, FR1, ACC = 20, 40, 64
LDS_B = 65536


def frag(setb, which):
    return setb + {"A0": 0, "A1": 4, "B0": 8, "B1": 12, "B2": 16}[which]


def reads_for(btype, setb, j):
    r = []

    def aread(mi):
        d = frag(setb, f"A{mi}")
        return (f"A{mi}", f"ds_read_b128 v[{d}:{d+3}], v{V_AA+j} offset:{4096*mi}")

    def bread(ni):
        d = frag(setb, f"B{ni}")
        if btype == "NK":
            return [(f"B{ni}", f"ds_read_b128 v[{d}:{d+3}], v{V_BA+j} offset:{4096*ni}")]
        return [(f"B{ni}", f"ds_read_b64_tr_b16 v[{d}:{d+1}], v{V_BA+ni} offset:{(16*j)*384}"),
                (f"B{ni}", f"ds_read_b64_tr_b16 v[{d+2}:{d+3}], v{V_BA+ni} offset:{(16*j+4)*384}")]
    r.append(aread(0))
    r += bread(0)
    r += bread(1)
    r += bread(2)
    r.append(aread(1))
    return r


class LgkmTracker:
    def __init__(self, a):
        self.a = a
        self.out = []

    def issue(self, tag, instr):
        self.a(instr)
        self.out.append(tag)

    def need(self, tags):
        last = -1
        for i, t in enumerate(self.out):
            if t in tags:
                last = i
        if last < 0:
            return
        n = len(self.out) - 1 - last
        assert n <= 15
        self.a(f"s_waitcnt lgkmcnt({n})")
        self.out = self.out[last + 1:]

    def drain(self):
        self.a("s_waitcnt lgkmcnt(0)")
        self.out = []


def substep(a, trk, cur, nxt_reads, curtag, nxttag):
    order = [(0, 0), (0, 1), (0, 2), (1, 0), (1, 1), (1, 2)]
    nr = len(nxt_reads)
    per = [2, 2, 2, 2, 0, 0] if nr == 8 else [2, 1, 1, 1, 0, 0]
    ri = 0
    for idx, (mi, ni) in enumerate(order):
        trk.need([curtag + f"A{mi}", curtag + f"B{ni}"])
        A = frag(cur, f"A{mi}")
        B = frag(cur, f"B{ni}")
        c = ACC + 16 * (3 * mi + ni)
        a(f"v_mfma_f32_32x32x16_bf16 v[{c}:{c+15}], v[{B}:{B+3}], v[{A}:{A+3}], v[{c}:{c+15}]")
        for _ in range(per[idx]):
            t, ins = nxt_reads[ri]
            trk.issue(nxttag + t, ins)
            ri += 1
    assert ri == nr


def consumer_addr_setup(a, btype):
    a(f"""
    v_and_b32 v60, 63, v0
    v_and_b32 v61, 31, v60
    v_lshrrev_b32 v62, 5, v60
    v_lshrrev_b32 v63, 1, v60
    v_and_b32 v63, 7, v63
    s_lshl_b32 s40, s{S_WM}, 6
    v_add_u32 v17, s40, v61
    v_lshlrev_b32 v17, 7, v17
    """)
    for j in range(4):
        a(f"v_add_u32 v18, {2*j}, v62")
        a("v_xor_b32 v18, v18, v63")
        a(f"v_lshl_add_u32 v{V_AB+j}, v18, 4, v17")
    if btype == "NK":
        a(f"""
        s_mul_i32 s40, s{S_WN}, 96
        v_add_u32 v17, s40, v61
        v_lshlrev_b32 v17, 7, v17
        v_add_u32 v17, {LDS_B}, v17
        """)
        for j in range(4):
            a(f"v_add_u32 v18, {2*j}, v62")
            a("v_xor_b32 v18, v18, v63")
            a(f"v_lshl_add_u32 v{V_BB+j}, v18, 4, v17")
    else:
        a(f"""
        v_and_b32 v17, 15, v60
        v_lshrrev_b32 v18, 2, v17
        v_lshl_add_u32 v18, v62, 3, v18
        v_mul_u32_u24 v18, 384, v18
        v_add_u32 v18, {LDS_B}, v18
        v_bfe_u32 v19, v60, 4, 1
        v_lshlrev_b32 v19, 5, v19
        v_add_u32 v18, v18, v19
        v_and_b32 v19, 3, v17
        v_lshlrev_b32 v19, 3, v19
        v_add_u32 v18, v18, v19
        v_lshrrev_b32 v19, 3, v17
        s_mul_i32 s40, s{S_WN}, 3
        """)
        for ni in range(3):
            a(f"s_add_u32 s41, s40, {ni}")
            a("v_xor_b32 v17, s41, v19")
            a(f"v_lshl_add_u32 v{V_BB+ni}, v17, 6, v18")


def consumer_loop(a, pfx, btype, SA, NSA, SB, NSB, s_nsteps, st):
    nb = 4 if btype == "NK" else 3
    for i in range(96):
        a(f"v_mov_b32 v{ACC+i}, 0")
    a("s_mov_b32 s44, 0")
    a("s_mov_b32 s45, 0")
    a("s_mov_b32 s46, 0")
    for j in range(4):
        a(f"v_mov_b32 v{V_AA+j}, v{V_AB+j}")
    for j in range(nb):
        a(f"v_mov_b32 v{V_BA+j}, v{V_BB+j}")
    a("s_barrier")
    stamp(a, st, True)
    trk = LgkmTracker(a)
    for t, ins in reads_for(btype, FR0, 0):
        trk.issue("s0" + t, ins)
    a.label(f"{pfx}_loop")
    entry_state = list(trk.out)
    substep(a, trk, FR0, reads_for(btype, FR1, 1), "s0", "s1")
    substep(a, trk, FR1, reads_for(btype, FR0, 2), "s1", "s2")
    substep(a, trk, FR0, reads_for(btype, FR1, 3), "s2", "s3")
    a(f"""
    s_add_u32 s44, s44, {SA}
    s_cmp_ge_u32 s44, {SA*NSA}
    s_cselect_b32 s44, 0, s44
    s_add_u32 s45, s45, {SB}
    s_cmp_ge_u32 s45, {SB*NSB}
    s_cselect_b32 s45, 0, s45
    """)
    trk.drain()
    for j in range(4):
        a(f"v_add_u32 v{V_AA+j}, s44, v{V_AB+j}")
    for j in range(nb):
        a(f"v_add_u32 v{V_BA+j}, s45, v{V_BB+j}")
    a("s_barrier")
    substep(a, trk, FR1, reads_for(btype, FR0, 0), "s3", "s0")
    assert trk.out == entry_state
    a(f"""
    s_add_u32 s46, s46, 1
    s_cmp_lt_u32 s46, s{s_nsteps}
    s_cbranch_scc1 {pfx}_loop
    s_waitcnt lgkmcnt(0)
    s_nop 15
    s_nop 3
    """)


def loader_loop(a, pfx, NS, L, slot_bytes, ring_base, issue_fn, s_nsteps, mid=None):
    a("s_mov_b32 s50, 0")
    a(f"s_mov_b32 s51, {ring_base}")
    for j in range(NS):
        issue_fn()
        a("s_add_u32 s50, s50, 1")
        a(f"s_add_u32 s51, s51, {slot_bytes}")
    a(f"s_mov_b32 s51, {ring_base}")
    if mid:
        mid()
    a(f"s_waitcnt vmcnt({(NS-1)*L})")
    a("s_barrier")
    a("s_mov_b32 s52, 0")
    a.label(f"{pfx}_loop")
    a(f"s_sub_i32 s53, s{s_nsteps}, s52")
    a("s_sub_i32 s53, s53, 2")
    for c in range(NS - 2, 0, -1):
        a(f"s_cmp_ge_i32 s53, {c}")
        a(f"s_cbranch_scc1 {pfx}_w{c}")
    a("s_waitcnt vmcnt(0)")
    a(f"s_branch {pfx}_bar")
    for c in range(1, NS - 1):
        a.label(f"{pfx}_w{c}")
        a(f"s_waitcnt vmcnt({c*L})")
        if c != NS - 2:
            a(f"s_branch {pfx}_bar")
    a.label(f"{pfx}_bar")
    a("s_barrier")
    a(f"s_cmp_ge_u32 s50, s{s_nsteps}")
    a(f"s_cbranch_scc1 {pfx}_skip")
    issue_fn()
    a("s_add_u32 s50, s50, 1")
    a(f"s_add_u32 s51, s51, {slot_bytes}")
    a(f"s_cmp_ge_u32 s51, {ring_base + NS*slot_bytes}")
    a(f"s_cselect_b32 s51, {ring_base}, s51")
    a.label(f"{pfx}_skip")
    a(f"""
    s_add_u32 s52, s52, 1
    s_cmp_lt_u32 s52, s{s_nsteps}
    s_cbranch_scc1 {pfx}_loop
    """)


def voff_ktype(a, stride, ve, vo):
    a(f"""
    v_and_b32 v60, 63, v0
    v_lshrrev_b32 v61, 3, v60
    v_mul_u32_u24 v61, {stride}, v61
    v_and_b32 v62, 7, v60
    v_lshrrev_b32 v63, 4, v60
    v_xor_b32 v62, v62, v63
    v_lshl_add_u32 v{ve}, v62, 4, v61
    v_xor_b32 v62, 4, v62
    v_lshl_add_u32 v{vo}, v62, 4, v61
    """)


def voff_ntype(a, stride, vb):
    for p in range(192):
        assert (p * 2731) >> 16 == p // 24
    a("v_and_b32 v60, 63, v0")
    for b in range(3):
        a(f"""
        v_add_u32 v61, {64*b}, v60
        v_mul_u32_u24 v62, 2731, v61
        v_lshrrev_b32 v62, 16, v62
        v_mul_u32_u24 v63, 24, v62
        v_sub_u32 v61, v61, v63
        v_and_b32 v63, 2, v62
        v_lshlrev_b32 v63, 1, v63
        v_xor_b32 v61, v61, v63
        v_mul_u32_u24 v62, {stride}, v62
        v_lshl_add_u32 v{vb+b}, v61, 4, v62
        """)


def issue_k(a, nq, stride, flags=""):
    for q in range(nq):
        a(f"s_add_u32 m0, s58, {q*1024}")
        a(f"s_add_u32 s54, s57, {q*8*stride}")
        a(f"buffer_load_dwordx4 v{2 if q & 1 else 1}, s[{SRD_A}:{SRD_A+3}], s54 offen {flags} lds")


def issue_n(a, stride, flags=""):
    for aa in range(4):
        for b in range(3):
            a(f"s_add_u32 m0, s58, {(3*aa+b)*1024}")
            a(f"s_add_u32 s54, s57, {aa*8*stride}")
            a(f"buffer_load_dwordx4 v{1+b}, s[{SRD_A}:{SRD_A+3}], s54 offen {flags} lds")


def gen_kernel(a):
    name = NAME + "_kernel"
    G1 = (32768, 2, 24576, 4)
    G2 = (16384, 4, 24576, 4)
    RS = 400
    a.lines.append(f".globl {name}")
    a.lines.append(".p2align 8")
    a.lines.append(f".type {name},@function")
    a.label(name)
    a(f"""
    s_cmp_ge_u32 s2, {NWG}
    s_cbranch_scc1 K_done
    """)
    stamp(a, 0)
    a(f"""
    s_load_dwordx8 s[4:11], s[0:1], 0
    s_load_dwordx2 s[12:13], s[0:1], 32
    s_load_dwordx4 s[16:19], s[0:1], 48
    s_load_dwordx4 s[20:23], s[0:1], 64
    s_load_dwordx2 s[24:25], s[0:1], 80
    v_lshrrev_b32 v1, 6, v0
    s_and_b32 s33, s2, 7
    s_mul_i32 s33, s33, 30
    s_lshr_b32 s34, s2, 3
    v_readfirstlane_b32 s3, v1
    s_add_u32 s{S_L}, s33, s34
    s_lshr_b32 s{S_NT1}, s{S_L}, 3
    s_and_b32 s{S_MT1}, s{S_L}, 7
    s_mul_i32 s{S_SPLIT}, s{S_L}, 1366
    s_lshr_b32 s{S_SPLIT}, s{S_SPLIT}, 16
    s_mul_i32 s40, s{S_SPLIT}, 48
    s_sub_u32 s{S_TILE}, s{S_L}, s40
    s_mul_i32 s{S_MT2}, s{S_TILE}, 21846
    s_lshr_b32 s{S_MT2}, s{S_MT2}, 16
    s_mul_i32 s40, s{S_MT2}, 3
    s_sub_u32 s{S_NT2}, s{S_TILE}, s40
    s_mul_i32 s{S_K0}, s{S_SPLIT}, 27
    s_add_u32 s{S_K0}, s{S_K0}, 1
    s_mov_b32 s{S_N2}, 27
    s_cmp_eq_u32 s{S_SPLIT}, 0
    s_cselect_b32 s{S_K0}, 0, s{S_K0}
    s_cselect_b32 s{S_N2}, 28, s{S_N2}
    s_mov_b32 s{S_NS}, 9
    s_waitcnt lgkmcnt(0)
    """)
    for L in range(240):
        assert (L * 1366) >> 16 == L // 48
    for r in range(48):
        assert (r * 21846) >> 16 == r // 3
    srd(a, SRD_DBG, S_DBG, 256)
    srd_off(a, SRD_F, S_WS, WS_F, F_BYTES)
    a(f"""
    s_or_b32 s40, s2, s3
    s_cmp_lg_u32 s40, 0
    s_cbranch_scc1 K_nopub
    s_memrealtime s[40:41]
    s_waitcnt lgkmcnt(0)
    s_or_b32 s40, s40, 1
    v_mov_b32 v60, s40
    v_mov_b32 v61, s41
    v_mov_b32 v63, 0
    s_mov_b64 exec, 1
    buffer_store_dwordx2 v[60:61], v63, s[{SRD_DBG}:{SRD_DBG+3}], 0 offen sc1
    s_mov_b64 exec, -1
    """)
    a.label("K_nopub")
    a("s_cmp_ge_u32 s3, 8")
    a("s_cbranch_scc1 K_loader")
    a("s_cmp_ge_u32 s3, 3")
    a("s_cbranch_scc1 K_lnskip")
    ln_phase(a)
    a.label("K_lnskip")
    a("s_barrier")
    a("s_cmp_lg_u32 s3, 0")
    a("s_cbranch_scc1 K_lnsig")
    get_nonce(a)
    a(f"s_lshl_b32 s41, s{S_MT1}, 8")
    a(f"s_lshl_b32 s40, s{S_NT1}, 3")
    a("s_add_u32 s41, s41, s40")
    a(f"s_add_u32 s41, s41, {C_LN*256}")
    signal(a, 41)
    a.label("K_lnsig")
    stamp(a, 1)
    a(f"s_lshr_b32 s{S_WM}, s3, 1")
    a(f"s_and_b32 s{S_WN}, s3, 1")
    a(f"s_cmp_ge_u32 s{S_NT1}, 6")
    a("s_cbranch_scc1 G1_consKN")
    consumer_addr_setup(a, "NK")
    consumer_loop(a, "G1cNK", "NK", *G1, S_NS, 2)
    a("s_branch G1_epi")
    a.label("G1_consKN")
    consumer_addr_setup(a, "KN")
    consumer_loop(a, "G1cKN", "KN", *G1, S_NS, 2)
    a.label("G1_epi")
    stamp(a, 3)
    a(f"""
    s_mov_b32 s42, 0
    s_cmp_ge_u32 s{S_NT1}, 3
    s_cselect_b32 s42, 0x80008000, s42
    s_cmp_ge_u32 s{S_NT1}, 6
    s_cselect_b32 s42, 0, s42
    s_mov_b32 s43, 0xff800000
    s_cselect_b32 s43, 0, s43
    v_and_b32 v60, 63, v0
    v_and_b32 v61, 31, v60
    v_lshrrev_b32 v62, 5, v60
    s_lshl_b32 s40, s{S_WM}, 6
    v_add_u32 v61, s40, v61
    v_mul_u32_u24 v61, {RS}, v61
    s_mul_i32 s40, s{S_WN}, 192
    v_lshl_add_u32 v61, v62, 3, v61
    v_add_u32 v61, s40, v61
    """)
    for mi in range(2):
        for ni in range(3):
            for g in range(4):
                c = ACC + 16 * (3 * mi + ni) + 4 * g
                t = 20 + 2 * ((ni * 4 + g) & 7)
                for r in range(4):
                    a(f"v_max_f32 v{c+r}, s43, v{c+r}")
                a(f"v_cvt_pk_bf16_f32 v{t}, v{c}, v{c+1}")
                a(f"v_cvt_pk_bf16_f32 v{t+1}, v{c+2}, v{c+3}")
                a(f"v_xor_b32 v{t}, s42, v{t}")
                a(f"v_xor_b32 v{t+1}, s42, v{t+1}")
                a(f"ds_write_b64 v61, v[{t}:{t+1}] offset:{mi*32*RS + ni*64 + g*16}")
    a("s_waitcnt lgkmcnt(0)")
    a("s_barrier")
    srd_off(a, SRD_A, S_WS, WS_AB, AB_BYTES)
    srd_off(a, SRD_B, S_WS, WS_H, 3 * PANEL)
    a(f"""
    s_lshl_b32 s49, s{S_MT1}, 8
    s_cmp_ge_u32 s{S_NT1}, 6
    s_cbranch_scc1 G1_epiH
    s_cmp_ge_u32 s{S_NT1}, 3
    s_cselect_b32 s41, 2048, 0
    s_cselect_b32 s40, 3, 0
    s_add_u32 s49, s49, s41
    s_sub_u32 s40, s{S_NT1}, s40
    s_mul_i32 s48, s40, 192
    s_mov_b32 s47, 1152
    s_lshl_b32 s41, s{S_NT1}, 8
    s_lshl_b32 s40, s{S_MT1}, 3
    s_add_u32 s41, s41, s40
    s_add_u32 s41, s41, {C_AB*256}
    s_branch G1_epiS
    """)
    a.label("G1_epiH")
    a(f"""
    s_mov_b32 s{SRD_A}, s{SRD_B}
    s_mov_b32 s{SRD_A+1}, s{SRD_B+1}
    s_mov_b32 s{SRD_A+2}, s{SRD_B+2}
    s_sub_u32 s40, s{S_NT1}, 6
    s_mul_i32 s48, s40, 192
    s_mov_b32 s47, 4096
    s_mul_i32 s41, s{S_MT1}, 3
    s_mov_b32 s46, s40
    s_cmp_ge_u32 s40, 6
    s_addc_u32 s41, s41, 0
    s_cmp_ge_u32 s40, 6
    s_cselect_b32 s45, 6, 0
    s_cmp_ge_u32 s40, 15
    s_addc_u32 s41, s41, 0
    s_cmp_ge_u32 s40, 15
    s_cselect_b32 s45, 15, s45
    s_sub_u32 s46, s46, s45
    s_lshl_b32 s41, s41, 8
    s_lshl_b32 s46, s46, 3
    s_add_u32 s41, s41, s46
    s_add_u32 s41, s41, {C_H*256}
    """)
    a.label("G1_epiS")
    for it in range(12):
        t = 20 + 4 * (it % 8)
        a(f"""
        v_add_u32 v60, {512*it}, v0
        v_mul_u32_u24 v61, 2731, v60
        v_lshrrev_b32 v61, 16, v61
        v_mul_u32_u24 v62, 24, v61
        v_sub_u32 v62, v60, v62
        v_mul_u32_u24 v63, {RS}, v61
        v_lshl_add_u32 v63, v62, 4, v63
        ds_read_b128 v[{t}:{t+3}], v63
        v_lshl_add_u32 v62, v62, 3, s48
        v_add_u32 v61, s49, v61
        v_mul_lo_u32 v61, v61, s47
        v_lshrrev_b32 v63, 11, v62
        v_lshlrev_b32 v63, 23, v63
        v_and_b32 v62, 2047, v62
        v_add_u32 v61, v61, v63
        v_lshl_add_u32 v{52+(it%8)}, v62, 1, v61
        """)
        if it % 4 == 3:
            for jt in range(it - 3, it + 1):
                t = 20 + 4 * (jt % 8)
                a(f"s_waitcnt lgkmcnt({it-jt})")
                a(f"buffer_store_dwordx4 v[{t}:{t+3}], v{52+(jt%8)}, s[{SRD_A}:{SRD_A+3}], 0 offen sc1")
    a("s_waitcnt vmcnt(0)")
    a("s_barrier")
    a("s_cmp_ge_u32 s3, 4")
    a("s_cbranch_scc1 K_done")
    a("s_cmp_lg_u32 s3, 0")
    a("s_cbranch_scc1 K_g1sig")
    signal(a, 41)
    a.label("K_g1sig")
    stamp(a, 4)
    consumer_addr_setup(a, "KN")
    consumer_loop(a, "G2c", "KN", *G2, S_N2, 5)
    stamp(a, 6)
    srd_off(a, SRD_A, S_WS, WS_P, P_BYTES)
    a(f"""
    s_mul_i32 s42, s{S_L}, {P_TILE}
    s_mul_i32 s41, s3, 24576
    s_add_u32 s42, s42, s41
    v_and_b32 v60, 63, v0
    v_lshlrev_b32 v60, 4, v60
    s_add_u32 s43, s3, 5
    s_sub_u32 s43, s43, s{S_SPLIT}
    """)
    for i in range(6):
        sk = a.new("pst")
        a(f"s_add_u32 s40, s43, {i}")
        a("s_cmp_eq_u32 s40, 5")
        a(f"s_cbranch_scc1 {sk}")
        a("s_cmp_eq_u32 s40, 10")
        a(f"s_cbranch_scc1 {sk}")
        a(f"s_add_u32 s41, s42, {i*4096}")
        for g in range(4):
            c = ACC + 16 * i + 4 * g
            a(f"buffer_store_dwordx4 v[{c}:{c+3}], v60, s[{SRD_A}:{SRD_A+3}], s41 offen offset:{g*1024} sc1")
        a.label(sk)
    a("s_waitcnt vmcnt(0)")
    a("s_barrier")
    a(f"""
    s_lshl_b32 s41, s{S_TILE}, 8
    s_add_u32 s41, s41, {C_P*256}
    s_lshl_b32 s47, s{S_SPLIT}, 3
    s_add_u32 s47, s47, s41
    s_cmp_lg_u32 s3, 0
    s_cbranch_scc1 K_psig
    """)
    signal(a, 47)
    a("s_branch K_psig2")
    a.label("K_psig")
    get_nonce(a)
    a.label("K_psig2")
    a("v_and_b32 v59, 63, v0")
    a("v_lshlrev_b32 v59, 4, v59")
    srd(a, SRD_B, S_X, XN_BYTES)
    srd(a, SRD_C, S_OUT, XN_BYTES)
    a(f"""
    s_lshl_b32 s49, s{S_MT2}, 7
    s_lshl_b32 s40, s{S_WM}, 6
    s_add_u32 s49, s49, s40
    s_mul_i32 s48, s{S_NT2}, 384
    s_mul_i32 s40, s{S_WN}, 192
    s_add_u32 s48, s48, s40
    v_and_b32 v2, 63, v0
    v_and_b32 v3, 31, v2
    v_lshrrev_b32 v4, 5, v2
    v_add_u32 v3, s49, v3
    v_mul_u32_u24 v3, 1152, v3
    v_add_u32 v3, s48, v3
    v_lshl_add_u32 v5, v4, 3, v3
    v_lshl_add_u32 v6, v4, 4, v3
    s_mul_i32 s42, s{S_TILE}, {P_TILE}
    s_mul_i32 s40, s3, 24576
    s_add_u32 s42, s42, s40
    """)
    poll(a, 41, 0x1f)
    stamp(a, 7)
    for i in range(6):
        mi, ni = divmod(i, 3)
        sk = a.new("fin")
        go = a.new("fing")
        a(f"s_add_u32 s40, s43, {i}")
        a("s_cmp_eq_u32 s40, 5")
        a(f"s_cbranch_scc1 {go}")
        a("s_cmp_lg_u32 s40, 10")
        a(f"s_cbranch_scc1 {sk}")
        a.label(go)
        boff = mi * 32 * 1152 + ni * 64
        a(f"s_mov_b32 s40, {boff}")
        for g in range(4):
            a(f"buffer_load_dwordx2 v[{8+2*g}:{9+2*g}], v5, s[{SRD_B}:{SRD_B+3}], s40 offen offset:{g*16}")
        c0 = ACC + 16 * i
        for half in range(2):
            for dd in range(2):
                d = 1 + 2 * half + dd
                a(f"s_add_u32 s44, s{S_SPLIT}, {d}")
                a("s_sub_u32 s45, s44, 5")
                a("s_cmp_ge_u32 s44, 5")
                a("s_cselect_b32 s44, s45, s44")
                a(f"s_mul_i32 s44, s44, {G2_TILES*P_TILE}")
                a("s_add_u32 s44, s44, s42")
                a(f"s_add_u32 s44, s44, {i*4096}")
                for g in range(4):
                    r = 16 + 16 * dd + 4 * g
                    a(f"buffer_load_dwordx4 v[{r}:{r+3}], v59, s[{SRD_A}:{SRD_A+3}], s44 offen offset:{g*1024} sc1")
            for dd in range(2):
                a(f"s_waitcnt vmcnt({4 if dd == 0 else 0})")
                for r in range(16):
                    a(f"v_add_f32 v{c0+r}, v{c0+r}, v{16+16*dd+r}")
        for g in range(4):
            c = c0 + 4 * g
            a(f"""
            v_lshlrev_b32 v16, 16, v{8+2*g}
            v_and_b32 v17, 0xffff0000, v{8+2*g}
            v_lshlrev_b32 v18, 16, v{9+2*g}
            v_and_b32 v19, 0xffff0000, v{9+2*g}
            v_add_f32 v{c}, v{c}, v16
            v_add_f32 v{c+1}, v{c+1}, v17
            v_add_f32 v{c+2}, v{c+2}, v18
            v_add_f32 v{c+3}, v{c+3}, v19
            v_cvt_pk_bf16_f32 v{48+2*g}, v{c}, v{c+1}
            v_cvt_pk_bf16_f32 v{49+2*g}, v{c+2}, v{c+3}
            """)
        a("s_nop 1")
        a("v_permlane32_swap_b32 v48, v50")
        a("v_permlane32_swap_b32 v49, v51")
        a("v_permlane32_swap_b32 v52, v54")
        a("v_permlane32_swap_b32 v53, v55")
        a(f"s_mov_b32 s40, {boff}")
        a(f"buffer_store_dwordx4 v[48:51], v6, s[{SRD_C}:{SRD_C+3}], s40 offen")
        a(f"buffer_store_dwordx4 v[52:55], v6, s[{SRD_C}:{SRD_C+3}], s40 offen offset:32")
        a("s_nop 1")
        a.label(sk)
    if STAMP:
        a("s_waitcnt vmcnt(0)")
    flush_stamps(a, 9)
    a("s_endpgm")

    a.label("K_loader")
    a("s_cmp_ge_u32 s3, 10")
    a("s_cbranch_scc1 K_loadB")
    srd_off(a, SRD_A, S_WS, WS_XN, XN_BYTES)
    voff_ktype(a, 1152, 1, 2)
    a(f"""
    s_sub_u32 s59, s3, 8
    s_lshl_b32 s41, s{S_MT1}, 8
    s_lshl_b32 s56, s59, 7
    s_add_u32 s41, s41, s56
    s_mul_i32 s55, s41, 1152
    s_lshl_b32 s56, s59, 14
    s_barrier
    s_lshl_b32 s41, s{S_MT1}, 8
    s_add_u32 s41, s41, {C_LN*256}
    """)
    get_nonce(a)
    poll(a, 41, 0x3fffffff)

    def issueA1():
        a("s_lshl_b32 s57, s50, 7")
        a("s_add_u32 s57, s57, s55")
        a("s_add_u32 s58, s51, s56")
        issue_k(a, 16, 1152, "sc1")
    loader_loop(a, "G1lA", G1[1], 16, G1[0], 0, issueA1, S_NS)
    a("s_barrier")
    a("s_barrier")
    voff_ktype(a, 4096, 1, 2)
    a(f"""
    s_add_u32 s60, s{S_WS}, {WS_H}
    s_addc_u32 s61, s{S_WS+1}, 0
    s_mov_b32 s{SRD_A+2}, {PANEL}
    s_lshl_b32 s41, s{S_MT2}, 7
    s_lshl_b32 s56, s59, 6
    s_add_u32 s41, s41, s56
    s_lshl_b32 s55, s41, 12
    s_lshl_b32 s56, s59, 13
    s_cmp_lt_u32 s{S_SPLIT}, 2
    s_cbranch_scc1 G2lA_nopoll
    s_lshr_b32 s41, s{S_MT2}, 1
    s_mul_i32 s41, s41, 3
    s_add_u32 s41, s41, s{S_SPLIT}
    s_sub_u32 s41, s41, 2
    s_lshl_b32 s41, s41, 8
    s_add_u32 s41, s41, {C_H*256}
    s_cmp_eq_u32 s{S_SPLIT}, 2
    s_cselect_b32 s42, 0x3f, 0x1ff
    """)
    poll(a, 41, "s42")
    a.label("G2lA_nopoll")

    def issueA2():
        a(f"""
        s_add_u32 s62, s50, s{S_K0}
        s_lshr_b32 s63, s62, 5
        s_sub_u32 s64, s63, 2
        s_lshl_b32 s64, s64, 23
        s_add_u32 s{SRD_A}, s60, s64
        s_addc_u32 s{SRD_A+1}, s61, 0
        s_cmp_eq_u32 s63, 0
        s_cselect_b32 s{SRD_A}, s{S_WSRE}, s{SRD_A}
        s_cselect_b32 s{SRD_A+1}, s{S_WSRE+1}, s{SRD_A+1}
        s_cmp_eq_u32 s63, 1
        s_cselect_b32 s{SRD_A}, s{S_WSIM}, s{SRD_A}
        s_cselect_b32 s{SRD_A+1}, s{S_WSIM+1}, s{SRD_A+1}
        s_and_b32 s{SRD_A+1}, s{SRD_A+1}, 0xffff
        s_and_b32 s57, s62, 31
        s_lshl_b32 s57, s57, 7
        s_add_u32 s57, s57, s55
        s_add_u32 s58, s51, s56
        """)
        issue_k(a, 8, 4096, "sc1")
    loader_loop(a, "G2lA", G2[1], 8, G2[0], 0, issueA2, S_N2)
    a("s_endpgm")

    a.label("K_loadB")
    a("s_sub_u32 s59, s3, 10")
    a(f"s_cmp_ge_u32 s{S_NT1}, 6")
    a("s_cbranch_scc1 G1_loadBKN")
    a(f"""
    s_cmp_ge_u32 s{S_NT1}, 3
    s_cselect_b32 s60, s{S_WDIM}, s{S_WDRE}
    s_cselect_b32 s61, s{S_WDIM+1}, s{S_WDRE+1}
    s_cselect_b32 s41, 3, 0
    s_sub_u32 s41, s{S_NT1}, s41
    s_mul_i32 s41, s41, 192
    s_mul_i32 s56, s59, 96
    s_add_u32 s41, s41, s56
    s_mul_i32 s55, s41, 1152
    s_mul_i32 s56, s59, 12288
    """)
    srd(a, SRD_A, 60, WD_BYTES)
    voff_ktype(a, 1152, 1, 2)

    def issueBNK():
        a("s_lshl_b32 s57, s50, 7")
        a("s_add_u32 s57, s57, s55")
        a("s_add_u32 s58, s51, s56")
        issue_k(a, 12, 1152)
    loader_loop(a, "G1lBNK", G1[3], 12, G1[2], LDS_B, issueBNK, S_NS, mid=lambda: a("s_barrier"))
    a("s_branch G2_loadB")
    a.label("G1_loadBKN")
    srd(a, SRD_A, S_W1, W1_BYTES)
    voff_ntype(a, 9216, 1)
    a(f"""
    s_sub_u32 s41, s{S_NT1}, 6
    s_mul_i32 s55, s41, 384
    s_mul_i32 s56, s59, {32*9216}
    s_add_u32 s55, s55, s56
    s_mul_i32 s56, s59, 12288
    """)

    def issueBKN():
        a(f"s_mul_i32 s57, s50, {64*9216}")
        a("s_add_u32 s57, s57, s55")
        a("s_add_u32 s58, s51, s56")
        issue_n(a, 9216)
    loader_loop(a, "G1lBKN", G1[3], 12, G1[2], LDS_B, issueBKN, S_NS, mid=lambda: a("s_barrier"))
    a.label("G2_loadB")
    a("s_barrier")
    a("s_barrier")
    voff_ntype(a, 1152, 1)
    get_nonce(a)
    a(f"""
    s_add_u32 s60, s{S_WS}, {WS_AB}
    s_addc_u32 s61, s{S_WS+1}, 0
    s_mul_i32 s55, s{S_NT2}, 384
    s_mul_i32 s56, s59, {32*1152}
    s_add_u32 s55, s55, s56
    s_mul_i32 s56, s59, 12288
    s_cmp_ge_u32 s{S_SPLIT}, 2
    s_cbranch_scc1 G2lB_p2
    s_lshl_b32 s41, s{S_NT2}, 8
    s_add_u32 s41, s41, {C_AB*256}
    """)
    poll(a, 41, 0xff)
    a.label("G2lB_p2")
    a(f"""
    s_cmp_eq_u32 s{S_SPLIT}, 0
    s_cbranch_scc1 G2lB_nopoll
    s_cmp_ge_u32 s{S_SPLIT}, 3
    s_cbranch_scc1 G2lB_nopoll
    s_lshl_b32 s41, s{S_NT2}, 8
    s_add_u32 s41, s41, {(C_AB+3)*256}
    """)
    poll(a, 41, 0xff)
    a.label("G2lB_nopoll")

    def issueB2():
        a(f"""
        s_add_u32 s62, s50, s{S_K0}
        s_sub_u32 s63, s62, 64
        s_cmp_lt_u32 s62, 64
        s_cselect_b32 s63, s62, s63
        s_cselect_b32 s{SRD_A}, s60, s{S_W2}
        s_cselect_b32 s{SRD_A+1}, s61, s{S_W2+1}
        s_mov_b32 s{SRD_A+2}, {W2_BYTES}
        s_cselect_b32 s{SRD_A+2}, {AB_BYTES}, s{SRD_A+2}
        s_and_b32 s{SRD_A+1}, s{SRD_A+1}, 0xffff
        s_mul_i32 s57, s63, {64*1152}
        s_add_u32 s57, s57, s55
        s_add_u32 s58, s51, s56
        """)
        issue_n(a, 1152, "sc1")
    loader_loop(a, "G2lB", G2[3], 12, G2[2], LDS_B, issueB2, S_N2)
    a.label("K_done")
    a("s_endpgm")
    return name


def main():
    a = Asm()
    name = gen_kernel(a)
    head = f"; generated by gen2.py\n; @launch grid=({NWG},1,1) block=(768,1,1) lds=163840\n"
    head += '.amdgcn_target "amdgcn-amd-amdhsa--gfx950"\n.text\n'
    tail = f""".section .rodata,"a"
.p2align 6
.amdhsa_kernel {name}
  .amdhsa_next_free_vgpr 160
  .amdhsa_next_free_sgpr 102
  .amdhsa_accum_offset 160
  .amdhsa_group_segment_fixed_size 0
  .amdhsa_kernarg_size 88
  .amdhsa_user_sgpr_count 2
  .amdhsa_user_sgpr_kernarg_segment_ptr 1
  .amdhsa_system_sgpr_workgroup_id_x 1
  .amdhsa_float_denorm_mode_32 3
  .amdhsa_float_denorm_mode_16_64 3
.end_amdhsa_kernel
"""
    open(OUT, "w").write(head + a.text() + tail)


if __name__ == "__main__":
    main()
```

```python
import sys, os
NOLOAD = int(os.environ.get("NOLOAD", "0"))
NOCOMP = int(os.environ.get("NOCOMP", "0"))
STAMP = int(os.environ.get("STAMP", "0"))
WS_STAMP = 0x8000000

NAME = "parallel_sum__spectral_fnet__dense_activation_relu__prompt"
OUT = os.environ.get("OUT", "cdna_kernels/%s.s" % NAME)

WS_XN = 0x0
WS_AB = 0x400000
WS_H = 0x1000000
WS_P = 0x4000000
XN_BYTES = 2048 * 576 * 2
AB_BYTES = 4096 * 576 * 2
PANEL = 2048 * 2048 * 2
W1_BYTES = 576 * 4608 * 2
W2_BYTES = 4608 * 576 * 2
WD_BYTES = 576 * 576 * 2
NSPLIT = 5
G2_TILES = 48
NWG = 240
P_TILE = 128 * 192 * 4
P_BYTES = NWG * P_TILE

C_LN, C_AB, C_H, C_P = 0, 8, 16, 40

S_X, S_WSRE, S_WSIM, S_WDRE, S_WDIM, S_W1, S_W2, S_OUT, S_DBG, S_WS = 4, 6, 8, 10, 12, 16, 18, 20, 22, 24
S_SPLIT, S_TILE, S_MT2, S_NT2, S_K0, S_N2 = 26, 27, 32, 39, 66, 67
SRD_DBG = 28
S_L, S_NT1, S_MT1, S_NS, S_WM, S_WN = 33, 34, 35, 36, 37, 38
SRD_A, SRD_B, SRD_C = 68, 72, 76
SRD_F = 92


class Asm:
    def __init__(self):
        self.lines = []
        self.uid = 0

    def __call__(self, s=""):
        for l in s.split("\n"):
            l = l.strip()
            if NOLOAD and l.endswith(" lds"):
                continue
            if NOCOMP and (l.startswith("v_mfma") or l.startswith("ds_read_b64_tr") or (l.startswith("ds_read_b128") and "offset" in l)):
                continue
            if l:
                self.lines.append("    " + l if not l.endswith(":") else l)

    def label(self, s):
        self.lines.append(s + ":")

    def new(self, p):
        self.uid += 1
        return f"{p}_{self.uid}"

    def text(self):
        return "\n".join(self.lines) + "\n"


def srd(a, d, lo, size):
    a(f"s_mov_b32 s{d}, s{lo}")
    a(f"s_and_b32 s{d+1}, s{lo+1}, 0xffff")
    a(f"s_mov_b32 s{d+2}, {size}")
    a(f"s_mov_b32 s{d+3}, 0x00020000")


def srd_off(a, d, lo, off, size):
    a(f"s_add_u32 s{d}, s{lo}, {off}")
    a(f"s_addc_u32 s{d+1}, s{lo+1}, 0")
    a(f"s_and_b32 s{d+1}, s{d+1}, 0xffff")
    a(f"s_mov_b32 s{d+2}, {size}")
    a(f"s_mov_b32 s{d+3}, 0x00020000")


def stamp(a, i, wait=False):
    if STAMP:
        a("s_memrealtime s[98:99]")
        a("s_waitcnt lgkmcnt(0)")
        a(f"s_mov_b32 s{80+i}, s98")


def flush_stamps(a, n):
    if not STAMP:
        return
    lbl = a.new("ST_skip")
    a("s_cmp_lg_u32 s3, 0")
    a(f"s_cbranch_scc1 {lbl}")
    stamp(a, n - 1)
    srd_off(a, SRD_A, S_WS, WS_STAMP, 0x10000)
    a("s_lshl_b32 s100, s2, 6")
    a("v_mov_b32 v1, 0")
    a("s_waitcnt lgkmcnt(0)")
    for i in range(n):
        a(f"v_mov_b32 v2, s{80+i}")
        a(f"buffer_store_dword v2, v1, s[{SRD_A}:{SRD_A+3}], s100 offen offset:{4*i}")
    a.label(lbl)


WS_F = 0x3000000
F_BYTES = 96 * 256
S_NLO, S_NHI = 14, 15
POLL_SLEEP = int(os.environ.get("POLL_SLEEP", "4"))
TOUCH = os.environ.get("TOUCH", "nt")


def get_nonce(a):
    l = a.new("nonce")
    d = a.new("nonced")
    a("v_mov_b32 v63, 0")
    a("s_mov_b32 s101, 0")
    a.label(l)
    a("s_add_u32 s101, s101, 1")
    a("s_cmp_ge_u32 s101, 0x40000")
    a(f"s_cbranch_scc1 {d}")
    a(f"buffer_load_dwordx2 v[60:61], v63, s[{SRD_DBG}:{SRD_DBG+3}], 0 offen sc1")
    a("s_waitcnt vmcnt(0)")
    a(f"v_readfirstlane_b32 s{S_NLO}, v60")
    a(f"v_readfirstlane_b32 s{S_NHI}, v61")
    a(f"s_or_b32 s40, s{S_NLO}, s{S_NHI}")
    a("s_cmp_lg_u32 s40, 0")
    a(f"s_cbranch_scc1 {d}")
    a("s_sleep 2")
    a(f"s_branch {l}")
    a.label(d)


def signal(a, s_off):
    a(f"""
    v_mov_b32 v60, s{S_NLO}
    v_mov_b32 v61, s{S_NHI}
    v_mov_b32 v63, 0
    s_mov_b64 exec, 1
    buffer_store_dwordx2 v[60:61], v63, s[{SRD_F}:{SRD_F+3}], s{s_off} offen sc1
    s_mov_b64 exec, -1
    """)


def poll(a, s_off, mask):
    l = a.new("poll")
    d = a.new("polld")
    a("v_and_b32 v63, 31, v0")
    a("v_lshlrev_b32 v63, 3, v63")
    a("s_mov_b32 s101, 0")
    a.label(l)
    a("s_add_u32 s101, s101, 1")
    a("s_cmp_ge_u32 s101, 0x40000")
    a(f"s_cbranch_scc1 {d}")
    a(f"buffer_load_dwordx2 v[60:61], v63, s[{SRD_F}:{SRD_F+3}], s{s_off} offen sc1")
    a("s_waitcnt vmcnt(0)")
    a(f"v_cmp_eq_u32 s[62:63], s{S_NLO}, v60")
    a(f"v_cmp_eq_u32 vcc, s{S_NHI}, v61")
    a("s_nop 1")
    a("s_and_b32 s40, s62, vcc_lo")
    a(f"s_and_b32 s40, s40, {mask}")
    a(f"s_cmp_eq_u32 s40, {mask}")
    a(f"s_cbranch_scc1 {d}")
    a(f"s_sleep {POLL_SLEEP}")
    a(f"s_branch {l}")
    a.label(d)


def ln_phase(a):
    a(f"""
    v_lshrrev_b32 v1, 4, v0
    v_mul_u32_u24 v2, 30, v1
    v_add_u32 v2, s{S_NT1}, v2
    s_lshl_b32 s40, s{S_MT1}, 8
    v_add_u32 v3, s40, v2
    v_mul_u32_u24 v3, 1152, v3
    v_and_b32 v4, 15, v0
    v_lshl_add_u32 v3, v4, 3, v3
    v_mov_b32 v4, 0x7f000000
    v_cmp_gt_u32 vcc, 256, v2
    s_nop 1
    v_cndmask_b32 v1, v4, v3, vcc
    """)
    srd(a, SRD_A, S_X, XN_BYTES)
    srd_off(a, SRD_B, S_WS, WS_XN, XN_BYTES)
    for p in range(9):
        a(f"buffer_load_dwordx2 v[{4+2*p}:{5+2*p}], v1, s[{SRD_A}:{SRD_A+3}], 0 offen offset:{p*128}")
    X = 24
    for p in range(9):
        a(f"s_waitcnt vmcnt({8-p})")
        for j in range(2):
            src = 4 + 2 * p + j
            a(f"v_lshlrev_b32 v{X+4*p+2*j}, 16, v{src}")
            a(f"v_and_b32 v{X+4*p+2*j+1}, 0xffff0000, v{src}")
    a(f"v_add_f32 v60, v{X}, v{X+1}")
    a(f"v_add_f32 v61, v{X+2}, v{X+3}")
    for i in range(4, 36, 2):
        a(f"v_add_f32 v60, v60, v{X+i}")
        a(f"v_add_f32 v61, v61, v{X+i+1}")
    a("v_add_f32 v60, v60, v61")

    def allreduce(r, t):
        for sh in (8, 4, 2, 1):
            a("s_nop 1")
            a(f"v_add_f32_dpp v{t}, v{r}, v{r} row_ror:{sh} row_mask:0xf bank_mask:0xf")
            a(f"v_mov_b32 v{r}, v{t}")
    allreduce(60, 61)
    a("v_mul_f32 v60, 0x3ae38e39, v60")
    a(f"v_sub_f32 v62, v{X}, v60")
    a("v_mul_f32 v63, v62, v62")
    a(f"v_sub_f32 v62, v{X+1}, v60")
    a("v_mul_f32 v64, v62, v62")
    for i in range(2, 36, 2):
        a(f"v_sub_f32 v62, v{X+i}, v60")
        a(f"v_sub_f32 v65, v{X+i+1}, v60")
        a("v_fmac_f32 v63, v62, v62")
        a("v_fmac_f32 v64, v65, v65")
    a("v_add_f32 v63, v63, v64")
    allreduce(63, 61)
    a("""
    v_mul_f32 v63, 0x3ae38e39, v63
    v_cvt_pk_bf16_f32 v61, v60, v63
    v_lshlrev_b32 v60, 16, v61
    v_and_b32 v63, 0xffff0000, v61
    v_add_f32 v63, 0x3727c5ac, v63
    v_cvt_pk_bf16_f32 v63, v63, v63
    v_and_b32 v63, 0xffff0000, v63
    v_sqrt_f32 v63, v63
    s_nop 0
    v_cvt_pk_bf16_f32 v63, v63, v63
    v_and_b32 v63, 0xffff0000, v63
    v_rcp_f32 v64, v63
    s_nop 0
    """)
    for p in range(9):
        for j in range(2):
            e0 = X + 4 * p + 2 * j
            e1 = e0 + 1
            a(f"""
            v_sub_f32 v{e0}, v{e0}, v60
            v_sub_f32 v{e1}, v{e1}, v60
            v_cvt_pk_bf16_f32 v66, v{e0}, v{e1}
            v_lshlrev_b32 v{e0}, 16, v66
            v_and_b32 v{e1}, 0xffff0000, v66
            v_mul_f32 v66, v{e0}, v64
            v_mul_f32 v67, v{e1}, v64
            v_fma_f32 v68, -v66, v63, v{e0}
            v_fma_f32 v69, -v67, v63, v{e1}
            v_fmac_f32 v66, v68, v64
            v_fmac_f32 v67, v69, v64
            v_cvt_pk_bf16_f32 v{4+2*p+j}, v66, v67
            """)
        a(f"buffer_store_dwordx2 v[{4+2*p}:{5+2*p}], v1, s[{SRD_B}:{SRD_B+3}], 0 offen offset:{p*128} sc1")
    a("s_waitcnt vmcnt(0)")


V_AB, V_AA, V_BB, V_BA = 1, 5, 9, 13
FR0, FR1, ACC = 20, 40, 64
LDS_B = 65536


def frag(setb, which):
    return setb + {"A0": 0, "A1": 4, "B0": 8, "B1": 12, "B2": 16}[which]


def reads_for(btype, setb, j):
    r = []

    def aread(mi):
        d = frag(setb, f"A{mi}")
        return (f"A{mi}", f"ds_read_b128 v[{d}:{d+3}], v{V_AA+j} offset:{4096*mi}")

    def bread(ni):
        d = frag(setb, f"B{ni}")
        if btype == "NK":
            return [(f"B{ni}", f"ds_read_b128 v[{d}:{d+3}], v{V_BA+j} offset:{4096*ni}")]
        return [(f"B{ni}", f"ds_read_b64_tr_b16 v[{d}:{d+1}], v{V_BA+ni} offset:{(16*j)*384}"),
                (f"B{ni}", f"ds_read_b64_tr_b16 v[{d+2}:{d+3}], v{V_BA+ni} offset:{(16*j+4)*384}")]
    r.append(aread(0))
    r += bread(0)
    r += bread(1)
    r += bread(2)
    r.append(aread(1))
    return r


class LgkmTracker:
    def __init__(self, a):
        self.a = a
        self.out = []

    def issue(self, tag, instr):
        self.a(instr)
        self.out.append(tag)

    def need(self, tags):
        last = -1
        for i, t in enumerate(self.out):
            if t in tags:
                last = i
        if last < 0:
            return
        n = len(self.out) - 1 - last
        assert n <= 15
        self.a(f"s_waitcnt lgkmcnt({n})")
        self.out = self.out[last + 1:]

    def drain(self):
        self.a("s_waitcnt lgkmcnt(0)")
        self.out = []


def substep(a, trk, cur, nxt_reads, curtag, nxttag):
    order = [(0, 0), (0, 1), (0, 2), (1, 0), (1, 1), (1, 2)]
    nr = len(nxt_reads)
    per = [2, 2, 2, 2, 0, 0] if nr == 8 else [2, 1, 1, 1, 0, 0]
    ri = 0
    for idx, (mi, ni) in enumerate(order):
        trk.need([curtag + f"A{mi}", curtag + f"B{ni}"])
        A = frag(cur, f"A{mi}")
        B = frag(cur, f"B{ni}")
        c = ACC + 16 * (3 * mi + ni)
        a(f"v_mfma_f32_32x32x16_bf16 v[{c}:{c+15}], v[{B}:{B+3}], v[{A}:{A+3}], v[{c}:{c+15}]")
        for _ in range(per[idx]):
            t, ins = nxt_reads[ri]
            trk.issue(nxttag + t, ins)
            ri += 1
    assert ri == nr


def consumer_addr_setup(a, btype):
    a(f"""
    v_and_b32 v60, 63, v0
    v_and_b32 v61, 31, v60
    v_lshrrev_b32 v62, 5, v60
    v_lshrrev_b32 v63, 1, v60
    v_and_b32 v63, 7, v63
    s_lshl_b32 s40, s{S_WM}, 6
    v_add_u32 v17, s40, v61
    v_lshlrev_b32 v17, 7, v17
    """)
    for j in range(4):
        a(f"v_add_u32 v18, {2*j}, v62")
        a("v_xor_b32 v18, v18, v63")
        a(f"v_lshl_add_u32 v{V_AB+j}, v18, 4, v17")
    if btype == "NK":
        a(f"""
        s_mul_i32 s40, s{S_WN}, 96
        v_add_u32 v17, s40, v61
        v_lshlrev_b32 v17, 7, v17
        v_add_u32 v17, {LDS_B}, v17
        """)
        for j in range(4):
            a(f"v_add_u32 v18, {2*j}, v62")
            a("v_xor_b32 v18, v18, v63")
            a(f"v_lshl_add_u32 v{V_BB+j}, v18, 4, v17")
    else:
        a(f"""
        v_and_b32 v17, 15, v60
        v_lshrrev_b32 v18, 2, v17
        v_lshl_add_u32 v18, v62, 3, v18
        v_mul_u32_u24 v18, 384, v18
        v_add_u32 v18, {LDS_B}, v18
        v_bfe_u32 v19, v60, 4, 1
        v_lshlrev_b32 v19, 5, v19
        v_add_u32 v18, v18, v19
        v_and_b32 v19, 3, v17
        v_lshlrev_b32 v19, 3, v19
        v_add_u32 v18, v18, v19
        v_lshrrev_b32 v19, 3, v17
        s_mul_i32 s40, s{S_WN}, 3
        """)
        for ni in range(3):
            a(f"s_add_u32 s41, s40, {ni}")
            a("v_xor_b32 v17, s41, v19")
            a(f"v_lshl_add_u32 v{V_BB+ni}, v17, 6, v18")


def consumer_loop(a, pfx, btype, SA, NSA, SB, NSB, s_nsteps, st):
    nb = 4 if btype == "NK" else 3
    for i in range(96):
        a(f"v_mov_b32 v{ACC+i}, 0")
    a("s_mov_b32 s44, 0")
    a("s_mov_b32 s45, 0")
    a("s_mov_b32 s46, 0")
    for j in range(4):
        a(f"v_mov_b32 v{V_AA+j}, v{V_AB+j}")
    for j in range(nb):
        a(f"v_mov_b32 v{V_BA+j}, v{V_BB+j}")
    a("s_barrier")
    stamp(a, st, True)
    trk = LgkmTracker(a)
    for t, ins in reads_for(btype, FR0, 0):
        trk.issue("s0" + t, ins)
    a.label(f"{pfx}_loop")
    entry_state = list(trk.out)
    substep(a, trk, FR0, reads_for(btype, FR1, 1), "s0", "s1")
    substep(a, trk, FR1, reads_for(btype, FR0, 2), "s1", "s2")
    substep(a, trk, FR0, reads_for(btype, FR1, 3), "s2", "s3")
    a(f"""
    s_add_u32 s44, s44, {SA}
    s_cmp_ge_u32 s44, {SA*NSA}
    s_cselect_b32 s44, 0, s44
    s_add_u32 s45, s45, {SB}
    s_cmp_ge_u32 s45, {SB*NSB}
    s_cselect_b32 s45, 0, s45
    """)
    trk.drain()
    for j in range(4):
        a(f"v_add_u32 v{V_AA+j}, s44, v{V_AB+j}")
    for j in range(nb):
        a(f"v_add_u32 v{V_BA+j}, s45, v{V_BB+j}")
    a("s_barrier")
    substep(a, trk, FR1, reads_for(btype, FR0, 0), "s3", "s0")
    assert trk.out == entry_state
    a(f"""
    s_add_u32 s46, s46, 1
    s_cmp_lt_u32 s46, s{s_nsteps}
    s_cbranch_scc1 {pfx}_loop
    s_waitcnt lgkmcnt(0)
    s_nop 15
    s_nop 3
    """)


def loader_loop(a, pfx, NS, L, slot_bytes, ring_base, issue_fn, s_nsteps, mid=None):
    a("s_mov_b32 s50, 0")
    a(f"s_mov_b32 s51, {ring_base}")
    for j in range(NS):
        issue_fn()
        a("s_add_u32 s50, s50, 1")
        a(f"s_add_u32 s51, s51, {slot_bytes}")
    a(f"s_mov_b32 s51, {ring_base}")
    if mid:
        mid()
    a(f"s_waitcnt vmcnt({(NS-1)*L})")
    a("s_barrier")
    a("s_mov_b32 s52, 0")
    a.label(f"{pfx}_loop")
    a(f"s_sub_i32 s53, s{s_nsteps}, s52")
    a("s_sub_i32 s53, s53, 2")
    for c in range(NS - 2, 0, -1):
        a(f"s_cmp_ge_i32 s53, {c}")
        a(f"s_cbranch_scc1 {pfx}_w{c}")
    a("s_waitcnt vmcnt(0)")
    a(f"s_branch {pfx}_bar")
    for c in range(1, NS - 1):
        a.label(f"{pfx}_w{c}")
        a(f"s_waitcnt vmcnt({c*L})")
        if c != NS - 2:
            a(f"s_branch {pfx}_bar")
    a.label(f"{pfx}_bar")
    a("s_barrier")
    a(f"s_cmp_ge_u32 s50, s{s_nsteps}")
    a(f"s_cbranch_scc1 {pfx}_skip")
    issue_fn()
    a("s_add_u32 s50, s50, 1")
    a(f"s_add_u32 s51, s51, {slot_bytes}")
    a(f"s_cmp_ge_u32 s51, {ring_base + NS*slot_bytes}")
    a(f"s_cselect_b32 s51, {ring_base}, s51")
    a.label(f"{pfx}_skip")
    a(f"""
    s_add_u32 s52, s52, 1
    s_cmp_lt_u32 s52, s{s_nsteps}
    s_cbranch_scc1 {pfx}_loop
    """)


def voff_ktype(a, stride, ve, vo):
    a(f"""
    v_and_b32 v60, 63, v0
    v_lshrrev_b32 v61, 3, v60
    v_mul_u32_u24 v61, {stride}, v61
    v_and_b32 v62, 7, v60
    v_lshrrev_b32 v63, 4, v60
    v_xor_b32 v62, v62, v63
    v_lshl_add_u32 v{ve}, v62, 4, v61
    v_xor_b32 v62, 4, v62
    v_lshl_add_u32 v{vo}, v62, 4, v61
    """)


def voff_ntype(a, stride, vb):
    for p in range(192):
        assert (p * 2731) >> 16 == p // 24
    a("v_and_b32 v60, 63, v0")
    for b in range(3):
        a(f"""
        v_add_u32 v61, {64*b}, v60
        v_mul_u32_u24 v62, 2731, v61
        v_lshrrev_b32 v62, 16, v62
        v_mul_u32_u24 v63, 24, v62
        v_sub_u32 v61, v61, v63
        v_and_b32 v63, 2, v62
        v_lshlrev_b32 v63, 1, v63
        v_xor_b32 v61, v61, v63
        v_mul_u32_u24 v62, {stride}, v62
        v_lshl_add_u32 v{vb+b}, v61, 4, v62
        """)


def issue_k(a, nq, stride, flags=""):
    for q in range(nq):
        a(f"s_add_u32 m0, s58, {q*1024}")
        a(f"s_add_u32 s54, s57, {q*8*stride}")
        a(f"buffer_load_dwordx4 v{2 if q & 1 else 1}, s[{SRD_A}:{SRD_A+3}], s54 offen {flags} lds")


def issue_n(a, stride, flags=""):
    for aa in range(4):
        for b in range(3):
            a(f"s_add_u32 m0, s58, {(3*aa+b)*1024}")
            a(f"s_add_u32 s54, s57, {aa*8*stride}")
            a(f"buffer_load_dwordx4 v{1+b}, s[{SRD_A}:{SRD_A+3}], s54 offen {flags} lds")


def gen_kernel(a):
    name = NAME + "_kernel"
    G1 = (32768, 2, 24576, 4)
    G2 = (16384, 4, 24576, 4)
    RS = 400
    a.lines.append(f".globl {name}")
    a.lines.append(".p2align 8")
    a.lines.append(f".type {name},@function")
    a.label(name)
    a(f"""
    s_cmp_ge_u32 s2, {NWG}
    s_cbranch_scc1 K_done
    """)
    stamp(a, 0)
    a(f"""
    s_load_dwordx8 s[4:11], s[0:1], 0
    s_load_dwordx2 s[12:13], s[0:1], 32
    s_load_dwordx4 s[16:19], s[0:1], 48
    s_load_dwordx4 s[20:23], s[0:1], 64
    s_load_dwordx2 s[24:25], s[0:1], 80
    v_lshrrev_b32 v1, 6, v0
    s_and_b32 s33, s2, 7
    s_mul_i32 s33, s33, 30
    s_lshr_b32 s34, s2, 3
    v_readfirstlane_b32 s3, v1
    s_add_u32 s{S_L}, s33, s34
    s_lshr_b32 s{S_NT1}, s{S_L}, 3
    s_and_b32 s{S_MT1}, s{S_L}, 7
    s_mul_i32 s{S_SPLIT}, s{S_L}, 1366
    s_lshr_b32 s{S_SPLIT}, s{S_SPLIT}, 16
    s_mul_i32 s40, s{S_SPLIT}, 48
    s_sub_u32 s{S_TILE}, s{S_L}, s40
    s_mul_i32 s{S_MT2}, s{S_TILE}, 21846
    s_lshr_b32 s{S_MT2}, s{S_MT2}, 16
    s_mul_i32 s40, s{S_MT2}, 3
    s_sub_u32 s{S_NT2}, s{S_TILE}, s40
    s_mul_i32 s{S_K0}, s{S_SPLIT}, 27
    s_add_u32 s{S_K0}, s{S_K0}, 1
    s_mov_b32 s{S_N2}, 27
    s_cmp_eq_u32 s{S_SPLIT}, 0
    s_cselect_b32 s{S_K0}, 0, s{S_K0}
    s_cselect_b32 s{S_N2}, 28, s{S_N2}
    s_mov_b32 s{S_NS}, 9
    s_waitcnt lgkmcnt(0)
    """)
    for L in range(240):
        assert (L * 1366) >> 16 == L // 48
    for r in range(48):
        assert (r * 21846) >> 16 == r // 3
    srd(a, SRD_DBG, S_DBG, 256)
    srd_off(a, SRD_F, S_WS, WS_F, F_BYTES)
    a(f"""
    s_or_b32 s40, s2, s3
    s_cmp_lg_u32 s40, 0
    s_cbranch_scc1 K_nopub
    s_memrealtime s[40:41]
    s_waitcnt lgkmcnt(0)
    s_or_b32 s40, s40, 1
    v_mov_b32 v60, s40
    v_mov_b32 v61, s41
    v_mov_b32 v63, 0
    s_mov_b64 exec, 1
    buffer_store_dwordx2 v[60:61], v63, s[{SRD_DBG}:{SRD_DBG+3}], 0 offen sc1
    s_mov_b64 exec, -1
    """)
    a.label("K_nopub")
    a("s_cmp_ge_u32 s3, 8")
    a("s_cbranch_scc1 K_loader")
    a("s_cmp_ge_u32 s3, 3")
    a("s_cbranch_scc1 K_lnskip")
    ln_phase(a)
    if TOUCH:
        fl = "" if TOUCH == "plain" else TOUCH
        a("s_branch K_lnskip2")
        a.label("K_lnskip")
        srd(a, SRD_A, S_WSRE, PANEL)
        srd(a, SRD_B, S_WSIM, PANEL)
        srd(a, SRD_C, S_W2, W2_BYTES)
        a(f"""
        v_subrev_u32 v1, 192, v0
        s_mul_i32 s40, s{S_L}, 274
        v_add_u32 v2, s40, v1
        v_lshlrev_b32 v2, 7, v2
        s_mul_i32 s40, s{S_L}, 173
        v_add_u32 v3, s40, v1
        v_lshlrev_b32 v3, 7, v3
        v_mov_b32 v4, 0x7f000000
        v_cmp_gt_u32 vcc, 274, v1
        s_nop 1
        v_cndmask_b32 v2, v4, v2, vcc
        v_cmp_gt_u32 vcc, 173, v1
        s_nop 1
        v_cndmask_b32 v3, v4, v3, vcc
        buffer_load_dword v58, v2, s[{SRD_A}:{SRD_A+3}], 0 offen {fl}
        buffer_load_dword v58, v2, s[{SRD_B}:{SRD_B+3}], 0 offen {fl}
        buffer_load_dword v58, v3, s[{SRD_C}:{SRD_C+3}], 0 offen {fl}
        """)
        a.label("K_lnskip2")
    else:
        a.label("K_lnskip")
    a("s_barrier")
    a("s_cmp_lg_u32 s3, 0")
    a("s_cbranch_scc1 K_lnsig")
    get_nonce(a)
    a(f"s_lshl_b32 s41, s{S_MT1}, 8")
    a(f"s_lshl_b32 s40, s{S_NT1}, 3")
    a("s_add_u32 s41, s41, s40")
    a(f"s_add_u32 s41, s41, {C_LN*256}")
    signal(a, 41)
    a.label("K_lnsig")
    stamp(a, 1)
    a(f"s_lshr_b32 s{S_WM}, s3, 1")
    a(f"s_and_b32 s{S_WN}, s3, 1")
    a(f"s_cmp_ge_u32 s{S_NT1}, 6")
    a("s_cbranch_scc1 G1_consKN")
    consumer_addr_setup(a, "NK")
    consumer_loop(a, "G1cNK", "NK", *G1, S_NS, 2)
    a("s_branch G1_epi")
    a.label("G1_consKN")
    consumer_addr_setup(a, "KN")
    consumer_loop(a, "G1cKN", "KN", *G1, S_NS, 2)
    a.label("G1_epi")
    a("s_waitcnt vmcnt(0)")
    stamp(a, 3)
    a(f"""
    s_mov_b32 s42, 0
    s_cmp_ge_u32 s{S_NT1}, 3
    s_cselect_b32 s42, 0x80008000, s42
    s_cmp_ge_u32 s{S_NT1}, 6
    s_cselect_b32 s42, 0, s42
    s_mov_b32 s43, 0xff800000
    s_cselect_b32 s43, 0, s43
    v_and_b32 v60, 63, v0
    v_and_b32 v61, 31, v60
    v_lshrrev_b32 v62, 5, v60
    s_lshl_b32 s40, s{S_WM}, 6
    v_add_u32 v61, s40, v61
    v_mul_u32_u24 v61, {RS}, v61
    s_mul_i32 s40, s{S_WN}, 192
    v_lshl_add_u32 v61, v62, 3, v61
    v_add_u32 v61, s40, v61
    """)
    for mi in range(2):
        for ni in range(3):
            for g in range(4):
                c = ACC + 16 * (3 * mi + ni) + 4 * g
                t = 20 + 2 * ((ni * 4 + g) & 7)
                for r in range(4):
                    a(f"v_max_f32 v{c+r}, s43, v{c+r}")
                a(f"v_cvt_pk_bf16_f32 v{t}, v{c}, v{c+1}")
                a(f"v_cvt_pk_bf16_f32 v{t+1}, v{c+2}, v{c+3}")
                a(f"v_xor_b32 v{t}, s42, v{t}")
                a(f"v_xor_b32 v{t+1}, s42, v{t+1}")
                a(f"ds_write_b64 v61, v[{t}:{t+1}] offset:{mi*32*RS + ni*64 + g*16}")
    a("s_waitcnt lgkmcnt(0)")
    a("s_barrier")
    srd_off(a, SRD_A, S_WS, WS_AB, AB_BYTES)
    srd_off(a, SRD_B, S_WS, WS_H, 3 * PANEL)
    a(f"""
    s_lshl_b32 s49, s{S_MT1}, 8
    s_cmp_ge_u32 s{S_NT1}, 6
    s_cbranch_scc1 G1_epiH
    s_cmp_ge_u32 s{S_NT1}, 3
    s_cselect_b32 s41, 2048, 0
    s_cselect_b32 s40, 3, 0
    s_add_u32 s49, s49, s41
    s_sub_u32 s40, s{S_NT1}, s40
    s_mul_i32 s48, s40, 192
    s_mov_b32 s47, 1152
    s_lshl_b32 s41, s{S_NT1}, 8
    s_lshl_b32 s40, s{S_MT1}, 3
    s_add_u32 s41, s41, s40
    s_add_u32 s41, s41, {C_AB*256}
    s_branch G1_epiS
    """)
    a.label("G1_epiH")
    a(f"""
    s_mov_b32 s{SRD_A}, s{SRD_B}
    s_mov_b32 s{SRD_A+1}, s{SRD_B+1}
    s_mov_b32 s{SRD_A+2}, s{SRD_B+2}
    s_sub_u32 s40, s{S_NT1}, 6
    s_mul_i32 s48, s40, 192
    s_mov_b32 s47, 4096
    s_mul_i32 s41, s{S_MT1}, 3
    s_mov_b32 s46, s40
    s_cmp_ge_u32 s40, 6
    s_addc_u32 s41, s41, 0
    s_cmp_ge_u32 s40, 6
    s_cselect_b32 s45, 6, 0
    s_cmp_ge_u32 s40, 15
    s_addc_u32 s41, s41, 0
    s_cmp_ge_u32 s40, 15
    s_cselect_b32 s45, 15, s45
    s_sub_u32 s46, s46, s45
    s_lshl_b32 s41, s41, 8
    s_lshl_b32 s46, s46, 3
    s_add_u32 s41, s41, s46
    s_add_u32 s41, s41, {C_H*256}
    """)
    a.label("G1_epiS")
    for it in range(12):
        t = 20 + 4 * (it % 8)
        a(f"""
        v_add_u32 v60, {512*it}, v0
        v_mul_u32_u24 v61, 2731, v60
        v_lshrrev_b32 v61, 16, v61
        v_mul_u32_u24 v62, 24, v61
        v_sub_u32 v62, v60, v62
        v_mul_u32_u24 v63, {RS}, v61
        v_lshl_add_u32 v63, v62, 4, v63
        ds_read_b128 v[{t}:{t+3}], v63
        v_lshl_add_u32 v62, v62, 3, s48
        v_add_u32 v61, s49, v61
        v_mul_lo_u32 v61, v61, s47
        v_lshrrev_b32 v63, 11, v62
        v_lshlrev_b32 v63, 23, v63
        v_and_b32 v62, 2047, v62
        v_add_u32 v61, v61, v63
        v_lshl_add_u32 v{52+(it%8)}, v62, 1, v61
        """)
        if it % 4 == 3:
            for jt in range(it - 3, it + 1):
                t = 20 + 4 * (jt % 8)
                a(f"s_waitcnt lgkmcnt({it-jt})")
                a(f"buffer_store_dwordx4 v[{t}:{t+3}], v{52+(jt%8)}, s[{SRD_A}:{SRD_A+3}], 0 offen sc1")
    a("s_waitcnt vmcnt(0)")
    a("s_barrier")
    a("s_cmp_ge_u32 s3, 4")
    a("s_cbranch_scc1 K_done")
    a("s_cmp_lg_u32 s3, 0")
    a("s_cbranch_scc1 K_g1sig")
    signal(a, 41)
    a.label("K_g1sig")
    stamp(a, 4)
    consumer_addr_setup(a, "KN")
    consumer_loop(a, "G2c", "KN", *G2, S_N2, 5)
    stamp(a, 6)
    srd_off(a, SRD_A, S_WS, WS_P, P_BYTES)
    a(f"""
    s_mul_i32 s42, s{S_L}, {P_TILE}
    s_mul_i32 s41, s3, 24576
    s_add_u32 s42, s42, s41
    v_and_b32 v60, 63, v0
    v_lshlrev_b32 v60, 4, v60
    s_add_u32 s43, s3, 5
    s_sub_u32 s43, s43, s{S_SPLIT}
    """)
    for i in range(6):
        sk = a.new("pst")
        a(f"s_add_u32 s40, s43, {i}")
        a("s_cmp_eq_u32 s40, 5")
        a(f"s_cbranch_scc1 {sk}")
        a("s_cmp_eq_u32 s40, 10")
        a(f"s_cbranch_scc1 {sk}")
        a(f"s_add_u32 s41, s42, {i*4096}")
        for g in range(4):
            c = ACC + 16 * i + 4 * g
            a(f"buffer_store_dwordx4 v[{c}:{c+3}], v60, s[{SRD_A}:{SRD_A+3}], s41 offen offset:{g*1024} sc1")
        a.label(sk)
    a("s_waitcnt vmcnt(0)")
    a("s_barrier")
    a(f"""
    s_lshl_b32 s41, s{S_TILE}, 8
    s_add_u32 s41, s41, {C_P*256}
    s_lshl_b32 s47, s{S_SPLIT}, 3
    s_add_u32 s47, s47, s41
    s_cmp_lg_u32 s3, 0
    s_cbranch_scc1 K_psig
    """)
    signal(a, 47)
    a("s_branch K_psig2")
    a.label("K_psig")
    get_nonce(a)
    a.label("K_psig2")
    a("v_and_b32 v59, 63, v0")
    a("v_lshlrev_b32 v59, 4, v59")
    srd(a, SRD_B, S_X, XN_BYTES)
    srd(a, SRD_C, S_OUT, XN_BYTES)
    a(f"""
    s_lshl_b32 s49, s{S_MT2}, 7
    s_lshl_b32 s40, s{S_WM}, 6
    s_add_u32 s49, s49, s40
    s_mul_i32 s48, s{S_NT2}, 384
    s_mul_i32 s40, s{S_WN}, 192
    s_add_u32 s48, s48, s40
    v_and_b32 v2, 63, v0
    v_and_b32 v3, 31, v2
    v_lshrrev_b32 v4, 5, v2
    v_add_u32 v3, s49, v3
    v_mul_u32_u24 v3, 1152, v3
    v_add_u32 v3, s48, v3
    v_lshl_add_u32 v5, v4, 3, v3
    v_lshl_add_u32 v6, v4, 4, v3
    s_mul_i32 s42, s{S_TILE}, {P_TILE}
    s_mul_i32 s40, s3, 24576
    s_add_u32 s42, s42, s40
    """)
    poll(a, 41, 0x1f)
    stamp(a, 7)
    for i in range(6):
        mi, ni = divmod(i, 3)
        sk = a.new("fin")
        go = a.new("fing")
        a(f"s_add_u32 s40, s43, {i}")
        a("s_cmp_eq_u32 s40, 5")
        a(f"s_cbranch_scc1 {go}")
        a("s_cmp_lg_u32 s40, 10")
        a(f"s_cbranch_scc1 {sk}")
        a.label(go)
        boff = mi * 32 * 1152 + ni * 64
        a(f"s_mov_b32 s40, {boff}")
        for g in range(4):
            a(f"buffer_load_dwordx2 v[{8+2*g}:{9+2*g}], v5, s[{SRD_B}:{SRD_B+3}], s40 offen offset:{g*16}")
        c0 = ACC + 16 * i
        for half in range(2):
            for dd in range(2):
                d = 1 + 2 * half + dd
                a(f"s_add_u32 s44, s{S_SPLIT}, {d}")
                a("s_sub_u32 s45, s44, 5")
                a("s_cmp_ge_u32 s44, 5")
                a("s_cselect_b32 s44, s45, s44")
                a(f"s_mul_i32 s44, s44, {G2_TILES*P_TILE}")
                a("s_add_u32 s44, s44, s42")
                a(f"s_add_u32 s44, s44, {i*4096}")
                for g in range(4):
                    r = 16 + 16 * dd + 4 * g
                    a(f"buffer_load_dwordx4 v[{r}:{r+3}], v59, s[{SRD_A}:{SRD_A+3}], s44 offen offset:{g*1024} sc1")
            for dd in range(2):
                a(f"s_waitcnt vmcnt({4 if dd == 0 else 0})")
                for r in range(16):
                    a(f"v_add_f32 v{c0+r}, v{c0+r}, v{16+16*dd+r}")
        for g in range(4):
            c = c0 + 4 * g
            a(f"""
            v_lshlrev_b32 v16, 16, v{8+2*g}
            v_and_b32 v17, 0xffff0000, v{8+2*g}
            v_lshlrev_b32 v18, 16, v{9+2*g}
            v_and_b32 v19, 0xffff0000, v{9+2*g}
            v_add_f32 v{c}, v{c}, v16
            v_add_f32 v{c+1}, v{c+1}, v17
            v_add_f32 v{c+2}, v{c+2}, v18
            v_add_f32 v{c+3}, v{c+3}, v19
            v_cvt_pk_bf16_f32 v{48+2*g}, v{c}, v{c+1}
            v_cvt_pk_bf16_f32 v{49+2*g}, v{c+2}, v{c+3}
            """)
        a("s_nop 1")
        a("v_permlane32_swap_b32 v48, v50")
        a("v_permlane32_swap_b32 v49, v51")
        a("v_permlane32_swap_b32 v52, v54")
        a("v_permlane32_swap_b32 v53, v55")
        a(f"s_mov_b32 s40, {boff}")
        a(f"buffer_store_dwordx4 v[48:51], v6, s[{SRD_C}:{SRD_C+3}], s40 offen")
        a(f"buffer_store_dwordx4 v[52:55], v6, s[{SRD_C}:{SRD_C+3}], s40 offen offset:32")
        a("s_nop 1")
        a.label(sk)
    if STAMP:
        a("s_waitcnt vmcnt(0)")
    flush_stamps(a, 9)
    a("s_endpgm")

    a.label("K_loader")
    a("s_cmp_ge_u32 s3, 10")
    a("s_cbranch_scc1 K_loadB")
    srd_off(a, SRD_A, S_WS, WS_XN, XN_BYTES)
    voff_ktype(a, 1152, 1, 2)
    a(f"""
    s_sub_u32 s59, s3, 8
    s_lshl_b32 s41, s{S_MT1}, 8
    s_lshl_b32 s56, s59, 7
    s_add_u32 s41, s41, s56
    s_mul_i32 s55, s41, 1152
    s_lshl_b32 s56, s59, 14
    s_barrier
    s_lshl_b32 s41, s{S_MT1}, 8
    s_add_u32 s41, s41, {C_LN*256}
    """)
    get_nonce(a)
    poll(a, 41, 0x3fffffff)

    def issueA1():
        a("s_lshl_b32 s57, s50, 7")
        a("s_add_u32 s57, s57, s55")
        a("s_add_u32 s58, s51, s56")
        issue_k(a, 16, 1152, "sc1")
    loader_loop(a, "G1lA", G1[1], 16, G1[0], 0, issueA1, S_NS)
    a("s_barrier")
    a("s_barrier")
    voff_ktype(a, 4096, 1, 2)
    a(f"""
    s_add_u32 s60, s{S_WS}, {WS_H}
    s_addc_u32 s61, s{S_WS+1}, 0
    s_mov_b32 s{SRD_A+2}, {PANEL}
    s_lshl_b32 s41, s{S_MT2}, 7
    s_lshl_b32 s56, s59, 6
    s_add_u32 s41, s41, s56
    s_lshl_b32 s55, s41, 12
    s_lshl_b32 s56, s59, 13
    s_cmp_lt_u32 s{S_SPLIT}, 2
    s_cbranch_scc1 G2lA_nopoll
    s_lshr_b32 s41, s{S_MT2}, 1
    s_mul_i32 s41, s41, 3
    s_add_u32 s41, s41, s{S_SPLIT}
    s_sub_u32 s41, s41, 2
    s_lshl_b32 s41, s41, 8
    s_add_u32 s41, s41, {C_H*256}
    s_cmp_eq_u32 s{S_SPLIT}, 2
    s_cselect_b32 s42, 0x3f, 0x1ff
    """)
    poll(a, 41, "s42")
    a.label("G2lA_nopoll")

    def issueA2():
        a(f"""
        s_add_u32 s62, s50, s{S_K0}
        s_lshr_b32 s63, s62, 5
        s_sub_u32 s64, s63, 2
        s_lshl_b32 s64, s64, 23
        s_add_u32 s{SRD_A}, s60, s64
        s_addc_u32 s{SRD_A+1}, s61, 0
        s_cmp_eq_u32 s63, 0
        s_cselect_b32 s{SRD_A}, s{S_WSRE}, s{SRD_A}
        s_cselect_b32 s{SRD_A+1}, s{S_WSRE+1}, s{SRD_A+1}
        s_cmp_eq_u32 s63, 1
        s_cselect_b32 s{SRD_A}, s{S_WSIM}, s{SRD_A}
        s_cselect_b32 s{SRD_A+1}, s{S_WSIM+1}, s{SRD_A+1}
        s_and_b32 s{SRD_A+1}, s{SRD_A+1}, 0xffff
        s_and_b32 s57, s62, 31
        s_lshl_b32 s57, s57, 7
        s_add_u32 s57, s57, s55
        s_add_u32 s58, s51, s56
        """)
        issue_k(a, 8, 4096, "sc1")
    loader_loop(a, "G2lA", G2[1], 8, G2[0], 0, issueA2, S_N2)
    a("s_endpgm")

    a.label("K_loadB")
    a("s_sub_u32 s59, s3, 10")
    a(f"s_cmp_ge_u32 s{S_NT1}, 6")
    a("s_cbranch_scc1 G1_loadBKN")
    a(f"""
    s_cmp_ge_u32 s{S_NT1}, 3
    s_cselect_b32 s60, s{S_WDIM}, s{S_WDRE}
    s_cselect_b32 s61, s{S_WDIM+1}, s{S_WDRE+1}
    s_cselect_b32 s41, 3, 0
    s_sub_u32 s41, s{S_NT1}, s41
    s_mul_i32 s41, s41, 192
    s_mul_i32 s56, s59, 96
    s_add_u32 s41, s41, s56
    s_mul_i32 s55, s41, 1152
    s_mul_i32 s56, s59, 12288
    """)
    srd(a, SRD_A, 60, WD_BYTES)
    voff_ktype(a, 1152, 1, 2)

    def issueBNK():
        a("s_lshl_b32 s57, s50, 7")
        a("s_add_u32 s57, s57, s55")
        a("s_add_u32 s58, s51, s56")
        issue_k(a, 12, 1152)
    loader_loop(a, "G1lBNK", G1[3], 12, G1[2], LDS_B, issueBNK, S_NS, mid=lambda: a("s_barrier"))
    a("s_branch G2_loadB")
    a.label("G1_loadBKN")
    srd(a, SRD_A, S_W1, W1_BYTES)
    voff_ntype(a, 9216, 1)
    a(f"""
    s_sub_u32 s41, s{S_NT1}, 6
    s_mul_i32 s55, s41, 384
    s_mul_i32 s56, s59, {32*9216}
    s_add_u32 s55, s55, s56
    s_mul_i32 s56, s59, 12288
    """)

    def issueBKN():
        a(f"s_mul_i32 s57, s50, {64*9216}")
        a("s_add_u32 s57, s57, s55")
        a("s_add_u32 s58, s51, s56")
        issue_n(a, 9216)
    loader_loop(a, "G1lBKN", G1[3], 12, G1[2], LDS_B, issueBKN, S_NS, mid=lambda: a("s_barrier"))
    a.label("G2_loadB")
    a("s_barrier")
    a("s_barrier")
    voff_ntype(a, 1152, 1)
    get_nonce(a)
    a(f"""
    s_add_u32 s60, s{S_WS}, {WS_AB}
    s_addc_u32 s61, s{S_WS+1}, 0
    s_mul_i32 s55, s{S_NT2}, 384
    s_mul_i32 s56, s59, {32*1152}
    s_add_u32 s55, s55, s56
    s_mul_i32 s56, s59, 12288
    s_cmp_ge_u32 s{S_SPLIT}, 2
    s_cbranch_scc1 G2lB_p2
    s_lshl_b32 s41, s{S_NT2}, 8
    s_add_u32 s41, s41, {C_AB*256}
    """)
    poll(a, 41, 0xff)
    a.label("G2lB_p2")
    a(f"""
    s_cmp_eq_u32 s{S_SPLIT}, 0
    s_cbranch_scc1 G2lB_nopoll
    s_cmp_ge_u32 s{S_SPLIT}, 3
    s_cbranch_scc1 G2lB_nopoll
    s_lshl_b32 s41, s{S_NT2}, 8
    s_add_u32 s41, s41, {(C_AB+3)*256}
    """)
    poll(a, 41, 0xff)
    a.label("G2lB_nopoll")

    def issueB2():
        a(f"""
        s_add_u32 s62, s50, s{S_K0}
        s_sub_u32 s63, s62, 64
        s_cmp_lt_u32 s62, 64
        s_cselect_b32 s63, s62, s63
        s_cselect_b32 s{SRD_A}, s60, s{S_W2}
        s_cselect_b32 s{SRD_A+1}, s61, s{S_W2+1}
        s_mov_b32 s{SRD_A+2}, {W2_BYTES}
        s_cselect_b32 s{SRD_A+2}, {AB_BYTES}, s{SRD_A+2}
        s_and_b32 s{SRD_A+1}, s{SRD_A+1}, 0xffff
        s_mul_i32 s57, s63, {64*1152}
        s_add_u32 s57, s57, s55
        s_add_u32 s58, s51, s56
        """)
        issue_n(a, 1152, "sc1")
    loader_loop(a, "G2lB", G2[3], 12, G2[2], LDS_B, issueB2, S_N2)
    a.label("K_done")
    a("s_endpgm")
    return name


def main():
    a = Asm()
    name = gen_kernel(a)
    head = f"; generated by gen2.py\n; @launch grid=({NWG},1,1) block=(768,1,1) lds=163840\n"
    head += '.amdgcn_target "amdgcn-amd-amdhsa--gfx950"\n.text\n'
    tail = f""".section .rodata,"a"
.p2align 6
.amdhsa_kernel {name}
  .amdhsa_next_free_vgpr 160
  .amdhsa_next_free_sgpr 102
  .amdhsa_accum_offset 160
  .amdhsa_group_segment_fixed_size 0
  .amdhsa_kernarg_size 88
  .amdhsa_user_sgpr_count 2
  .amdhsa_user_sgpr_kernarg_segment_ptr 1
  .amdhsa_system_sgpr_workgroup_id_x 1
  .amdhsa_float_denorm_mode_32 3
  .amdhsa_float_denorm_mode_16_64 3
.end_amdhsa_kernel
"""
    open(OUT, "w").write(head + a.text() + tail)


if __name__ == "__main__":
    main()
```

```python
import sys, os
NOLOAD = int(os.environ.get("NOLOAD", "0"))
NOCOMP = int(os.environ.get("NOCOMP", "0"))
STAMP = int(os.environ.get("STAMP", "0"))
WS_STAMP = 0x8000000

NAME = "parallel_sum__spectral_fnet__dense_activation_relu__prompt"
OUT = os.environ.get("OUT", "cdna_kernels/%s.s" % NAME)

WS_XN = 0x0
WS_AB = 0x400000
WS_H = 0x1000000
WS_P = 0x4000000
XN_BYTES = 2048 * 576 * 2
AB_BYTES = 4096 * 576 * 2
PANEL = 2048 * 2048 * 2
W1_BYTES = 576 * 4608 * 2
W2_BYTES = 4608 * 576 * 2
WD_BYTES = 576 * 576 * 2
NSPLIT = 5
G2_TILES = 48
NWG = 240
P_TILE = 128 * 192 * 4
P_BYTES = NWG * P_TILE

C_LN, C_AB, C_H, C_P = 0, 8, 16, 40

S_X, S_WSRE, S_WSIM, S_WDRE, S_WDIM, S_W1, S_W2, S_OUT, S_DBG, S_WS = 4, 6, 8, 10, 12, 16, 18, 20, 22, 24
S_SPLIT, S_TILE, S_MT2, S_NT2, S_K0, S_N2 = 26, 27, 32, 39, 66, 67
SRD_DBG = 28
S_L, S_NT1, S_MT1, S_NS, S_WM, S_WN = 33, 34, 35, 36, 37, 38
SRD_A, SRD_B, SRD_C = 68, 72, 76
SRD_F = 92


class Asm:
    def __init__(self):
        self.lines = []
        self.uid = 0

    def __call__(self, s=""):
        for l in s.split("\n"):
            l = l.strip()
            if NOLOAD and l.endswith(" lds"):
                continue
            if NOCOMP and (l.startswith("v_mfma") or l.startswith("ds_read_b64_tr") or (l.startswith("ds_read_b128") and "offset" in l)):
                continue
            if l:
                self.lines.append("    " + l if not l.endswith(":") else l)

    def label(self, s):
        self.lines.append(s + ":")

    def new(self, p):
        self.uid += 1
        return f"{p}_{self.uid}"

    def text(self):
        return "\n".join(self.lines) + "\n"


def srd(a, d, lo, size):
    a(f"s_mov_b32 s{d}, s{lo}")
    a(f"s_and_b32 s{d+1}, s{lo+1}, 0xffff")
    a(f"s_mov_b32 s{d+2}, {size}")
    a(f"s_mov_b32 s{d+3}, 0x00020000")


def srd_off(a, d, lo, off, size):
    a(f"s_add_u32 s{d}, s{lo}, {off}")
    a(f"s_addc_u32 s{d+1}, s{lo+1}, 0")
    a(f"s_and_b32 s{d+1}, s{d+1}, 0xffff")
    a(f"s_mov_b32 s{d+2}, {size}")
    a(f"s_mov_b32 s{d+3}, 0x00020000")


def stamp(a, i, wait=False):
    if STAMP:
        a("s_memrealtime s[98:99]")
        a("s_waitcnt lgkmcnt(0)")
        a(f"s_mov_b32 s{80+i}, s98")


def flush_stamps(a, n):
    if not STAMP:
        return
    lbl = a.new("ST_skip")
    a("s_cmp_lg_u32 s3, 0")
    a(f"s_cbranch_scc1 {lbl}")
    stamp(a, n - 1)
    if STAMP == 2:
        l2 = a.new("ST2")
        a("v_mov_b32 v1, 0")
        a("s_cmp_lg_u32 s2, 0")
        a(f"s_cbranch_scc1 {l2}")
        for i in range(n):
            a(f"s_sub_u32 s40, s{80+i}, s{S_NLO}")
            a("v_mov_b32 v2, s40")
            a(f"buffer_store_dword v2, v1, s[{SRD_DBG}:{SRD_DBG+3}], 0 offen offset:{8+4*i}")
        a.label(l2)
        a("s_cmp_lg_u32 s2, 101")
        a(f"s_cbranch_scc1 {lbl}")
        for j, i in enumerate((2, 3, 5, 6, 8)):
            a(f"s_sub_u32 s40, s{80+i}, s{S_NLO}")
            a("v_mov_b32 v2, s40")
            a(f"buffer_store_dword v2, v1, s[{SRD_DBG}:{SRD_DBG+3}], 0 offen offset:{44+4*j}")
        a.label(lbl)
        return
    srd_off(a, SRD_A, S_WS, WS_STAMP, 0x10000)
    a("s_lshl_b32 s100, s2, 6")
    a("v_mov_b32 v1, 0")
    a("s_waitcnt lgkmcnt(0)")
    for i in range(n):
        a(f"v_mov_b32 v2, s{80+i}")
        a(f"buffer_store_dword v2, v1, s[{SRD_A}:{SRD_A+3}], s100 offen offset:{4*i}")
    a.label(lbl)


WS_F = 0x3000000
F_BYTES = 96 * 256
S_NLO, S_NHI = 14, 15
POLL_SLEEP = int(os.environ.get("POLL_SLEEP", "4"))
TOUCH = os.environ.get("TOUCH", "plain")


def get_nonce(a):
    l = a.new("nonce")
    d = a.new("nonced")
    a("v_mov_b32 v63, 0")
    a("s_mov_b32 s101, 0")
    a.label(l)
    a("s_add_u32 s101, s101, 1")
    a("s_cmp_ge_u32 s101, 0x40000")
    a(f"s_cbranch_scc1 {d}")
    a(f"buffer_load_dwordx2 v[60:61], v63, s[{SRD_DBG}:{SRD_DBG+3}], 0 offen sc1")
    a("s_waitcnt vmcnt(0)")
    a(f"v_readfirstlane_b32 s{S_NLO}, v60")
    a(f"v_readfirstlane_b32 s{S_NHI}, v61")
    a(f"s_or_b32 s40, s{S_NLO}, s{S_NHI}")
    a("s_cmp_lg_u32 s40, 0")
    a(f"s_cbranch_scc1 {d}")
    a("s_sleep 2")
    a(f"s_branch {l}")
    a.label(d)


def signal(a, s_off):
    a(f"""
    v_mov_b32 v60, s{S_NLO}
    v_mov_b32 v61, s{S_NHI}
    v_mov_b32 v63, 0
    s_mov_b64 exec, 1
    buffer_store_dwordx2 v[60:61], v63, s[{SRD_F}:{SRD_F+3}], s{s_off} offen sc1
    s_mov_b64 exec, -1
    """)


def poll(a, s_off, mask):
    l = a.new("poll")
    d = a.new("polld")
    a("v_and_b32 v63, 31, v0")
    a("v_lshlrev_b32 v63, 3, v63")
    a("s_mov_b32 s101, 0")
    a.label(l)
    a("s_add_u32 s101, s101, 1")
    a("s_cmp_ge_u32 s101, 0x40000")
    a(f"s_cbranch_scc1 {d}")
    a(f"buffer_load_dwordx2 v[60:61], v63, s[{SRD_F}:{SRD_F+3}], s{s_off} offen sc1")
    a("s_waitcnt vmcnt(0)")
    a(f"v_cmp_eq_u32 s[62:63], s{S_NLO}, v60")
    a(f"v_cmp_eq_u32 vcc, s{S_NHI}, v61")
    a("s_nop 1")
    a("s_and_b32 s40, s62, vcc_lo")
    a(f"s_and_b32 s40, s40, {mask}")
    a(f"s_cmp_eq_u32 s40, {mask}")
    a(f"s_cbranch_scc1 {d}")
    a(f"s_sleep {POLL_SLEEP}")
    a(f"s_branch {l}")
    a.label(d)


def ln_phase(a):
    a(f"""
    v_lshrrev_b32 v1, 4, v0
    v_mul_u32_u24 v2, 30, v1
    v_add_u32 v2, s{S_NT1}, v2
    s_lshl_b32 s40, s{S_MT1}, 8
    v_add_u32 v3, s40, v2
    v_mul_u32_u24 v3, 1152, v3
    v_and_b32 v4, 15, v0
    v_lshl_add_u32 v3, v4, 3, v3
    v_mov_b32 v4, 0x7f000000
    v_cmp_gt_u32 vcc, 256, v2
    s_nop 1
    v_cndmask_b32 v1, v4, v3, vcc
    """)
    srd(a, SRD_A, S_X, XN_BYTES)
    srd_off(a, SRD_B, S_WS, WS_XN, XN_BYTES)
    for p in range(9):
        a(f"buffer_load_dwordx2 v[{4+2*p}:{5+2*p}], v1, s[{SRD_A}:{SRD_A+3}], 0 offen offset:{p*128}")
    X = 24
    for p in range(9):
        a(f"s_waitcnt vmcnt({8-p})")
        for j in range(2):
            src = 4 + 2 * p + j
            a(f"v_lshlrev_b32 v{X+4*p+2*j}, 16, v{src}")
            a(f"v_and_b32 v{X+4*p+2*j+1}, 0xffff0000, v{src}")
    a(f"v_add_f32 v60, v{X}, v{X+1}")
    a(f"v_add_f32 v61, v{X+2}, v{X+3}")
    for i in range(4, 36, 2):
        a(f"v_add_f32 v60, v60, v{X+i}")
        a(f"v_add_f32 v61, v61, v{X+i+1}")
    a("v_add_f32 v60, v60, v61")

    def allreduce(r, t):
        for sh in (8, 4, 2, 1):
            a("s_nop 1")
            a(f"v_add_f32_dpp v{t}, v{r}, v{r} row_ror:{sh} row_mask:0xf bank_mask:0xf")
            a(f"v_mov_b32 v{r}, v{t}")
    allreduce(60, 61)
    a("v_mul_f32 v60, 0x3ae38e39, v60")
    a(f"v_sub_f32 v62, v{X}, v60")
    a("v_mul_f32 v63, v62, v62")
    a(f"v_sub_f32 v62, v{X+1}, v60")
    a("v_mul_f32 v64, v62, v62")
    for i in range(2, 36, 2):
        a(f"v_sub_f32 v62, v{X+i}, v60")
        a(f"v_sub_f32 v65, v{X+i+1}, v60")
        a("v_fmac_f32 v63, v62, v62")
        a("v_fmac_f32 v64, v65, v65")
    a("v_add_f32 v63, v63, v64")
    allreduce(63, 61)
    a("""
    v_mul_f32 v63, 0x3ae38e39, v63
    v_cvt_pk_bf16_f32 v61, v60, v63
    v_lshlrev_b32 v60, 16, v61
    v_and_b32 v63, 0xffff0000, v61
    v_add_f32 v63, 0x3727c5ac, v63
    v_cvt_pk_bf16_f32 v63, v63, v63
    v_and_b32 v63, 0xffff0000, v63
    v_sqrt_f32 v63, v63
    s_nop 0
    v_cvt_pk_bf16_f32 v63, v63, v63
    v_and_b32 v63, 0xffff0000, v63
    v_rcp_f32 v64, v63
    s_nop 0
    """)
    for p in range(9):
        for j in range(2):
            e0 = X + 4 * p + 2 * j
            e1 = e0 + 1
            a(f"""
            v_sub_f32 v{e0}, v{e0}, v60
            v_sub_f32 v{e1}, v{e1}, v60
            v_cvt_pk_bf16_f32 v66, v{e0}, v{e1}
            v_lshlrev_b32 v{e0}, 16, v66
            v_and_b32 v{e1}, 0xffff0000, v66
            v_mul_f32 v66, v{e0}, v64
            v_mul_f32 v67, v{e1}, v64
            v_fma_f32 v68, -v66, v63, v{e0}
            v_fma_f32 v69, -v67, v63, v{e1}
            v_fmac_f32 v66, v68, v64
            v_fmac_f32 v67, v69, v64
            v_cvt_pk_bf16_f32 v{4+2*p+j}, v66, v67
            """)
        a(f"buffer_store_dwordx2 v[{4+2*p}:{5+2*p}], v1, s[{SRD_B}:{SRD_B+3}], 0 offen offset:{p*128} sc1")
    a("s_waitcnt vmcnt(0)")


V_AB, V_AA, V_BB, V_BA = 1, 5, 9, 13
FR0, FR1, ACC = 20, 40, 64
LDS_B = 65536


def frag(setb, which):
    return setb + {"A0": 0, "A1": 4, "B0": 8, "B1": 12, "B2": 16}[which]


def reads_for(btype, setb, j):
    r = []

    def aread(mi):
        d = frag(setb, f"A{mi}")
        return (f"A{mi}", f"ds_read_b128 v[{d}:{d+3}], v{V_AA+j} offset:{4096*mi}")

    def bread(ni):
        d = frag(setb, f"B{ni}")
        if btype == "NK":
            return [(f"B{ni}", f"ds_read_b128 v[{d}:{d+3}], v{V_BA+j} offset:{4096*ni}")]
        return [(f"B{ni}", f"ds_read_b64_tr_b16 v[{d}:{d+1}], v{V_BA+ni} offset:{(16*j)*384}"),
                (f"B{ni}", f"ds_read_b64_tr_b16 v[{d+2}:{d+3}], v{V_BA+ni} offset:{(16*j+4)*384}")]
    r.append(aread(0))
    r += bread(0)
    r += bread(1)
    r += bread(2)
    r.append(aread(1))
    return r


class LgkmTracker:
    def __init__(self, a):
        self.a = a
        self.out = []

    def issue(self, tag, instr):
        self.a(instr)
        self.out.append(tag)

    def need(self, tags):
        last = -1
        for i, t in enumerate(self.out):
            if t in tags:
                last = i
        if last < 0:
            return
        n = len(self.out) - 1 - last
        assert n <= 15
        self.a(f"s_waitcnt lgkmcnt({n})")
        self.out = self.out[last + 1:]

    def drain(self):
        self.a("s_waitcnt lgkmcnt(0)")
        self.out = []


def substep(a, trk, cur, nxt_reads, curtag, nxttag):
    order = [(0, 0), (0, 1), (0, 2), (1, 0), (1, 1), (1, 2)]
    nr = len(nxt_reads)
    per = [2, 2, 2, 2, 0, 0] if nr == 8 else [2, 1, 1, 1, 0, 0]
    ri = 0
    for idx, (mi, ni) in enumerate(order):
        trk.need([curtag + f"A{mi}", curtag + f"B{ni}"])
        A = frag(cur, f"A{mi}")
        B = frag(cur, f"B{ni}")
        c = ACC + 16 * (3 * mi + ni)
        a(f"v_mfma_f32_32x32x16_bf16 v[{c}:{c+15}], v[{B}:{B+3}], v[{A}:{A+3}], v[{c}:{c+15}]")
        for _ in range(per[idx]):
            t, ins = nxt_reads[ri]
            trk.issue(nxttag + t, ins)
            ri += 1
    assert ri == nr


def consumer_addr_setup(a, btype):
    a(f"""
    v_and_b32 v60, 63, v0
    v_and_b32 v61, 31, v60
    v_lshrrev_b32 v62, 5, v60
    v_lshrrev_b32 v63, 1, v60
    v_and_b32 v63, 7, v63
    s_lshl_b32 s40, s{S_WM}, 6
    v_add_u32 v17, s40, v61
    v_lshlrev_b32 v17, 7, v17
    """)
    for j in range(4):
        a(f"v_add_u32 v18, {2*j}, v62")
        a("v_xor_b32 v18, v18, v63")
        a(f"v_lshl_add_u32 v{V_AB+j}, v18, 4, v17")
    if btype == "NK":
        a(f"""
        s_mul_i32 s40, s{S_WN}, 96
        v_add_u32 v17, s40, v61
        v_lshlrev_b32 v17, 7, v17
        v_add_u32 v17, {LDS_B}, v17
        """)
        for j in range(4):
            a(f"v_add_u32 v18, {2*j}, v62")
            a("v_xor_b32 v18, v18, v63")
            a(f"v_lshl_add_u32 v{V_BB+j}, v18, 4, v17")
    else:
        a(f"""
        v_and_b32 v17, 15, v60
        v_lshrrev_b32 v18, 2, v17
        v_lshl_add_u32 v18, v62, 3, v18
        v_mul_u32_u24 v18, 384, v18
        v_add_u32 v18, {LDS_B}, v18
        v_bfe_u32 v19, v60, 4, 1
        v_lshlrev_b32 v19, 5, v19
        v_add_u32 v18, v18, v19
        v_and_b32 v19, 3, v17
        v_lshlrev_b32 v19, 3, v19
        v_add_u32 v18, v18, v19
        v_lshrrev_b32 v19, 3, v17
        s_mul_i32 s40, s{S_WN}, 3
        """)
        for ni in range(3):
            a(f"s_add_u32 s41, s40, {ni}")
            a("v_xor_b32 v17, s41, v19")
            a(f"v_lshl_add_u32 v{V_BB+ni}, v17, 6, v18")


def consumer_loop(a, pfx, btype, SA, NSA, SB, NSB, s_nsteps, st):
    nb = 4 if btype == "NK" else 3
    for i in range(96):
        a(f"v_mov_b32 v{ACC+i}, 0")
    a("s_mov_b32 s44, 0")
    a("s_mov_b32 s45, 0")
    a("s_mov_b32 s46, 0")
    for j in range(4):
        a(f"v_mov_b32 v{V_AA+j}, v{V_AB+j}")
    for j in range(nb):
        a(f"v_mov_b32 v{V_BA+j}, v{V_BB+j}")
    a("s_barrier")
    stamp(a, st, True)
    trk = LgkmTracker(a)
    for t, ins in reads_for(btype, FR0, 0):
        trk.issue("s0" + t, ins)
    a.label(f"{pfx}_loop")
    entry_state = list(trk.out)
    substep(a, trk, FR0, reads_for(btype, FR1, 1), "s0", "s1")
    substep(a, trk, FR1, reads_for(btype, FR0, 2), "s1", "s2")
    substep(a, trk, FR0, reads_for(btype, FR1, 3), "s2", "s3")
    a(f"""
    s_add_u32 s44, s44, {SA}
    s_cmp_ge_u32 s44, {SA*NSA}
    s_cselect_b32 s44, 0, s44
    s_add_u32 s45, s45, {SB}
    s_cmp_ge_u32 s45, {SB*NSB}
    s_cselect_b32 s45, 0, s45
    """)
    trk.drain()
    for j in range(4):
        a(f"v_add_u32 v{V_AA+j}, s44, v{V_AB+j}")
    for j in range(nb):
        a(f"v_add_u32 v{V_BA+j}, s45, v{V_BB+j}")
    a("s_barrier")
    substep(a, trk, FR1, reads_for(btype, FR0, 0), "s3", "s0")
    assert trk.out == entry_state
    a(f"""
    s_add_u32 s46, s46, 1
    s_cmp_lt_u32 s46, s{s_nsteps}
    s_cbranch_scc1 {pfx}_loop
    s_waitcnt lgkmcnt(0)
    s_nop 15
    s_nop 3
    """)


def loader_loop(a, pfx, NS, L, slot_bytes, ring_base, issue_fn, s_nsteps, mid=None):
    a("s_mov_b32 s50, 0")
    a(f"s_mov_b32 s51, {ring_base}")
    for j in range(NS):
        issue_fn()
        a("s_add_u32 s50, s50, 1")
        a(f"s_add_u32 s51, s51, {slot_bytes}")
    a(f"s_mov_b32 s51, {ring_base}")
    if mid:
        mid()
    a(f"s_waitcnt vmcnt({(NS-1)*L})")
    a("s_barrier")
    a("s_mov_b32 s52, 0")
    a.label(f"{pfx}_loop")
    a(f"s_sub_i32 s53, s{s_nsteps}, s52")
    a("s_sub_i32 s53, s53, 2")
    for c in range(NS - 2, 0, -1):
        a(f"s_cmp_ge_i32 s53, {c}")
        a(f"s_cbranch_scc1 {pfx}_w{c}")
    a("s_waitcnt vmcnt(0)")
    a(f"s_branch {pfx}_bar")
    for c in range(1, NS - 1):
        a.label(f"{pfx}_w{c}")
        a(f"s_waitcnt vmcnt({c*L})")
        if c != NS - 2:
            a(f"s_branch {pfx}_bar")
    a.label(f"{pfx}_bar")
    a("s_barrier")
    a(f"s_cmp_ge_u32 s50, s{s_nsteps}")
    a(f"s_cbranch_scc1 {pfx}_skip")
    issue_fn()
    a("s_add_u32 s50, s50, 1")
    a(f"s_add_u32 s51, s51, {slot_bytes}")
    a(f"s_cmp_ge_u32 s51, {ring_base + NS*slot_bytes}")
    a(f"s_cselect_b32 s51, {ring_base}, s51")
    a.label(f"{pfx}_skip")
    a(f"""
    s_add_u32 s52, s52, 1
    s_cmp_lt_u32 s52, s{s_nsteps}
    s_cbranch_scc1 {pfx}_loop
    """)


def voff_ktype(a, stride, ve, vo):
    a(f"""
    v_and_b32 v60, 63, v0
    v_lshrrev_b32 v61, 3, v60
    v_mul_u32_u24 v61, {stride}, v61
    v_and_b32 v62, 7, v60
    v_lshrrev_b32 v63, 4, v60
    v_xor_b32 v62, v62, v63
    v_lshl_add_u32 v{ve}, v62, 4, v61
    v_xor_b32 v62, 4, v62
    v_lshl_add_u32 v{vo}, v62, 4, v61
    """)


def voff_ntype(a, stride, vb):
    for p in range(192):
        assert (p * 2731) >> 16 == p // 24
    a("v_and_b32 v60, 63, v0")
    for b in range(3):
        a(f"""
        v_add_u32 v61, {64*b}, v60
        v_mul_u32_u24 v62, 2731, v61
        v_lshrrev_b32 v62, 16, v62
        v_mul_u32_u24 v63, 24, v62
        v_sub_u32 v61, v61, v63
        v_and_b32 v63, 2, v62
        v_lshlrev_b32 v63, 1, v63
        v_xor_b32 v61, v61, v63
        v_mul_u32_u24 v62, {stride}, v62
        v_lshl_add_u32 v{vb+b}, v61, 4, v62
        """)


def issue_k(a, nq, stride, flags=""):
    for q in range(nq):
        a(f"s_add_u32 m0, s58, {q*1024}")
        a(f"s_add_u32 s54, s57, {q*8*stride}")
        a(f"buffer_load_dwordx4 v{2 if q & 1 else 1}, s[{SRD_A}:{SRD_A+3}], s54 offen {flags} lds")


def issue_n(a, stride, flags=""):
    for aa in range(4):
        for b in range(3):
            a(f"s_add_u32 m0, s58, {(3*aa+b)*1024}")
            a(f"s_add_u32 s54, s57, {aa*8*stride}")
            a(f"buffer_load_dwordx4 v{1+b}, s[{SRD_A}:{SRD_A+3}], s54 offen {flags} lds")


def gen_kernel(a):
    name = NAME + "_kernel"
    G1 = (32768, 2, 24576, 4)
    G2 = (16384, 4, 24576, 4)
    RS = 400
    a.lines.append(f".globl {name}")
    a.lines.append(".p2align 8")
    a.lines.append(f".type {name},@function")
    a.label(name)
    a(f"""
    s_cmp_ge_u32 s2, {NWG}
    s_cbranch_scc1 K_done
    """)
    stamp(a, 0)
    a(f"""
    s_load_dwordx8 s[4:11], s[0:1], 0
    s_load_dwordx2 s[12:13], s[0:1], 32
    s_load_dwordx4 s[16:19], s[0:1], 48
    s_load_dwordx4 s[20:23], s[0:1], 64
    s_load_dwordx2 s[24:25], s[0:1], 80
    v_lshrrev_b32 v1, 6, v0
    s_and_b32 s33, s2, 7
    s_mul_i32 s33, s33, 30
    s_lshr_b32 s34, s2, 3
    v_readfirstlane_b32 s3, v1
    s_add_u32 s{S_L}, s33, s34
    s_lshr_b32 s{S_NT1}, s{S_L}, 3
    s_and_b32 s{S_MT1}, s{S_L}, 7
    s_mul_i32 s{S_SPLIT}, s{S_L}, 1366
    s_lshr_b32 s{S_SPLIT}, s{S_SPLIT}, 16
    s_mul_i32 s40, s{S_SPLIT}, 48
    s_sub_u32 s{S_TILE}, s{S_L}, s40
    s_mul_i32 s{S_MT2}, s{S_TILE}, 21846
    s_lshr_b32 s{S_MT2}, s{S_MT2}, 16
    s_mul_i32 s40, s{S_MT2}, 3
    s_sub_u32 s{S_NT2}, s{S_TILE}, s40
    s_mul_i32 s{S_K0}, s{S_SPLIT}, 27
    s_add_u32 s{S_K0}, s{S_K0}, 1
    s_mov_b32 s{S_N2}, 27
    s_cmp_eq_u32 s{S_SPLIT}, 0
    s_cselect_b32 s{S_K0}, 0, s{S_K0}
    s_cselect_b32 s{S_N2}, 28, s{S_N2}
    s_mov_b32 s{S_NS}, 9
    s_waitcnt lgkmcnt(0)
    """)
    for L in range(240):
        assert (L * 1366) >> 16 == L // 48
    for r in range(48):
        assert (r * 21846) >> 16 == r // 3
    srd(a, SRD_DBG, S_DBG, 256)
    srd_off(a, SRD_F, S_WS, WS_F, F_BYTES)
    a(f"""
    s_or_b32 s40, s2, s3
    s_cmp_lg_u32 s40, 0
    s_cbranch_scc1 K_nopub
    s_memrealtime s[40:41]
    s_waitcnt lgkmcnt(0)
    s_or_b32 s40, s40, 1
    v_mov_b32 v60, s40
    v_mov_b32 v61, s41
    v_mov_b32 v63, 0
    s_mov_b64 exec, 1
    buffer_store_dwordx2 v[60:61], v63, s[{SRD_DBG}:{SRD_DBG+3}], 0 offen sc1
    s_mov_b64 exec, -1
    """)
    a.label("K_nopub")
    a("s_cmp_ge_u32 s3, 8")
    a("s_cbranch_scc1 K_loader")
    a("s_cmp_ge_u32 s3, 3")
    a("s_cbranch_scc1 K_lnskip")
    ln_phase(a)
    if TOUCH:
        fl = "" if TOUCH == "plain" else TOUCH
        a("s_branch K_lnskip2")
        a.label("K_lnskip")
        srd(a, SRD_A, S_WSRE, PANEL)
        srd(a, SRD_B, S_WSIM, PANEL)
        srd(a, SRD_C, S_W2, W2_BYTES)
        a(f"""
        v_subrev_u32 v1, 192, v0
        s_mul_i32 s40, s{S_L}, 274
        v_add_u32 v2, s40, v1
        v_lshlrev_b32 v2, 7, v2
        s_mul_i32 s40, s{S_L}, 173
        v_add_u32 v3, s40, v1
        v_lshlrev_b32 v3, 7, v3
        v_mov_b32 v4, 0x7f000000
        v_cmp_gt_u32 vcc, 274, v1
        s_nop 1
        v_cndmask_b32 v2, v4, v2, vcc
        v_cmp_gt_u32 vcc, 173, v1
        s_nop 1
        v_cndmask_b32 v3, v4, v3, vcc
        buffer_load_dword v58, v2, s[{SRD_A}:{SRD_A+3}], 0 offen {fl}
        buffer_load_dword v58, v2, s[{SRD_B}:{SRD_B+3}], 0 offen {fl}
        buffer_load_dword v58, v3, s[{SRD_C}:{SRD_C+3}], 0 offen {fl}
        """)
        a.label("K_lnskip2")
    else:
        a.label("K_lnskip")
    a("s_barrier")
    a("s_cmp_lg_u32 s3, 0")
    a("s_cbranch_scc1 K_lnsig")
    get_nonce(a)
    a(f"s_lshl_b32 s41, s{S_MT1}, 8")
    a(f"s_lshl_b32 s40, s{S_NT1}, 3")
    a("s_add_u32 s41, s41, s40")
    a(f"s_add_u32 s41, s41, {C_LN*256}")
    signal(a, 41)
    a.label("K_lnsig")
    stamp(a, 1)
    a(f"s_lshr_b32 s{S_WM}, s3, 1")
    a(f"s_and_b32 s{S_WN}, s3, 1")
    a(f"s_cmp_ge_u32 s{S_NT1}, 6")
    a("s_cbranch_scc1 G1_consKN")
    consumer_addr_setup(a, "NK")
    consumer_loop(a, "G1cNK", "NK", *G1, S_NS, 2)
    a("s_branch G1_epi")
    a.label("G1_consKN")
    consumer_addr_setup(a, "KN")
    consumer_loop(a, "G1cKN", "KN", *G1, S_NS, 2)
    a.label("G1_epi")
    a("s_waitcnt vmcnt(0)")
    stamp(a, 3)
    a(f"""
    s_mov_b32 s42, 0
    s_cmp_ge_u32 s{S_NT1}, 3
    s_cselect_b32 s42, 0x80008000, s42
    s_cmp_ge_u32 s{S_NT1}, 6
    s_cselect_b32 s42, 0, s42
    s_mov_b32 s43, 0xff800000
    s_cselect_b32 s43, 0, s43
    v_and_b32 v60, 63, v0
    v_and_b32 v61, 31, v60
    v_lshrrev_b32 v62, 5, v60
    s_lshl_b32 s40, s{S_WM}, 6
    v_add_u32 v61, s40, v61
    v_mul_u32_u24 v61, {RS}, v61
    s_mul_i32 s40, s{S_WN}, 192
    v_lshl_add_u32 v61, v62, 3, v61
    v_add_u32 v61, s40, v61
    """)
    for mi in range(2):
        for ni in range(3):
            for g in range(4):
                c = ACC + 16 * (3 * mi + ni) + 4 * g
                t = 20 + 2 * ((ni * 4 + g) & 7)
                for r in range(4):
                    a(f"v_max_f32 v{c+r}, s43, v{c+r}")
                a(f"v_cvt_pk_bf16_f32 v{t}, v{c}, v{c+1}")
                a(f"v_cvt_pk_bf16_f32 v{t+1}, v{c+2}, v{c+3}")
                a(f"v_xor_b32 v{t}, s42, v{t}")
                a(f"v_xor_b32 v{t+1}, s42, v{t+1}")
                a(f"ds_write_b64 v61, v[{t}:{t+1}] offset:{mi*32*RS + ni*64 + g*16}")
    a("s_waitcnt lgkmcnt(0)")
    a("s_barrier")
    srd_off(a, SRD_A, S_WS, WS_AB, AB_BYTES)
    srd_off(a, SRD_B, S_WS, WS_H, 3 * PANEL)
    a(f"""
    s_lshl_b32 s49, s{S_MT1}, 8
    s_cmp_ge_u32 s{S_NT1}, 6
    s_cbranch_scc1 G1_epiH
    s_cmp_ge_u32 s{S_NT1}, 3
    s_cselect_b32 s41, 2048, 0
    s_cselect_b32 s40, 3, 0
    s_add_u32 s49, s49, s41
    s_sub_u32 s40, s{S_NT1}, s40
    s_mul_i32 s48, s40, 192
    s_mov_b32 s47, 1152
    s_lshl_b32 s41, s{S_NT1}, 8
    s_lshl_b32 s40, s{S_MT1}, 3
    s_add_u32 s41, s41, s40
    s_add_u32 s41, s41, {C_AB*256}
    s_branch G1_epiS
    """)
    a.label("G1_epiH")
    a(f"""
    s_mov_b32 s{SRD_A}, s{SRD_B}
    s_mov_b32 s{SRD_A+1}, s{SRD_B+1}
    s_mov_b32 s{SRD_A+2}, s{SRD_B+2}
    s_sub_u32 s40, s{S_NT1}, 6
    s_mul_i32 s48, s40, 192
    s_mov_b32 s47, 4096
    s_mul_i32 s41, s{S_MT1}, 3
    s_mov_b32 s46, s40
    s_cmp_ge_u32 s40, 6
    s_addc_u32 s41, s41, 0
    s_cmp_ge_u32 s40, 6
    s_cselect_b32 s45, 6, 0
    s_cmp_ge_u32 s40, 15
    s_addc_u32 s41, s41, 0
    s_cmp_ge_u32 s40, 15
    s_cselect_b32 s45, 15, s45
    s_sub_u32 s46, s46, s45
    s_lshl_b32 s41, s41, 8
    s_lshl_b32 s46, s46, 3
    s_add_u32 s41, s41, s46
    s_add_u32 s41, s41, {C_H*256}
    """)
    a.label("G1_epiS")
    for it in range(12):
        t = 20 + 4 * (it % 8)
        a(f"""
        v_add_u32 v60, {512*it}, v0
        v_mul_u32_u24 v61, 2731, v60
        v_lshrrev_b32 v61, 16, v61
        v_mul_u32_u24 v62, 24, v61
        v_sub_u32 v62, v60, v62
        v_mul_u32_u24 v63, {RS}, v61
        v_lshl_add_u32 v63, v62, 4, v63
        ds_read_b128 v[{t}:{t+3}], v63
        v_lshl_add_u32 v62, v62, 3, s48
        v_add_u32 v61, s49, v61
        v_mul_lo_u32 v61, v61, s47
        v_lshrrev_b32 v63, 11, v62
        v_lshlrev_b32 v63, 23, v63
        v_and_b32 v62, 2047, v62
        v_add_u32 v61, v61, v63
        v_lshl_add_u32 v{52+(it%8)}, v62, 1, v61
        """)
        if it % 4 == 3:
            for jt in range(it - 3, it + 1):
                t = 20 + 4 * (jt % 8)
                a(f"s_waitcnt lgkmcnt({it-jt})")
                a(f"buffer_store_dwordx4 v[{t}:{t+3}], v{52+(jt%8)}, s[{SRD_A}:{SRD_A+3}], 0 offen sc1")
    a("s_waitcnt vmcnt(0)")
    a("s_barrier")
    a("s_cmp_ge_u32 s3, 4")
    a("s_cbranch_scc1 K_done")
    a("s_cmp_lg_u32 s3, 0")
    a("s_cbranch_scc1 K_g1sig")
    signal(a, 41)
    a.label("K_g1sig")
    stamp(a, 4)
    consumer_addr_setup(a, "KN")
    consumer_loop(a, "G2c", "KN", *G2, S_N2, 5)
    stamp(a, 6)
    srd_off(a, SRD_A, S_WS, WS_P, P_BYTES)
    a(f"""
    s_mul_i32 s42, s{S_L}, {P_TILE}
    s_mul_i32 s41, s3, 24576
    s_add_u32 s42, s42, s41
    v_and_b32 v60, 63, v0
    v_lshlrev_b32 v60, 4, v60
    s_add_u32 s43, s3, 5
    s_sub_u32 s43, s43, s{S_SPLIT}
    """)
    for i in range(6):
        sk = a.new("pst")
        a(f"s_add_u32 s40, s43, {i}")
        a("s_cmp_eq_u32 s40, 5")
        a(f"s_cbranch_scc1 {sk}")
        a("s_cmp_eq_u32 s40, 10")
        a(f"s_cbranch_scc1 {sk}")
        a(f"s_add_u32 s41, s42, {i*4096}")
        for g in range(4):
            c = ACC + 16 * i + 4 * g
            a(f"buffer_store_dwordx4 v[{c}:{c+3}], v60, s[{SRD_A}:{SRD_A+3}], s41 offen offset:{g*1024} sc1")
        a.label(sk)
    a("s_waitcnt vmcnt(0)")
    a("s_barrier")
    a(f"""
    s_lshl_b32 s41, s{S_TILE}, 8
    s_add_u32 s41, s41, {C_P*256}
    s_lshl_b32 s47, s{S_SPLIT}, 3
    s_add_u32 s47, s47, s41
    s_cmp_lg_u32 s3, 0
    s_cbranch_scc1 K_psig
    """)
    signal(a, 47)
    a("s_branch K_psig2")
    a.label("K_psig")
    get_nonce(a)
    a.label("K_psig2")
    a("v_and_b32 v59, 63, v0")
    a("v_lshlrev_b32 v59, 4, v59")
    srd(a, SRD_B, S_X, XN_BYTES)
    srd(a, SRD_C, S_OUT, XN_BYTES)
    a(f"""
    s_lshl_b32 s49, s{S_MT2}, 7
    s_lshl_b32 s40, s{S_WM}, 6
    s_add_u32 s49, s49, s40
    s_mul_i32 s48, s{S_NT2}, 384
    s_mul_i32 s40, s{S_WN}, 192
    s_add_u32 s48, s48, s40
    v_and_b32 v2, 63, v0
    v_and_b32 v3, 31, v2
    v_lshrrev_b32 v4, 5, v2
    v_add_u32 v3, s49, v3
    v_mul_u32_u24 v3, 1152, v3
    v_add_u32 v3, s48, v3
    v_lshl_add_u32 v5, v4, 3, v3
    v_lshl_add_u32 v6, v4, 4, v3
    s_mul_i32 s42, s{S_TILE}, {P_TILE}
    s_mul_i32 s40, s3, 24576
    s_add_u32 s42, s42, s40
    """)
    poll(a, 41, 0x1f)
    stamp(a, 7)
    for i in range(6):
        mi, ni = divmod(i, 3)
        sk = a.new("fin")
        go = a.new("fing")
        a(f"s_add_u32 s40, s43, {i}")
        a("s_cmp_eq_u32 s40, 5")
        a(f"s_cbranch_scc1 {go}")
        a("s_cmp_lg_u32 s40, 10")
        a(f"s_cbranch_scc1 {sk}")
        a.label(go)
        boff = mi * 32 * 1152 + ni * 64
        a(f"s_mov_b32 s40, {boff}")
        for g in range(4):
            a(f"buffer_load_dwordx2 v[{8+2*g}:{9+2*g}], v5, s[{SRD_B}:{SRD_B+3}], s40 offen offset:{g*16}")
        c0 = ACC + 16 * i
        for half in range(2):
            for dd in range(2):
                d = 1 + 2 * half + dd
                a(f"s_add_u32 s44, s{S_SPLIT}, {d}")
                a("s_sub_u32 s45, s44, 5")
                a("s_cmp_ge_u32 s44, 5")
                a("s_cselect_b32 s44, s45, s44")
                a(f"s_mul_i32 s44, s44, {G2_TILES*P_TILE}")
                a("s_add_u32 s44, s44, s42")
                a(f"s_add_u32 s44, s44, {i*4096}")
                for g in range(4):
                    r = 16 + 16 * dd + 4 * g
                    a(f"buffer_load_dwordx4 v[{r}:{r+3}], v59, s[{SRD_A}:{SRD_A+3}], s44 offen offset:{g*1024} sc1")
            for dd in range(2):
                a(f"s_waitcnt vmcnt({4 if dd == 0 else 0})")
                for r in range(16):
                    a(f"v_add_f32 v{c0+r}, v{c0+r}, v{16+16*dd+r}")
        for g in range(4):
            c = c0 + 4 * g
            a(f"""
            v_lshlrev_b32 v16, 16, v{8+2*g}
            v_and_b32 v17, 0xffff0000, v{8+2*g}
            v_lshlrev_b32 v18, 16, v{9+2*g}
            v_and_b32 v19, 0xffff0000, v{9+2*g}
            v_add_f32 v{c}, v{c}, v16
            v_add_f32 v{c+1}, v{c+1}, v17
            v_add_f32 v{c+2}, v{c+2}, v18
            v_add_f32 v{c+3}, v{c+3}, v19
            v_cvt_pk_bf16_f32 v{48+2*g}, v{c}, v{c+1}
            v_cvt_pk_bf16_f32 v{49+2*g}, v{c+2}, v{c+3}
            """)
        a("s_nop 1")
        a("v_permlane32_swap_b32 v48, v50")
        a("v_permlane32_swap_b32 v49, v51")
        a("v_permlane32_swap_b32 v52, v54")
        a("v_permlane32_swap_b32 v53, v55")
        a(f"s_mov_b32 s40, {boff}")
        a(f"buffer_store_dwordx4 v[48:51], v6, s[{SRD_C}:{SRD_C+3}], s40 offen")
        a(f"buffer_store_dwordx4 v[52:55], v6, s[{SRD_C}:{SRD_C+3}], s40 offen offset:32")
        a("s_nop 1")
        a.label(sk)
    if STAMP:
        a("s_waitcnt vmcnt(0)")
    flush_stamps(a, 9)
    a("s_endpgm")

    a.label("K_loader")
    a("s_cmp_ge_u32 s3, 10")
    a("s_cbranch_scc1 K_loadB")
    srd_off(a, SRD_A, S_WS, WS_XN, XN_BYTES)
    voff_ktype(a, 1152, 1, 2)
    a(f"""
    s_sub_u32 s59, s3, 8
    s_lshl_b32 s41, s{S_MT1}, 8
    s_lshl_b32 s56, s59, 7
    s_add_u32 s41, s41, s56
    s_mul_i32 s55, s41, 1152
    s_lshl_b32 s56, s59, 14
    s_barrier
    s_lshl_b32 s41, s{S_MT1}, 8
    s_add_u32 s41, s41, {C_LN*256}
    """)
    get_nonce(a)
    poll(a, 41, 0x3fffffff)

    def issueA1():
        a("s_lshl_b32 s57, s50, 7")
        a("s_add_u32 s57, s57, s55")
        a("s_add_u32 s58, s51, s56")
        issue_k(a, 16, 1152, "sc1")
    loader_loop(a, "G1lA", G1[1], 16, G1[0], 0, issueA1, S_NS)
    a("s_barrier")
    a("s_barrier")
    voff_ktype(a, 4096, 1, 2)
    a(f"""
    s_add_u32 s60, s{S_WS}, {WS_H}
    s_addc_u32 s61, s{S_WS+1}, 0
    s_mov_b32 s{SRD_A+2}, {PANEL}
    s_lshl_b32 s41, s{S_MT2}, 7
    s_lshl_b32 s56, s59, 6
    s_add_u32 s41, s41, s56
    s_lshl_b32 s55, s41, 12
    s_lshl_b32 s56, s59, 13
    s_cmp_lt_u32 s{S_SPLIT}, 2
    s_cbranch_scc1 G2lA_nopoll
    s_lshr_b32 s41, s{S_MT2}, 1
    s_mul_i32 s41, s41, 3
    s_add_u32 s41, s41, s{S_SPLIT}
    s_sub_u32 s41, s41, 2
    s_lshl_b32 s41, s41, 8
    s_add_u32 s41, s41, {C_H*256}
    s_cmp_eq_u32 s{S_SPLIT}, 2
    s_cselect_b32 s42, 0x3f, 0x1ff
    """)
    poll(a, 41, "s42")
    a.label("G2lA_nopoll")

    def issueA2():
        a(f"""
        s_add_u32 s62, s50, s{S_K0}
        s_lshr_b32 s63, s62, 5
        s_sub_u32 s64, s63, 2
        s_lshl_b32 s64, s64, 23
        s_add_u32 s{SRD_A}, s60, s64
        s_addc_u32 s{SRD_A+1}, s61, 0
        s_cmp_eq_u32 s63, 0
        s_cselect_b32 s{SRD_A}, s{S_WSRE}, s{SRD_A}
        s_cselect_b32 s{SRD_A+1}, s{S_WSRE+1}, s{SRD_A+1}
        s_cmp_eq_u32 s63, 1
        s_cselect_b32 s{SRD_A}, s{S_WSIM}, s{SRD_A}
        s_cselect_b32 s{SRD_A+1}, s{S_WSIM+1}, s{SRD_A+1}
        s_and_b32 s{SRD_A+1}, s{SRD_A+1}, 0xffff
        s_and_b32 s57, s62, 31
        s_lshl_b32 s57, s57, 7
        s_add_u32 s57, s57, s55
        s_add_u32 s58, s51, s56
        """)
        issue_k(a, 8, 4096, "sc1")
    loader_loop(a, "G2lA", G2[1], 8, G2[0], 0, issueA2, S_N2)
    a("s_endpgm")

    a.label("K_loadB")
    a("s_sub_u32 s59, s3, 10")
    a(f"s_cmp_ge_u32 s{S_NT1}, 6")
    a("s_cbranch_scc1 G1_loadBKN")
    a(f"""
    s_cmp_ge_u32 s{S_NT1}, 3
    s_cselect_b32 s60, s{S_WDIM}, s{S_WDRE}
    s_cselect_b32 s61, s{S_WDIM+1}, s{S_WDRE+1}
    s_cselect_b32 s41, 3, 0
    s_sub_u32 s41, s{S_NT1}, s41
    s_mul_i32 s41, s41, 192
    s_mul_i32 s56, s59, 96
    s_add_u32 s41, s41, s56
    s_mul_i32 s55, s41, 1152
    s_mul_i32 s56, s59, 12288
    """)
    srd(a, SRD_A, 60, WD_BYTES)
    voff_ktype(a, 1152, 1, 2)

    def issueBNK():
        a("s_lshl_b32 s57, s50, 7")
        a("s_add_u32 s57, s57, s55")
        a("s_add_u32 s58, s51, s56")
        issue_k(a, 12, 1152)
    loader_loop(a, "G1lBNK", G1[3], 12, G1[2], LDS_B, issueBNK, S_NS, mid=lambda: a("s_barrier"))
    a("s_branch G2_loadB")
    a.label("G1_loadBKN")
    srd(a, SRD_A, S_W1, W1_BYTES)
    voff_ntype(a, 9216, 1)
    a(f"""
    s_sub_u32 s41, s{S_NT1}, 6
    s_mul_i32 s55, s41, 384
    s_mul_i32 s56, s59, {32*9216}
    s_add_u32 s55, s55, s56
    s_mul_i32 s56, s59, 12288
    """)

    def issueBKN():
        a(f"s_mul_i32 s57, s50, {64*9216}")
        a("s_add_u32 s57, s57, s55")
        a("s_add_u32 s58, s51, s56")
        issue_n(a, 9216)
    loader_loop(a, "G1lBKN", G1[3], 12, G1[2], LDS_B, issueBKN, S_NS, mid=lambda: a("s_barrier"))
    a.label("G2_loadB")
    a("s_barrier")
    a("s_barrier")
    voff_ntype(a, 1152, 1)
    get_nonce(a)
    a(f"""
    s_add_u32 s60, s{S_WS}, {WS_AB}
    s_addc_u32 s61, s{S_WS+1}, 0
    s_mul_i32 s55, s{S_NT2}, 384
    s_mul_i32 s56, s59, {32*1152}
    s_add_u32 s55, s55, s56
    s_mul_i32 s56, s59, 12288
    s_cmp_ge_u32 s{S_SPLIT}, 2
    s_cbranch_scc1 G2lB_p2
    s_lshl_b32 s41, s{S_NT2}, 8
    s_add_u32 s41, s41, {C_AB*256}
    """)
    poll(a, 41, 0xff)
    a.label("G2lB_p2")
    a(f"""
    s_cmp_eq_u32 s{S_SPLIT}, 0
    s_cbranch_scc1 G2lB_nopoll
    s_cmp_ge_u32 s{S_SPLIT}, 3
    s_cbranch_scc1 G2lB_nopoll
    s_lshl_b32 s41, s{S_NT2}, 8
    s_add_u32 s41, s41, {(C_AB+3)*256}
    """)
    poll(a, 41, 0xff)
    a.label("G2lB_nopoll")

    def issueB2():
        a(f"""
        s_add_u32 s62, s50, s{S_K0}
        s_sub_u32 s63, s62, 64
        s_cmp_lt_u32 s62, 64
        s_cselect_b32 s63, s62, s63
        s_cselect_b32 s{SRD_A}, s60, s{S_W2}
        s_cselect_b32 s{SRD_A+1}, s61, s{S_W2+1}
        s_mov_b32 s{SRD_A+2}, {W2_BYTES}
        s_cselect_b32 s{SRD_A+2}, {AB_BYTES}, s{SRD_A+2}
        s_and_b32 s{SRD_A+1}, s{SRD_A+1}, 0xffff
        s_mul_i32 s57, s63, {64*1152}
        s_add_u32 s57, s57, s55
        s_add_u32 s58, s51, s56
        """)
        issue_n(a, 1152, "sc1")
    loader_loop(a, "G2lB", G2[3], 12, G2[2], LDS_B, issueB2, S_N2)
    a.label("K_done")
    a("s_endpgm")
    return name


def main():
    a = Asm()
    name = gen_kernel(a)
    head = f"; generated by gen2.py\n; @launch grid=({NWG},1,1) block=(768,1,1) lds=163840\n"
    head += '.amdgcn_target "amdgcn-amd-amdhsa--gfx950"\n.text\n'
    tail = f""".section .rodata,"a"
.p2align 6
.amdhsa_kernel {name}
  .amdhsa_next_free_vgpr 160
  .amdhsa_next_free_sgpr 102
  .amdhsa_accum_offset 160
  .amdhsa_group_segment_fixed_size 0
  .amdhsa_kernarg_size 88
  .amdhsa_user_sgpr_count 2
  .amdhsa_user_sgpr_kernarg_segment_ptr 1
  .amdhsa_system_sgpr_workgroup_id_x 1
  .amdhsa_float_denorm_mode_32 3
  .amdhsa_float_denorm_mode_16_64 3
.end_amdhsa_kernel
"""
    open(OUT, "w").write(head + a.text() + tail)


if __name__ == "__main__":
    main()
```

```python
import sys, os
NOLOAD = int(os.environ.get("NOLOAD", "0"))
NOCOMP = int(os.environ.get("NOCOMP", "0"))
STAMP = int(os.environ.get("STAMP", "0"))
WS_STAMP = 0x8000000

NAME = "parallel_sum__spectral_fnet__dense_activation_relu__prompt"
OUT = os.environ.get("OUT", "cdna_kernels/%s.s" % NAME)

WS_XN = 0x0
WS_AB = 0x400000
WS_H = 0x1000000
WS_P = 0x4000000
XN_BYTES = 2048 * 576 * 2
AB_BYTES = 4096 * 576 * 2
PANEL = 2048 * 2048 * 2
W1_BYTES = 576 * 4608 * 2
W2_BYTES = 4608 * 576 * 2
WD_BYTES = 576 * 576 * 2
NSPLIT = 5
G2_TILES = 48
NWG = 240
P_TILE = 128 * 192 * 4
P_BYTES = NWG * P_TILE

C_LN, C_AB, C_H, C_P = 0, 8, 16, 40

S_X, S_WSRE, S_WSIM, S_WDRE, S_WDIM, S_W1, S_W2, S_OUT, S_DBG, S_WS = 4, 6, 8, 10, 12, 16, 18, 20, 22, 24
S_SPLIT, S_TILE, S_MT2, S_NT2, S_K0, S_N2 = 26, 27, 32, 39, 66, 67
SRD_DBG = 28
S_L, S_NT1, S_MT1, S_NS, S_WM, S_WN = 33, 34, 35, 36, 37, 38
SRD_A, SRD_B, SRD_C = 68, 72, 76
SRD_F = 92


class Asm:
    def __init__(self):
        self.lines = []
        self.uid = 0

    def __call__(self, s=""):
        for l in s.split("\n"):
            l = l.strip()
            if NOLOAD and l.endswith(" lds"):
                continue
            if NOCOMP and (l.startswith("v_mfma") or l.startswith("ds_read_b64_tr") or (l.startswith("ds_read_b128") and "offset" in l)):
                continue
            if l:
                self.lines.append("    " + l if not l.endswith(":") else l)

    def label(self, s):
        self.lines.append(s + ":")

    def new(self, p):
        self.uid += 1
        return f"{p}_{self.uid}"

    def text(self):
        return "\n".join(self.lines) + "\n"


def srd(a, d, lo, size):
    a(f"s_mov_b32 s{d}, s{lo}")
    a(f"s_and_b32 s{d+1}, s{lo+1}, 0xffff")
    a(f"s_mov_b32 s{d+2}, {size}")
    a(f"s_mov_b32 s{d+3}, 0x00020000")


def srd_off(a, d, lo, off, size):
    a(f"s_add_u32 s{d}, s{lo}, {off}")
    a(f"s_addc_u32 s{d+1}, s{lo+1}, 0")
    a(f"s_and_b32 s{d+1}, s{d+1}, 0xffff")
    a(f"s_mov_b32 s{d+2}, {size}")
    a(f"s_mov_b32 s{d+3}, 0x00020000")


def stamp(a, i, wait=False):
    if STAMP:
        a("s_memrealtime s[98:99]")
        a("s_waitcnt lgkmcnt(0)")
        a(f"s_mov_b32 s{80+i}, s98")


def flush_stamps(a, n):
    if not STAMP:
        return
    lbl = a.new("ST_skip")
    a("s_cmp_lg_u32 s3, 0")
    a(f"s_cbranch_scc1 {lbl}")
    stamp(a, n - 1)
    if STAMP == 2:
        l2 = a.new("ST2")
        a("v_mov_b32 v1, 0")
        a("s_cmp_lg_u32 s2, 0")
        a(f"s_cbranch_scc1 {l2}")
        for i in range(n):
            a(f"s_sub_u32 s40, s{80+i}, s{S_NLO}")
            a("v_mov_b32 v2, s40")
            a(f"buffer_store_dword v2, v1, s[{SRD_DBG}:{SRD_DBG+3}], 0 offen offset:{8+4*i}")
        a.label(l2)
        a("s_cmp_lg_u32 s2, 101")
        a(f"s_cbranch_scc1 {lbl}")
        for j, i in enumerate((2, 3, 5, 6, 8)):
            a(f"s_sub_u32 s40, s{80+i}, s{S_NLO}")
            a("v_mov_b32 v2, s40")
            a(f"buffer_store_dword v2, v1, s[{SRD_DBG}:{SRD_DBG+3}], 0 offen offset:{44+4*j}")
        a.label(lbl)
        return
    srd_off(a, SRD_A, S_WS, WS_STAMP, 0x10000)
    a("s_lshl_b32 s100, s2, 6")
    a("v_mov_b32 v1, 0")
    a("s_waitcnt lgkmcnt(0)")
    for i in range(n):
        a(f"v_mov_b32 v2, s{80+i}")
        a(f"buffer_store_dword v2, v1, s[{SRD_A}:{SRD_A+3}], s100 offen offset:{4*i}")
    a.label(lbl)


WS_F = 0x3000000
F_BYTES = 96 * 256
S_NLO, S_NHI = 14, 15
POLL_SLEEP = int(os.environ.get("POLL_SLEEP", "4"))
CODEPF = int(os.environ.get("CODEPF", "1"))
TOUCH = os.environ.get("TOUCH", "plain")


def get_nonce(a):
    l = a.new("nonce")
    d = a.new("nonced")
    a("v_mov_b32 v63, 0")
    a("s_mov_b32 s101, 0")
    a.label(l)
    a("s_add_u32 s101, s101, 1")
    a("s_cmp_ge_u32 s101, 0x40000")
    a(f"s_cbranch_scc1 {d}")
    a(f"buffer_load_dwordx2 v[60:61], v63, s[{SRD_DBG}:{SRD_DBG+3}], 0 offen sc1")
    a("s_waitcnt vmcnt(0)")
    a(f"v_readfirstlane_b32 s{S_NLO}, v60")
    a(f"v_readfirstlane_b32 s{S_NHI}, v61")
    a(f"s_or_b32 s40, s{S_NLO}, s{S_NHI}")
    a("s_cmp_lg_u32 s40, 0")
    a(f"s_cbranch_scc1 {d}")
    a("s_sleep 2")
    a(f"s_branch {l}")
    a.label(d)


def signal(a, s_off):
    a(f"""
    v_mov_b32 v60, s{S_NLO}
    v_mov_b32 v61, s{S_NHI}
    v_mov_b32 v63, 0
    s_mov_b64 exec, 1
    buffer_store_dwordx2 v[60:61], v63, s[{SRD_F}:{SRD_F+3}], s{s_off} offen sc1
    s_mov_b64 exec, -1
    """)


def poll(a, s_off, mask):
    l = a.new("poll")
    d = a.new("polld")
    a("v_and_b32 v63, 31, v0")
    a("v_lshlrev_b32 v63, 3, v63")
    a("s_mov_b32 s101, 0")
    a.label(l)
    a("s_add_u32 s101, s101, 1")
    a("s_cmp_ge_u32 s101, 0x40000")
    a(f"s_cbranch_scc1 {d}")
    a(f"buffer_load_dwordx2 v[60:61], v63, s[{SRD_F}:{SRD_F+3}], s{s_off} offen sc1")
    a("s_waitcnt vmcnt(0)")
    a(f"v_cmp_eq_u32 s[62:63], s{S_NLO}, v60")
    a(f"v_cmp_eq_u32 vcc, s{S_NHI}, v61")
    a("s_nop 1")
    a("s_and_b32 s40, s62, vcc_lo")
    a(f"s_and_b32 s40, s40, {mask}")
    a(f"s_cmp_eq_u32 s40, {mask}")
    a(f"s_cbranch_scc1 {d}")
    a(f"s_sleep {POLL_SLEEP}")
    a(f"s_branch {l}")
    a.label(d)


def ln_phase(a):
    a(f"""
    v_lshrrev_b32 v1, 4, v0
    v_mul_u32_u24 v2, 30, v1
    v_add_u32 v2, s{S_NT1}, v2
    s_lshl_b32 s40, s{S_MT1}, 8
    v_add_u32 v3, s40, v2
    v_mul_u32_u24 v3, 1152, v3
    v_and_b32 v4, 15, v0
    v_lshl_add_u32 v3, v4, 3, v3
    v_mov_b32 v4, 0x7f000000
    v_cmp_gt_u32 vcc, 256, v2
    s_nop 1
    v_cndmask_b32 v1, v4, v3, vcc
    """)
    srd(a, SRD_A, S_X, XN_BYTES)
    srd_off(a, SRD_B, S_WS, WS_XN, XN_BYTES)
    for p in range(9):
        a(f"buffer_load_dwordx2 v[{4+2*p}:{5+2*p}], v1, s[{SRD_A}:{SRD_A+3}], 0 offen offset:{p*128}")
    X = 24
    for p in range(9):
        a(f"s_waitcnt vmcnt({8-p})")
        for j in range(2):
            src = 4 + 2 * p + j
            a(f"v_lshlrev_b32 v{X+4*p+2*j}, 16, v{src}")
            a(f"v_and_b32 v{X+4*p+2*j+1}, 0xffff0000, v{src}")
    a(f"v_add_f32 v60, v{X}, v{X+1}")
    a(f"v_add_f32 v61, v{X+2}, v{X+3}")
    for i in range(4, 36, 2):
        a(f"v_add_f32 v60, v60, v{X+i}")
        a(f"v_add_f32 v61, v61, v{X+i+1}")
    a("v_add_f32 v60, v60, v61")

    def allreduce(r, t):
        for sh in (8, 4, 2, 1):
            a("s_nop 1")
            a(f"v_add_f32_dpp v{t}, v{r}, v{r} row_ror:{sh} row_mask:0xf bank_mask:0xf")
            a(f"v_mov_b32 v{r}, v{t}")
    allreduce(60, 61)
    a("v_mul_f32 v60, 0x3ae38e39, v60")
    a(f"v_sub_f32 v62, v{X}, v60")
    a("v_mul_f32 v63, v62, v62")
    a(f"v_sub_f32 v62, v{X+1}, v60")
    a("v_mul_f32 v64, v62, v62")
    for i in range(2, 36, 2):
        a(f"v_sub_f32 v62, v{X+i}, v60")
        a(f"v_sub_f32 v65, v{X+i+1}, v60")
        a("v_fmac_f32 v63, v62, v62")
        a("v_fmac_f32 v64, v65, v65")
    a("v_add_f32 v63, v63, v64")
    allreduce(63, 61)
    a("""
    v_mul_f32 v63, 0x3ae38e39, v63
    v_cvt_pk_bf16_f32 v61, v60, v63
    v_lshlrev_b32 v60, 16, v61
    v_and_b32 v63, 0xffff0000, v61
    v_add_f32 v63, 0x3727c5ac, v63
    v_cvt_pk_bf16_f32 v63, v63, v63
    v_and_b32 v63, 0xffff0000, v63
    v_sqrt_f32 v63, v63
    s_nop 0
    v_cvt_pk_bf16_f32 v63, v63, v63
    v_and_b32 v63, 0xffff0000, v63
    v_rcp_f32 v64, v63
    s_nop 0
    """)
    for p in range(9):
        for j in range(2):
            e0 = X + 4 * p + 2 * j
            e1 = e0 + 1
            a(f"""
            v_sub_f32 v{e0}, v{e0}, v60
            v_sub_f32 v{e1}, v{e1}, v60
            v_cvt_pk_bf16_f32 v66, v{e0}, v{e1}
            v_lshlrev_b32 v{e0}, 16, v66
            v_and_b32 v{e1}, 0xffff0000, v66
            v_mul_f32 v66, v{e0}, v64
            v_mul_f32 v67, v{e1}, v64
            v_fma_f32 v68, -v66, v63, v{e0}
            v_fma_f32 v69, -v67, v63, v{e1}
            v_fmac_f32 v66, v68, v64
            v_fmac_f32 v67, v69, v64
            v_cvt_pk_bf16_f32 v{4+2*p+j}, v66, v67
            """)
        a(f"buffer_store_dwordx2 v[{4+2*p}:{5+2*p}], v1, s[{SRD_B}:{SRD_B+3}], 0 offen offset:{p*128} sc1")
    a("s_waitcnt vmcnt(0)")


V_AB, V_AA, V_BB, V_BA = 1, 5, 9, 13
FR0, FR1, ACC = 20, 40, 64
LDS_B = 65536


def frag(setb, which):
    return setb + {"A0": 0, "A1": 4, "B0": 8, "B1": 12, "B2": 16}[which]


def reads_for(btype, setb, j):
    r = []

    def aread(mi):
        d = frag(setb, f"A{mi}")
        return (f"A{mi}", f"ds_read_b128 v[{d}:{d+3}], v{V_AA+j} offset:{4096*mi}")

    def bread(ni):
        d = frag(setb, f"B{ni}")
        if btype == "NK":
            return [(f"B{ni}", f"ds_read_b128 v[{d}:{d+3}], v{V_BA+j} offset:{4096*ni}")]
        return [(f"B{ni}", f"ds_read_b64_tr_b16 v[{d}:{d+1}], v{V_BA+ni} offset:{(16*j)*384}"),
                (f"B{ni}", f"ds_read_b64_tr_b16 v[{d+2}:{d+3}], v{V_BA+ni} offset:{(16*j+4)*384}")]
    r.append(aread(0))
    r += bread(0)
    r += bread(1)
    r += bread(2)
    r.append(aread(1))
    return r


class LgkmTracker:
    def __init__(self, a):
        self.a = a
        self.out = []

    def issue(self, tag, instr):
        self.a(instr)
        self.out.append(tag)

    def need(self, tags):
        last = -1
        for i, t in enumerate(self.out):
            if t in tags:
                last = i
        if last < 0:
            return
        n = len(self.out) - 1 - last
        assert n <= 15
        self.a(f"s_waitcnt lgkmcnt({n})")
        self.out = self.out[last + 1:]

    def drain(self):
        self.a("s_waitcnt lgkmcnt(0)")
        self.out = []


def substep(a, trk, cur, nxt_reads, curtag, nxttag):
    order = [(0, 0), (0, 1), (0, 2), (1, 0), (1, 1), (1, 2)]
    nr = len(nxt_reads)
    per = [2, 2, 2, 2, 0, 0] if nr == 8 else [2, 1, 1, 1, 0, 0]
    ri = 0
    for idx, (mi, ni) in enumerate(order):
        trk.need([curtag + f"A{mi}", curtag + f"B{ni}"])
        A = frag(cur, f"A{mi}")
        B = frag(cur, f"B{ni}")
        c = ACC + 16 * (3 * mi + ni)
        a(f"v_mfma_f32_32x32x16_bf16 v[{c}:{c+15}], v[{B}:{B+3}], v[{A}:{A+3}], v[{c}:{c+15}]")
        for _ in range(per[idx]):
            t, ins = nxt_reads[ri]
            trk.issue(nxttag + t, ins)
            ri += 1
    assert ri == nr


def consumer_addr_setup(a, btype):
    a(f"""
    v_and_b32 v60, 63, v0
    v_and_b32 v61, 31, v60
    v_lshrrev_b32 v62, 5, v60
    v_lshrrev_b32 v63, 1, v60
    v_and_b32 v63, 7, v63
    s_lshl_b32 s40, s{S_WM}, 6
    v_add_u32 v17, s40, v61
    v_lshlrev_b32 v17, 7, v17
    """)
    for j in range(4):
        a(f"v_add_u32 v18, {2*j}, v62")
        a("v_xor_b32 v18, v18, v63")
        a(f"v_lshl_add_u32 v{V_AB+j}, v18, 4, v17")
    if btype == "NK":
        a(f"""
        s_mul_i32 s40, s{S_WN}, 96
        v_add_u32 v17, s40, v61
        v_lshlrev_b32 v17, 7, v17
        v_add_u32 v17, {LDS_B}, v17
        """)
        for j in range(4):
            a(f"v_add_u32 v18, {2*j}, v62")
            a("v_xor_b32 v18, v18, v63")
            a(f"v_lshl_add_u32 v{V_BB+j}, v18, 4, v17")
    else:
        a(f"""
        v_and_b32 v17, 15, v60
        v_lshrrev_b32 v18, 2, v17
        v_lshl_add_u32 v18, v62, 3, v18
        v_mul_u32_u24 v18, 384, v18
        v_add_u32 v18, {LDS_B}, v18
        v_bfe_u32 v19, v60, 4, 1
        v_lshlrev_b32 v19, 5, v19
        v_add_u32 v18, v18, v19
        v_and_b32 v19, 3, v17
        v_lshlrev_b32 v19, 3, v19
        v_add_u32 v18, v18, v19
        v_lshrrev_b32 v19, 3, v17
        s_mul_i32 s40, s{S_WN}, 3
        """)
        for ni in range(3):
            a(f"s_add_u32 s41, s40, {ni}")
            a("v_xor_b32 v17, s41, v19")
            a(f"v_lshl_add_u32 v{V_BB+ni}, v17, 6, v18")


def consumer_loop(a, pfx, btype, SA, NSA, SB, NSB, s_nsteps, st):
    nb = 4 if btype == "NK" else 3
    for i in range(96):
        a(f"v_mov_b32 v{ACC+i}, 0")
    a("s_mov_b32 s44, 0")
    a("s_mov_b32 s45, 0")
    a("s_mov_b32 s46, 0")
    for j in range(4):
        a(f"v_mov_b32 v{V_AA+j}, v{V_AB+j}")
    for j in range(nb):
        a(f"v_mov_b32 v{V_BA+j}, v{V_BB+j}")
    a("s_barrier")
    stamp(a, st, True)
    trk = LgkmTracker(a)
    for t, ins in reads_for(btype, FR0, 0):
        trk.issue("s0" + t, ins)
    a.label(f"{pfx}_loop")
    entry_state = list(trk.out)
    substep(a, trk, FR0, reads_for(btype, FR1, 1), "s0", "s1")
    substep(a, trk, FR1, reads_for(btype, FR0, 2), "s1", "s2")
    substep(a, trk, FR0, reads_for(btype, FR1, 3), "s2", "s3")
    a(f"""
    s_add_u32 s44, s44, {SA}
    s_cmp_ge_u32 s44, {SA*NSA}
    s_cselect_b32 s44, 0, s44
    s_add_u32 s45, s45, {SB}
    s_cmp_ge_u32 s45, {SB*NSB}
    s_cselect_b32 s45, 0, s45
    """)
    trk.drain()
    for j in range(4):
        a(f"v_add_u32 v{V_AA+j}, s44, v{V_AB+j}")
    for j in range(nb):
        a(f"v_add_u32 v{V_BA+j}, s45, v{V_BB+j}")
    a("s_barrier")
    substep(a, trk, FR1, reads_for(btype, FR0, 0), "s3", "s0")
    assert trk.out == entry_state
    a(f"""
    s_add_u32 s46, s46, 1
    s_cmp_lt_u32 s46, s{s_nsteps}
    s_cbranch_scc1 {pfx}_loop
    s_waitcnt lgkmcnt(0)
    s_nop 15
    s_nop 3
    """)


def loader_loop(a, pfx, NS, L, slot_bytes, ring_base, issue_fn, s_nsteps, mid=None):
    a("s_mov_b32 s50, 0")
    a(f"s_mov_b32 s51, {ring_base}")
    for j in range(NS):
        issue_fn()
        a("s_add_u32 s50, s50, 1")
        a(f"s_add_u32 s51, s51, {slot_bytes}")
    a(f"s_mov_b32 s51, {ring_base}")
    if mid:
        mid()
    a(f"s_waitcnt vmcnt({(NS-1)*L})")
    a("s_barrier")
    a("s_mov_b32 s52, 0")
    a.label(f"{pfx}_loop")
    a(f"s_sub_i32 s53, s{s_nsteps}, s52")
    a("s_sub_i32 s53, s53, 2")
    for c in range(NS - 2, 0, -1):
        a(f"s_cmp_ge_i32 s53, {c}")
        a(f"s_cbranch_scc1 {pfx}_w{c}")
    a("s_waitcnt vmcnt(0)")
    a(f"s_branch {pfx}_bar")
    for c in range(1, NS - 1):
        a.label(f"{pfx}_w{c}")
        a(f"s_waitcnt vmcnt({c*L})")
        if c != NS - 2:
            a(f"s_branch {pfx}_bar")
    a.label(f"{pfx}_bar")
    a("s_barrier")
    a(f"s_cmp_ge_u32 s50, s{s_nsteps}")
    a(f"s_cbranch_scc1 {pfx}_skip")
    issue_fn()
    a("s_add_u32 s50, s50, 1")
    a(f"s_add_u32 s51, s51, {slot_bytes}")
    a(f"s_cmp_ge_u32 s51, {ring_base + NS*slot_bytes}")
    a(f"s_cselect_b32 s51, {ring_base}, s51")
    a.label(f"{pfx}_skip")
    a(f"""
    s_add_u32 s52, s52, 1
    s_cmp_lt_u32 s52, s{s_nsteps}
    s_cbranch_scc1 {pfx}_loop
    """)


def voff_ktype(a, stride, ve, vo):
    a(f"""
    v_and_b32 v60, 63, v0
    v_lshrrev_b32 v61, 3, v60
    v_mul_u32_u24 v61, {stride}, v61
    v_and_b32 v62, 7, v60
    v_lshrrev_b32 v63, 4, v60
    v_xor_b32 v62, v62, v63
    v_lshl_add_u32 v{ve}, v62, 4, v61
    v_xor_b32 v62, 4, v62
    v_lshl_add_u32 v{vo}, v62, 4, v61
    """)


def voff_ntype(a, stride, vb):
    for p in range(192):
        assert (p * 2731) >> 16 == p // 24
    a("v_and_b32 v60, 63, v0")
    for b in range(3):
        a(f"""
        v_add_u32 v61, {64*b}, v60
        v_mul_u32_u24 v62, 2731, v61
        v_lshrrev_b32 v62, 16, v62
        v_mul_u32_u24 v63, 24, v62
        v_sub_u32 v61, v61, v63
        v_and_b32 v63, 2, v62
        v_lshlrev_b32 v63, 1, v63
        v_xor_b32 v61, v61, v63
        v_mul_u32_u24 v62, {stride}, v62
        v_lshl_add_u32 v{vb+b}, v61, 4, v62
        """)


def issue_k(a, nq, stride, flags=""):
    for q in range(nq):
        a(f"s_add_u32 m0, s58, {q*1024}")
        a(f"s_add_u32 s54, s57, {q*8*stride}")
        a(f"buffer_load_dwordx4 v{2 if q & 1 else 1}, s[{SRD_A}:{SRD_A+3}], s54 offen {flags} lds")


def issue_n(a, stride, flags=""):
    for aa in range(4):
        for b in range(3):
            a(f"s_add_u32 m0, s58, {(3*aa+b)*1024}")
            a(f"s_add_u32 s54, s57, {aa*8*stride}")
            a(f"buffer_load_dwordx4 v{1+b}, s[{SRD_A}:{SRD_A+3}], s54 offen {flags} lds")


def gen_kernel(a):
    name = NAME + "_kernel"
    G1 = (32768, 2, 24576, 4)
    G2 = (16384, 4, 24576, 4)
    RS = 400
    a.lines.append(f".globl {name}")
    a.lines.append(".p2align 8")
    a.lines.append(f".type {name},@function")
    a.label(name)
    a(f"""
    s_cmp_ge_u32 s2, {NWG}
    s_cbranch_scc1 K_done
    """)
    stamp(a, 0)
    if CODEPF:
        a(f"""
        s_getpc_b64 s[40:41]
        """)
        a.label("K_pc")
        a(f"""
        v_subrev_u32 v2, 256, v0
        v_cmp_gt_u32 vcc, (K_end-{name})/128+1, v2
        s_and_saveexec_b64 s[42:43], vcc
        s_cbranch_execz K_nopf
        s_sub_u32 s40, s40, K_pc-{name}
        s_subb_u32 s41, s41, 0
        v_lshlrev_b32 v2, 7, v2
        v_mov_b32 v3, s41
        v_add_co_u32 v2, vcc, s40, v2
        s_nop 1
        v_addc_co_u32 v3, vcc, 0, v3, vcc
        global_load_dword v58, v[2:3], off
        """)
        a.label("K_nopf")
        a("s_mov_b64 exec, s[42:43]")
    a(f"""
    s_load_dwordx8 s[4:11], s[0:1], 0
    s_load_dwordx2 s[12:13], s[0:1], 32
    s_load_dwordx4 s[16:19], s[0:1], 48
    s_load_dwordx4 s[20:23], s[0:1], 64
    s_load_dwordx2 s[24:25], s[0:1], 80
    v_lshrrev_b32 v1, 6, v0
    s_and_b32 s33, s2, 7
    s_mul_i32 s33, s33, 30
    s_lshr_b32 s34, s2, 3
    v_readfirstlane_b32 s3, v1
    s_add_u32 s{S_L}, s33, s34
    s_lshr_b32 s{S_NT1}, s{S_L}, 3
    s_and_b32 s{S_MT1}, s{S_L}, 7
    s_mul_i32 s{S_SPLIT}, s{S_L}, 1366
    s_lshr_b32 s{S_SPLIT}, s{S_SPLIT}, 16
    s_mul_i32 s40, s{S_SPLIT}, 48
    s_sub_u32 s{S_TILE}, s{S_L}, s40
    s_mul_i32 s{S_MT2}, s{S_TILE}, 21846
    s_lshr_b32 s{S_MT2}, s{S_MT2}, 16
    s_mul_i32 s40, s{S_MT2}, 3
    s_sub_u32 s{S_NT2}, s{S_TILE}, s40
    s_mul_i32 s{S_K0}, s{S_SPLIT}, 27
    s_add_u32 s{S_K0}, s{S_K0}, 1
    s_mov_b32 s{S_N2}, 27
    s_cmp_eq_u32 s{S_SPLIT}, 0
    s_cselect_b32 s{S_K0}, 0, s{S_K0}
    s_cselect_b32 s{S_N2}, 28, s{S_N2}
    s_mov_b32 s{S_NS}, 9
    s_waitcnt lgkmcnt(0)
    """)
    for L in range(240):
        assert (L * 1366) >> 16 == L // 48
    for r in range(48):
        assert (r * 21846) >> 16 == r // 3
    srd(a, SRD_DBG, S_DBG, 256)
    srd_off(a, SRD_F, S_WS, WS_F, F_BYTES)
    a(f"""
    s_or_b32 s40, s2, s3
    s_cmp_lg_u32 s40, 0
    s_cbranch_scc1 K_nopub
    s_memrealtime s[40:41]
    s_waitcnt lgkmcnt(0)
    s_or_b32 s40, s40, 1
    v_mov_b32 v60, s40
    v_mov_b32 v61, s41
    v_mov_b32 v63, 0
    s_mov_b64 exec, 1
    buffer_store_dwordx2 v[60:61], v63, s[{SRD_DBG}:{SRD_DBG+3}], 0 offen sc1
    s_mov_b64 exec, -1
    """)
    a.label("K_nopub")
    a("s_cmp_ge_u32 s3, 8")
    a("s_cbranch_scc1 K_loader")
    a("s_cmp_ge_u32 s3, 3")
    a("s_cbranch_scc1 K_lnskip")
    ln_phase(a)
    if TOUCH:
        fl = "" if TOUCH == "plain" else TOUCH
        a("s_branch K_lnskip2")
        a.label("K_lnskip")
        srd(a, SRD_A, S_WSRE, PANEL)
        srd(a, SRD_B, S_WSIM, PANEL)
        srd(a, SRD_C, S_W2, W2_BYTES)
        a(f"""
        v_subrev_u32 v1, 192, v0
        s_mul_i32 s40, s{S_L}, 274
        v_add_u32 v2, s40, v1
        v_lshlrev_b32 v2, 7, v2
        s_mul_i32 s40, s{S_L}, 173
        v_add_u32 v3, s40, v1
        v_lshlrev_b32 v3, 7, v3
        v_mov_b32 v4, 0x7f000000
        v_cmp_gt_u32 vcc, 274, v1
        s_nop 1
        v_cndmask_b32 v2, v4, v2, vcc
        v_cmp_gt_u32 vcc, 173, v1
        s_nop 1
        v_cndmask_b32 v3, v4, v3, vcc
        buffer_load_dword v58, v2, s[{SRD_A}:{SRD_A+3}], 0 offen {fl}
        buffer_load_dword v58, v2, s[{SRD_B}:{SRD_B+3}], 0 offen {fl}
        buffer_load_dword v58, v3, s[{SRD_C}:{SRD_C+3}], 0 offen {fl}
        """)
        a.label("K_lnskip2")
    else:
        a.label("K_lnskip")
    a("s_barrier")
    a("s_cmp_lg_u32 s3, 0")
    a("s_cbranch_scc1 K_lnsig")
    get_nonce(a)
    a(f"s_lshl_b32 s41, s{S_MT1}, 8")
    a(f"s_lshl_b32 s40, s{S_NT1}, 3")
    a("s_add_u32 s41, s41, s40")
    a(f"s_add_u32 s41, s41, {C_LN*256}")
    signal(a, 41)
    a.label("K_lnsig")
    stamp(a, 1)
    a(f"s_lshr_b32 s{S_WM}, s3, 1")
    a(f"s_and_b32 s{S_WN}, s3, 1")
    a(f"s_cmp_ge_u32 s{S_NT1}, 6")
    a("s_cbranch_scc1 G1_consKN")
    consumer_addr_setup(a, "NK")
    consumer_loop(a, "G1cNK", "NK", *G1, S_NS, 2)
    a("s_branch G1_epi")
    a.label("G1_consKN")
    consumer_addr_setup(a, "KN")
    consumer_loop(a, "G1cKN", "KN", *G1, S_NS, 2)
    a.label("G1_epi")
    a("s_waitcnt vmcnt(0)")
    stamp(a, 3)
    a(f"""
    s_mov_b32 s42, 0
    s_cmp_ge_u32 s{S_NT1}, 3
    s_cselect_b32 s42, 0x80008000, s42
    s_cmp_ge_u32 s{S_NT1}, 6
    s_cselect_b32 s42, 0, s42
    s_mov_b32 s43, 0xff800000
    s_cselect_b32 s43, 0, s43
    v_and_b32 v60, 63, v0
    v_and_b32 v61, 31, v60
    v_lshrrev_b32 v62, 5, v60
    s_lshl_b32 s40, s{S_WM}, 6
    v_add_u32 v61, s40, v61
    v_mul_u32_u24 v61, {RS}, v61
    s_mul_i32 s40, s{S_WN}, 192
    v_lshl_add_u32 v61, v62, 3, v61
    v_add_u32 v61, s40, v61
    """)
    for mi in range(2):
        for ni in range(3):
            for g in range(4):
                c = ACC + 16 * (3 * mi + ni) + 4 * g
                t = 20 + 2 * ((ni * 4 + g) & 7)
                for r in range(4):
                    a(f"v_max_f32 v{c+r}, s43, v{c+r}")
                a(f"v_cvt_pk_bf16_f32 v{t}, v{c}, v{c+1}")
                a(f"v_cvt_pk_bf16_f32 v{t+1}, v{c+2}, v{c+3}")
                a(f"v_xor_b32 v{t}, s42, v{t}")
                a(f"v_xor_b32 v{t+1}, s42, v{t+1}")
                a(f"ds_write_b64 v61, v[{t}:{t+1}] offset:{mi*32*RS + ni*64 + g*16}")
    a("s_waitcnt lgkmcnt(0)")
    a("s_barrier")
    srd_off(a, SRD_A, S_WS, WS_AB, AB_BYTES)
    srd_off(a, SRD_B, S_WS, WS_H, 3 * PANEL)
    a(f"""
    s_lshl_b32 s49, s{S_MT1}, 8
    s_cmp_ge_u32 s{S_NT1}, 6
    s_cbranch_scc1 G1_epiH
    s_cmp_ge_u32 s{S_NT1}, 3
    s_cselect_b32 s41, 2048, 0
    s_cselect_b32 s40, 3, 0
    s_add_u32 s49, s49, s41
    s_sub_u32 s40, s{S_NT1}, s40
    s_mul_i32 s48, s40, 192
    s_mov_b32 s47, 1152
    s_lshl_b32 s41, s{S_NT1}, 8
    s_lshl_b32 s40, s{S_MT1}, 3
    s_add_u32 s41, s41, s40
    s_add_u32 s41, s41, {C_AB*256}
    s_branch G1_epiS
    """)
    a.label("G1_epiH")
    a(f"""
    s_mov_b32 s{SRD_A}, s{SRD_B}
    s_mov_b32 s{SRD_A+1}, s{SRD_B+1}
    s_mov_b32 s{SRD_A+2}, s{SRD_B+2}
    s_sub_u32 s40, s{S_NT1}, 6
    s_mul_i32 s48, s40, 192
    s_mov_b32 s47, 4096
    s_mul_i32 s41, s{S_MT1}, 3
    s_mov_b32 s46, s40
    s_cmp_ge_u32 s40, 6
    s_addc_u32 s41, s41, 0
    s_cmp_ge_u32 s40, 6
    s_cselect_b32 s45, 6, 0
    s_cmp_ge_u32 s40, 15
    s_addc_u32 s41, s41, 0
    s_cmp_ge_u32 s40, 15
    s_cselect_b32 s45, 15, s45
    s_sub_u32 s46, s46, s45
    s_lshl_b32 s41, s41, 8
    s_lshl_b32 s46, s46, 3
    s_add_u32 s41, s41, s46
    s_add_u32 s41, s41, {C_H*256}
    """)
    a.label("G1_epiS")
    for it in range(12):
        t = 20 + 4 * (it % 8)
        a(f"""
        v_add_u32 v60, {512*it}, v0
        v_mul_u32_u24 v61, 2731, v60
        v_lshrrev_b32 v61, 16, v61
        v_mul_u32_u24 v62, 24, v61
        v_sub_u32 v62, v60, v62
        v_mul_u32_u24 v63, {RS}, v61
        v_lshl_add_u32 v63, v62, 4, v63
        ds_read_b128 v[{t}:{t+3}], v63
        v_lshl_add_u32 v62, v62, 3, s48
        v_add_u32 v61, s49, v61
        v_mul_lo_u32 v61, v61, s47
        v_lshrrev_b32 v63, 11, v62
        v_lshlrev_b32 v63, 23, v63
        v_and_b32 v62, 2047, v62
        v_add_u32 v61, v61, v63
        v_lshl_add_u32 v{52+(it%8)}, v62, 1, v61
        """)
        if it % 4 == 3:
            for jt in range(it - 3, it + 1):
                t = 20 + 4 * (jt % 8)
                a(f"s_waitcnt lgkmcnt({it-jt})")
                a(f"buffer_store_dwordx4 v[{t}:{t+3}], v{52+(jt%8)}, s[{SRD_A}:{SRD_A+3}], 0 offen sc1")
    a("s_waitcnt vmcnt(0)")
    a("s_barrier")
    a("s_cmp_ge_u32 s3, 4")
    a("s_cbranch_scc1 K_done")
    a("s_cmp_lg_u32 s3, 0")
    a("s_cbranch_scc1 K_g1sig")
    signal(a, 41)
    a.label("K_g1sig")
    stamp(a, 4)
    consumer_addr_setup(a, "KN")
    consumer_loop(a, "G2c", "KN", *G2, S_N2, 5)
    stamp(a, 6)
    srd_off(a, SRD_A, S_WS, WS_P, P_BYTES)
    a(f"""
    s_mul_i32 s42, s{S_L}, {P_TILE}
    s_mul_i32 s41, s3, 24576
    s_add_u32 s42, s42, s41
    v_and_b32 v60, 63, v0
    v_lshlrev_b32 v60, 4, v60
    s_add_u32 s43, s3, 5
    s_sub_u32 s43, s43, s{S_SPLIT}
    """)
    for i in range(6):
        sk = a.new("pst")
        a(f"s_add_u32 s40, s43, {i}")
        a("s_cmp_eq_u32 s40, 5")
        a(f"s_cbranch_scc1 {sk}")
        a("s_cmp_eq_u32 s40, 10")
        a(f"s_cbranch_scc1 {sk}")
        a(f"s_add_u32 s41, s42, {i*4096}")
        for g in range(4):
            c = ACC + 16 * i + 4 * g
            a(f"buffer_store_dwordx4 v[{c}:{c+3}], v60, s[{SRD_A}:{SRD_A+3}], s41 offen offset:{g*1024} sc1")
        a.label(sk)
    a("s_waitcnt vmcnt(0)")
    a("s_barrier")
    a(f"""
    s_lshl_b32 s41, s{S_TILE}, 8
    s_add_u32 s41, s41, {C_P*256}
    s_lshl_b32 s47, s{S_SPLIT}, 3
    s_add_u32 s47, s47, s41
    s_cmp_lg_u32 s3, 0
    s_cbranch_scc1 K_psig
    """)
    signal(a, 47)
    a("s_branch K_psig2")
    a.label("K_psig")
    get_nonce(a)
    a.label("K_psig2")
    a("v_and_b32 v59, 63, v0")
    a("v_lshlrev_b32 v59, 4, v59")
    srd(a, SRD_B, S_X, XN_BYTES)
    srd(a, SRD_C, S_OUT, XN_BYTES)
    a(f"""
    s_lshl_b32 s49, s{S_MT2}, 7
    s_lshl_b32 s40, s{S_WM}, 6
    s_add_u32 s49, s49, s40
    s_mul_i32 s48, s{S_NT2}, 384
    s_mul_i32 s40, s{S_WN}, 192
    s_add_u32 s48, s48, s40
    v_and_b32 v2, 63, v0
    v_and_b32 v3, 31, v2
    v_lshrrev_b32 v4, 5, v2
    v_add_u32 v3, s49, v3
    v_mul_u32_u24 v3, 1152, v3
    v_add_u32 v3, s48, v3
    v_lshl_add_u32 v5, v4, 3, v3
    v_lshl_add_u32 v6, v4, 4, v3
    s_mul_i32 s42, s{S_TILE}, {P_TILE}
    s_mul_i32 s40, s3, 24576
    s_add_u32 s42, s42, s40
    """)
    poll(a, 41, 0x1f)
    stamp(a, 7)
    for i in range(6):
        mi, ni = divmod(i, 3)
        sk = a.new("fin")
        go = a.new("fing")
        a(f"s_add_u32 s40, s43, {i}")
        a("s_cmp_eq_u32 s40, 5")
        a(f"s_cbranch_scc1 {go}")
        a("s_cmp_lg_u32 s40, 10")
        a(f"s_cbranch_scc1 {sk}")
        a.label(go)
        boff = mi * 32 * 1152 + ni * 64
        a(f"s_mov_b32 s40, {boff}")
        for g in range(4):
            a(f"buffer_load_dwordx2 v[{8+2*g}:{9+2*g}], v5, s[{SRD_B}:{SRD_B+3}], s40 offen offset:{g*16}")
        c0 = ACC + 16 * i
        for half in range(2):
            for dd in range(2):
                d = 1 + 2 * half + dd
                a(f"s_add_u32 s44, s{S_SPLIT}, {d}")
                a("s_sub_u32 s45, s44, 5")
                a("s_cmp_ge_u32 s44, 5")
                a("s_cselect_b32 s44, s45, s44")
                a(f"s_mul_i32 s44, s44, {G2_TILES*P_TILE}")
                a("s_add_u32 s44, s44, s42")
                a(f"s_add_u32 s44, s44, {i*4096}")
                for g in range(4):
                    r = 16 + 16 * dd + 4 * g
                    a(f"buffer_load_dwordx4 v[{r}:{r+3}], v59, s[{SRD_A}:{SRD_A+3}], s44 offen offset:{g*1024} sc1")
            for dd in range(2):
                a(f"s_waitcnt vmcnt({4 if dd == 0 else 0})")
                for r in range(16):
                    a(f"v_add_f32 v{c0+r}, v{c0+r}, v{16+16*dd+r}")
        for g in range(4):
            c = c0 + 4 * g
            a(f"""
            v_lshlrev_b32 v16, 16, v{8+2*g}
            v_and_b32 v17, 0xffff0000, v{8+2*g}
            v_lshlrev_b32 v18, 16, v{9+2*g}
            v_and_b32 v19, 0xffff0000, v{9+2*g}
            v_add_f32 v{c}, v{c}, v16
            v_add_f32 v{c+1}, v{c+1}, v17
            v_add_f32 v{c+2}, v{c+2}, v18
            v_add_f32 v{c+3}, v{c+3}, v19
            v_cvt_pk_bf16_f32 v{48+2*g}, v{c}, v{c+1}
            v_cvt_pk_bf16_f32 v{49+2*g}, v{c+2}, v{c+3}
            """)
        a("s_nop 1")
        a("v_permlane32_swap_b32 v48, v50")
        a("v_permlane32_swap_b32 v49, v51")
        a("v_permlane32_swap_b32 v52, v54")
        a("v_permlane32_swap_b32 v53, v55")
        a(f"s_mov_b32 s40, {boff}")
        a(f"buffer_store_dwordx4 v[48:51], v6, s[{SRD_C}:{SRD_C+3}], s40 offen")
        a(f"buffer_store_dwordx4 v[52:55], v6, s[{SRD_C}:{SRD_C+3}], s40 offen offset:32")
        a("s_nop 1")
        a.label(sk)
    if STAMP:
        a("s_waitcnt vmcnt(0)")
    flush_stamps(a, 9)
    a("s_endpgm")

    a.label("K_loader")
    a("s_cmp_ge_u32 s3, 10")
    a("s_cbranch_scc1 K_loadB")
    srd_off(a, SRD_A, S_WS, WS_XN, XN_BYTES)
    voff_ktype(a, 1152, 1, 2)
    a(f"""
    s_sub_u32 s59, s3, 8
    s_lshl_b32 s41, s{S_MT1}, 8
    s_lshl_b32 s56, s59, 7
    s_add_u32 s41, s41, s56
    s_mul_i32 s55, s41, 1152
    s_lshl_b32 s56, s59, 14
    s_barrier
    s_lshl_b32 s41, s{S_MT1}, 8
    s_add_u32 s41, s41, {C_LN*256}
    """)
    get_nonce(a)
    poll(a, 41, 0x3fffffff)

    def issueA1():
        a("s_lshl_b32 s57, s50, 7")
        a("s_add_u32 s57, s57, s55")
        a("s_add_u32 s58, s51, s56")
        issue_k(a, 16, 1152, "sc1")
    loader_loop(a, "G1lA", G1[1], 16, G1[0], 0, issueA1, S_NS)
    a("s_barrier")
    a("s_barrier")
    voff_ktype(a, 4096, 1, 2)
    a(f"""
    s_add_u32 s60, s{S_WS}, {WS_H}
    s_addc_u32 s61, s{S_WS+1}, 0
    s_mov_b32 s{SRD_A+2}, {PANEL}
    s_lshl_b32 s41, s{S_MT2}, 7
    s_lshl_b32 s56, s59, 6
    s_add_u32 s41, s41, s56
    s_lshl_b32 s55, s41, 12
    s_lshl_b32 s56, s59, 13
    s_cmp_lt_u32 s{S_SPLIT}, 2
    s_cbranch_scc1 G2lA_nopoll
    s_lshr_b32 s41, s{S_MT2}, 1
    s_mul_i32 s41, s41, 3
    s_add_u32 s41, s41, s{S_SPLIT}
    s_sub_u32 s41, s41, 2
    s_lshl_b32 s41, s41, 8
    s_add_u32 s41, s41, {C_H*256}
    s_cmp_eq_u32 s{S_SPLIT}, 2
    s_cselect_b32 s42, 0x3f, 0x1ff
    """)
    poll(a, 41, "s42")
    a.label("G2lA_nopoll")

    def issueA2():
        a(f"""
        s_add_u32 s62, s50, s{S_K0}
        s_lshr_b32 s63, s62, 5
        s_sub_u32 s64, s63, 2
        s_lshl_b32 s64, s64, 23
        s_add_u32 s{SRD_A}, s60, s64
        s_addc_u32 s{SRD_A+1}, s61, 0
        s_cmp_eq_u32 s63, 0
        s_cselect_b32 s{SRD_A}, s{S_WSRE}, s{SRD_A}
        s_cselect_b32 s{SRD_A+1}, s{S_WSRE+1}, s{SRD_A+1}
        s_cmp_eq_u32 s63, 1
        s_cselect_b32 s{SRD_A}, s{S_WSIM}, s{SRD_A}
        s_cselect_b32 s{SRD_A+1}, s{S_WSIM+1}, s{SRD_A+1}
        s_and_b32 s{SRD_A+1}, s{SRD_A+1}, 0xffff
        s_and_b32 s57, s62, 31
        s_lshl_b32 s57, s57, 7
        s_add_u32 s57, s57, s55
        s_add_u32 s58, s51, s56
        """)
        issue_k(a, 8, 4096, "sc1")
    loader_loop(a, "G2lA", G2[1], 8, G2[0], 0, issueA2, S_N2)
    a("s_endpgm")

    a.label("K_loadB")
    a("s_sub_u32 s59, s3, 10")
    a(f"s_cmp_ge_u32 s{S_NT1}, 6")
    a("s_cbranch_scc1 G1_loadBKN")
    a(f"""
    s_cmp_ge_u32 s{S_NT1}, 3
    s_cselect_b32 s60, s{S_WDIM}, s{S_WDRE}
    s_cselect_b32 s61, s{S_WDIM+1}, s{S_WDRE+1}
    s_cselect_b32 s41, 3, 0
    s_sub_u32 s41, s{S_NT1}, s41
    s_mul_i32 s41, s41, 192
    s_mul_i32 s56, s59, 96
    s_add_u32 s41, s41, s56
    s_mul_i32 s55, s41, 1152
    s_mul_i32 s56, s59, 12288
    """)
    srd(a, SRD_A, 60, WD_BYTES)
    voff_ktype(a, 1152, 1, 2)

    def issueBNK():
        a("s_lshl_b32 s57, s50, 7")
        a("s_add_u32 s57, s57, s55")
        a("s_add_u32 s58, s51, s56")
        issue_k(a, 12, 1152)
    loader_loop(a, "G1lBNK", G1[3], 12, G1[2], LDS_B, issueBNK, S_NS, mid=lambda: a("s_barrier"))
    a("s_branch G2_loadB")
    a.label("G1_loadBKN")
    srd(a, SRD_A, S_W1, W1_BYTES)
    voff_ntype(a, 9216, 1)
    a(f"""
    s_sub_u32 s41, s{S_NT1}, 6
    s_mul_i32 s55, s41, 384
    s_mul_i32 s56, s59, {32*9216}
    s_add_u32 s55, s55, s56
    s_mul_i32 s56, s59, 12288
    """)

    def issueBKN():
        a(f"s_mul_i32 s57, s50, {64*9216}")
        a("s_add_u32 s57, s57, s55")
        a("s_add_u32 s58, s51, s56")
        issue_n(a, 9216)
    loader_loop(a, "G1lBKN", G1[3], 12, G1[2], LDS_B, issueBKN, S_NS, mid=lambda: a("s_barrier"))
    a.label("G2_loadB")
    a("s_barrier")
    a("s_barrier")
    voff_ntype(a, 1152, 1)
    get_nonce(a)
    a(f"""
    s_add_u32 s60, s{S_WS}, {WS_AB}
    s_addc_u32 s61, s{S_WS+1}, 0
    s_mul_i32 s55, s{S_NT2}, 384
    s_mul_i32 s56, s59, {32*1152}
    s_add_u32 s55, s55, s56
    s_mul_i32 s56, s59, 12288
    s_cmp_ge_u32 s{S_SPLIT}, 2
    s_cbranch_scc1 G2lB_p2
    s_lshl_b32 s41, s{S_NT2}, 8
    s_add_u32 s41, s41, {C_AB*256}
    """)
    poll(a, 41, 0xff)
    a.label("G2lB_p2")
    a(f"""
    s_cmp_eq_u32 s{S_SPLIT}, 0
    s_cbranch_scc1 G2lB_nopoll
    s_cmp_ge_u32 s{S_SPLIT}, 3
    s_cbranch_scc1 G2lB_nopoll
    s_lshl_b32 s41, s{S_NT2}, 8
    s_add_u32 s41, s41, {(C_AB+3)*256}
    """)
    poll(a, 41, 0xff)
    a.label("G2lB_nopoll")

    def issueB2():
        a(f"""
        s_add_u32 s62, s50, s{S_K0}
        s_sub_u32 s63, s62, 64
        s_cmp_lt_u32 s62, 64
        s_cselect_b32 s63, s62, s63
        s_cselect_b32 s{SRD_A}, s60, s{S_W2}
        s_cselect_b32 s{SRD_A+1}, s61, s{S_W2+1}
        s_mov_b32 s{SRD_A+2}, {W2_BYTES}
        s_cselect_b32 s{SRD_A+2}, {AB_BYTES}, s{SRD_A+2}
        s_and_b32 s{SRD_A+1}, s{SRD_A+1}, 0xffff
        s_mul_i32 s57, s63, {64*1152}
        s_add_u32 s57, s57, s55
        s_add_u32 s58, s51, s56
        """)
        issue_n(a, 1152, "sc1")
    loader_loop(a, "G2lB", G2[3], 12, G2[2], LDS_B, issueB2, S_N2)
    a.label("K_done")
    a("s_endpgm")
    a.label("K_end")
    return name


def main():
    a = Asm()
    name = gen_kernel(a)
    head = f"; generated by gen2.py\n; @launch grid=({NWG},1,1) block=(768,1,1) lds=163840\n"
    head += '.amdgcn_target "amdgcn-amd-amdhsa--gfx950"\n.text\n'
    tail = f""".section .rodata,"a"
.p2align 6
.amdhsa_kernel {name}
  .amdhsa_next_free_vgpr 160
  .amdhsa_next_free_sgpr 102
  .amdhsa_accum_offset 160
  .amdhsa_group_segment_fixed_size 0
  .amdhsa_kernarg_size 88
  .amdhsa_user_sgpr_count 2
  .amdhsa_user_sgpr_kernarg_segment_ptr 1
  .amdhsa_system_sgpr_workgroup_id_x 1
  .amdhsa_float_denorm_mode_32 3
  .amdhsa_float_denorm_mode_16_64 3
.end_amdhsa_kernel
"""
    open(OUT, "w").write(head + a.text() + tail)


if __name__ == "__main__":
    main()
```

```python
import os
import gen2 as g
from gen2 import (Asm, srd, srd_off, stamp, flush_stamps, get_nonce, signal, poll, ln_phase, frag, reads_for,
                  LgkmTracker, substep, consumer_addr_setup, voff_ktype, voff_ntype,
                  S_X, S_WSRE, S_WSIM, S_WDRE, S_WDIM, S_W1, S_W2, S_OUT, S_DBG, S_WS,
                  S_SPLIT, S_TILE, S_MT2, S_NT2, SRD_DBG, S_L, S_NT1, S_MT1, S_WM, S_WN, SRD_A, SRD_B, SRD_C, SRD_F,
                  WS_XN, WS_AB, WS_H, WS_P, WS_F, F_BYTES, XN_BYTES, AB_BYTES, PANEL, W1_BYTES, W2_BYTES, WD_BYTES,
                  V_AB, V_AA, V_BB, V_BA, FR0, FR1, ACC, NAME, STAMP)

OUT = os.environ.get("OUT", "cdna_kernels/%s.s" % NAME)
TOUCH = int(os.environ.get("TOUCH3", "1"))
NWG = 240
NS = 4
SA, SB = 16384, 24576
LDS_B = NS * SA
g.LDS_B = LDS_B
LDS_TOTAL = LDS_B + NS * SB
WTOUCH = int(os.environ.get("WTOUCH", "0"))
LDF = os.environ.get("LDF", "sc1")
TSPAN = int(os.environ.get("TSPAN", "9"))
P_TILE = 128 * 192 * 2
P_BYTES = NWG * P_TILE
C_LN, C_AB, C_H, C_P = 0, 8, 16, 32
S_NF, S_N2, S_NT, S_M, S_N1 = 66, 67, 36, 64, 65


def cons_loop(a, pfx, btype, nsteps, t0):
    nb = 4 if btype == "NK" else 3
    sl = t0 % NS
    a(f"s_mov_b32 s44, {sl*SA}")
    a(f"s_mov_b32 s45, {sl*SB}")
    a("s_mov_b32 s46, 0")
    for j in range(4):
        a(f"v_add_u32 v{V_AA+j}, {sl*SA}, v{V_AB+j}")
    for j in range(nb):
        a(f"v_add_u32 v{V_BA+j}, {sl*SB}, v{V_BB+j}")
    trk = LgkmTracker(a)
    for t, ins in reads_for(btype, FR0, 0):
        trk.issue("s0" + t, ins)
    a.label(f"{pfx}_loop")
    entry_state = list(trk.out)
    substep(a, trk, FR0, reads_for(btype, FR1, 1), "s0", "s1")
    substep(a, trk, FR1, reads_for(btype, FR0, 2), "s1", "s2")
    substep(a, trk, FR0, reads_for(btype, FR1, 3), "s2", "s3")
    a(f"""
    s_add_u32 s44, s44, {SA}
    s_add_u32 s45, s45, {SB}
    s_cmp_ge_u32 s44, {SA*NS}
    s_cselect_b32 s44, 0, s44
    s_cselect_b32 s45, 0, s45
    """)
    trk.drain()
    for j in range(4):
        a(f"v_add_u32 v{V_AA+j}, s44, v{V_AB+j}")
    for j in range(nb):
        a(f"v_add_u32 v{V_BA+j}, s45, v{V_BB+j}")
    a("s_barrier")
    substep(a, trk, FR1, reads_for(btype, FR0, 0), "s3", "s0")
    assert trk.out == entry_state
    a(f"""
    s_add_u32 s46, s46, 1
    s_cmp_lt_u32 s46, {nsteps}
    s_cbranch_scc1 {pfx}_loop
    s_waitcnt lgkmcnt(0)
    s_nop 15
    s_nop 3
    """)


def zero_acc(a):
    for i in range(96):
        a(f"v_mov_b32 v{ACC+i}, 0")


def loader_loop(a, pfx, L, slot_bytes, ring_base, issue_fn, first_extra_barrier):
    a("s_mov_b32 s50, 0")
    a(f"s_mov_b32 s51, {ring_base}")
    a(f"s_mov_b32 s52, {-NS}")
    a.label(f"{pfx}_loop")
    a("s_cmp_lt_i32 s52, -1")
    a(f"s_cbranch_scc1 {pfx}_iss")
    if first_extra_barrier:
        a("s_cmp_lg_i32 s52, -1")
        a(f"s_cbranch_scc1 {pfx}_nx")
        a("s_barrier")
        a.label(f"{pfx}_nx")
    a(f"s_sub_i32 s53, s{S_NT}, s52")
    for c in range(NS - 2, 0, -1):
        a(f"s_cmp_ge_i32 s53, {c+2}")
        a(f"s_cbranch_scc1 {pfx}_w{c}")
    a("s_waitcnt vmcnt(0)")
    a(f"s_branch {pfx}_bar")
    for c in range(1, NS - 1):
        a.label(f"{pfx}_w{c}")
        a(f"s_waitcnt vmcnt({c*L})")
        if c != NS - 2:
            a(f"s_branch {pfx}_bar")
    a.label(f"{pfx}_bar")
    a("s_barrier")
    a.label(f"{pfx}_iss")
    a(f"s_cmp_ge_u32 s50, s{S_NT}")
    a(f"s_cbranch_scc1 {pfx}_skip")
    issue_fn()
    a("s_add_u32 s50, s50, 1")
    a(f"s_add_u32 s51, s51, {slot_bytes}")
    a(f"s_cmp_ge_u32 s51, {ring_base + NS*slot_bytes}")
    a(f"s_cselect_b32 s51, {ring_base}, s51")
    a.label(f"{pfx}_skip")
    a(f"""
    s_add_i32 s52, s52, 1
    s_cmp_lt_i32 s52, s{S_NT}
    s_cbranch_scc1 {pfx}_loop
    s_endpgm
    """)


def issue_k(a, nq, stride, srdr, ve, flags=""):
    for q in range(nq):
        a(f"s_add_u32 m0, s58, {q*1024}")
        a(f"s_add_u32 s54, s57, {q*8*stride}")
        a(f"buffer_load_dwordx4 v{ve+1 if q & 1 else ve}, s[{srdr}:{srdr+3}], s54 offen {flags} lds")


def issue_n(a, stride, srdr, vb, flags=""):
    for aa in range(4):
        for b in range(3):
            a(f"s_add_u32 m0, s58, {(3*aa+b)*1024}")
            a(f"s_add_u32 s54, s57, {aa*8*stride}")
            a(f"buffer_load_dwordx4 v{vb+b}, s[{srdr}:{srdr+3}], s54 offen {flags} lds")


def g2_kk(a):
    a(f"""
    s_sub_u32 s62, s50, 18
    s_mul_i32 s63, s{S_SPLIT}, 13
    s_cmp_lt_u32 s62, s{S_NF}
    s_cbranch_scc1 1f
    s_sub_u32 s62, s62, s{S_NF}
    s_mul_i32 s63, s{S_SPLIT}, 14
    s_add_u32 s63, s63, 64
    s_cmp_eq_u32 s{S_SPLIT}, 4
    s_addc_u32 s63, s63, 0
    """)
    a.lines.append("1:")
    a("s_add_u32 s62, s62, s63")


def gen_kernel(a):
    name = NAME + "_kernel"
    a.lines.append(f".globl {name}")
    a.lines.append(".p2align 8")
    a.lines.append(f".type {name},@function")
    a.label(name)
    a(f"""
    s_cmp_ge_u32 s2, {NWG}
    s_cbranch_scc1 K_done
    """)
    stamp(a, 0)
    a(f"""
    s_load_dwordx8 s[4:11], s[0:1], 0
    s_load_dwordx2 s[12:13], s[0:1], 32
    s_load_dwordx4 s[16:19], s[0:1], 48
    s_load_dwordx4 s[20:23], s[0:1], 64
    s_load_dwordx2 s[24:25], s[0:1], 80
    v_lshrrev_b32 v1, 6, v0
    s_and_b32 s33, s2, 7
    s_mul_i32 s33, s33, 30
    s_lshr_b32 s34, s2, 3
    v_readfirstlane_b32 s3, v1
    s_add_u32 s{S_L}, s33, s34
    s_lshr_b32 s{S_NT1}, s{S_L}, 3
    s_and_b32 s{S_MT1}, s{S_L}, 7
    s_lshr_b32 s{S_N1}, s{S_L}, 4
    s_and_b32 s{S_M}, s{S_L}, 15
    s_mul_i32 s{S_SPLIT}, s{S_L}, 1366
    s_lshr_b32 s{S_SPLIT}, s{S_SPLIT}, 16
    s_mul_i32 s40, s{S_SPLIT}, 48
    s_sub_u32 s{S_TILE}, s{S_L}, s40
    s_mul_i32 s{S_MT2}, s{S_TILE}, 21846
    s_lshr_b32 s{S_MT2}, s{S_MT2}, 16
    s_mul_i32 s40, s{S_MT2}, 3
    s_sub_u32 s{S_NT2}, s{S_TILE}, s40
    s_cmp_eq_u32 s{S_SPLIT}, 4
    s_cselect_b32 s{S_NF}, 12, 13
    s_cmp_eq_u32 s{S_SPLIT}, 3
    s_cselect_b32 s{S_N2}, 28, 27
    s_add_u32 s{S_NT}, s{S_N2}, 18
    s_waitcnt lgkmcnt(0)
    """)
    srd(a, SRD_DBG, S_DBG, 256)
    srd_off(a, SRD_F, S_WS, WS_F, F_BYTES)
    a(f"""
    s_or_b32 s40, s2, s3
    s_cmp_lg_u32 s40, 0
    s_cbranch_scc1 K_nopub
    s_memrealtime s[40:41]
    s_waitcnt lgkmcnt(0)
    s_or_b32 s40, s40, 1
    v_mov_b32 v60, s40
    v_mov_b32 v61, s41
    v_mov_b32 v63, 0
    s_mov_b64 exec, 1
    buffer_store_dwordx2 v[60:61], v63, s[{SRD_DBG}:{SRD_DBG+3}], 0 offen sc1
    s_mov_b64 exec, -1
    """)
    a.label("K_nopub")
    a("s_cmp_ge_u32 s3, 8")
    a("s_cbranch_scc1 K_loader")
    a("s_and_b32 s40, s3, 3")
    a(f"s_lshr_b32 s{S_WM}, s40, 1")
    a(f"s_and_b32 s{S_WN}, s40, 1")
    a("s_cmp_ge_u32 s3, 4")
    a("s_cbranch_scc1 K_g1")
    a("s_cmp_ge_u32 s3, 3")
    a("s_cbranch_scc1 K_lnskip")
    ln_phase(a)
    a.label("K_lnskip")
    a("s_barrier")
    a("s_cmp_lg_u32 s3, 0")
    a("s_cbranch_scc1 K_lnsig")
    get_nonce(a)
    a(f"s_lshl_b32 s41, s{S_MT1}, 8")
    a(f"s_lshl_b32 s40, s{S_NT1}, 3")
    a("s_add_u32 s41, s41, s40")
    a(f"s_add_u32 s41, s41, {C_LN*256}")
    signal(a, 41)
    a.label("K_lnsig")
    stamp(a, 1)
    zero_acc(a)
    a(f"s_cmp_ge_u32 s{S_N1}, 6")
    a("s_cbranch_scc1 T1_KN")
    consumer_addr_setup(a, "NK")
    a("s_barrier")
    stamp(a, 2)
    cons_loop(a, "T1nk", "NK", 9, 0)
    a("s_branch T1_done")
    a.label("T1_KN")
    consumer_addr_setup(a, "KN")
    a("s_barrier")
    stamp(a, 2)
    cons_loop(a, "T1kn", "KN", 9, 0)
    a.label("T1_done")
    stamp(a, 3)
    a(f"s_mov_b32 s46, s{S_N1}")
    a("s_branch K_epi")
    a.label("K_g1")
    if WTOUCH:
        srd(a, SRD_C, S_W1, W1_BYTES)
        a(f"""
        v_subrev_u32 v56, 256, v0
        v_mul_u32_u24 v57, 21846, v56
        v_lshrrev_b32 v57, 16, v57
        v_mul_u32_u24 v59, 3, v57
        v_sub_u32 v59, v56, v59
        s_mul_i32 s40, s{S_M}, 36
        v_add_u32 v57, s40, v57
        v_mul_u32_u24 v57, 9216, v57
        v_lshl_add_u32 v57, v59, 7, v57
        v_mov_b32 v59, 0x7f000000
        v_cmp_gt_u32 vcc, 108, v56
        s_add_u32 s40, s{S_N1}, 9
        s_mul_i32 s40, s40, 384
        v_cndmask_b32 v57, v59, v57, vcc
        buffer_load_dword v58, v57, s[{SRD_C}:{SRD_C+3}], s40 offen
        s_cmp_lt_u32 s{S_N1}, 6
        s_cbranch_scc1 K_wt2
        s_sub_u32 s40, s{S_N1}, 6
        s_mul_i32 s40, s40, 384
        buffer_load_dword v58, v57, s[{SRD_C}:{SRD_C+3}], s40 offen
        s_branch K_wt3
        """)
        a.label("K_wt2")
        a(f"""
        s_cmp_ge_u32 s{S_N1}, 3
        s_cselect_b32 s60, s{S_WDIM}, s{S_WDRE}
        s_cselect_b32 s61, s{S_WDIM+1}, s{S_WDRE+1}
        s_cselect_b32 s40, 3, 0
        s_sub_u32 s40, s{S_N1}, s40
        s_mul_i32 s40, s40, 192
        s_mul_i32 s41, s{S_M}, 12
        s_add_u32 s40, s40, s41
        s_mul_i32 s40, s40, 1152
        v_lshlrev_b32 v57, 7, v56
        v_cndmask_b32 v57, v59, v57, vcc
        """)
        srd(a, SRD_C, 60, WD_BYTES)
        a(f"buffer_load_dword v58, v57, s[{SRD_C}:{SRD_C+3}], s40 offen")
        a.label("K_wt3")
    a("s_barrier")
    zero_acc(a)
    consumer_addr_setup(a, "KN")
    a("s_barrier")
    if TOUCH:
        srd(a, SRD_A, S_WSRE, PANEL)
        srd(a, SRD_B, S_WSIM, PANEL)
        srd(a, SRD_C, S_W2, W2_BYTES)
        a(f"""
        v_and_b32 v59, 63, v0
        s_mul_i32 s40, s{S_L}, 274
        v_add_u32 v56, s40, v59
        v_lshlrev_b32 v56, 7, v56
        s_mul_i32 s40, s{S_L}, 173
        v_add_u32 v55, s40, v59
        v_lshlrev_b32 v55, 7, v55
        v_mov_b32 v53, 0x7f000000
        v_cmp_gt_u32 vcc, 18, v59
        s_nop 1
        v_cndmask_b32 v57, v53, v56, vcc
        v_cmp_gt_u32 vcc, 45, v59
        s_nop 1
        v_cndmask_b32 v54, v53, v55, vcc
        """)
        items = []
        for r in range(5):
            items.append((SRD_A, 56 if r < 4 else 57, r))
            items.append((SRD_B, 56 if r < 4 else 57, r))
        for r in range(3):
            items.append((SRD_C, 55 if r < 2 else 54, r))
        sched = {}
        for i, it in enumerate(items):
            sched.setdefault(i * TSPAN // 13, []).append((i & 3, it))
        for t in range(9):
            for w, (sr, vr, r) in sched.get(t, []):
                lb = a.new("tch")
                a(f"s_cmp_lg_u32 s3, {4+w}")
                a(f"s_cbranch_scc1 {lb}")
                a(f"s_mov_b32 s40, {r*8192}")
                a(f"buffer_load_dword v58, v{vr}, s[{sr}:{sr+3}], s40 offen")
                a.label(lb)
            a("s_barrier")
    else:
        for _ in range(9):
            a("s_barrier")
    cons_loop(a, "T2", "KN", 9, 9)
    a("s_waitcnt vmcnt(0)")
    a(f"s_add_u32 s46, s{S_N1}, 15")
    a.label("K_epi")
    srd_off(a, SRD_A, S_WS, WS_AB, AB_BYTES)
    srd_off(a, SRD_B, S_WS, WS_H, 3 * PANEL)
    a(f"""
    s_lshl_b32 s49, s{S_M}, 7
    s_cmp_ge_u32 s46, 6
    s_cbranch_scc1 E_h
    s_mov_b32 s43, 0x80008000
    s_cmp_ge_u32 s46, 3
    s_cselect_b32 s42, 0x80008000, 0
    s_cselect_b32 s41, 2048, 0
    s_cselect_b32 s40, 3, 0
    s_add_u32 s49, s49, s41
    s_sub_u32 s40, s46, s40
    s_mul_i32 s48, s40, 192
    s_mov_b32 s47, 1152
    s_lshl_b32 s41, s46, 8
    s_lshl_b32 s40, s{S_M}, 3
    s_add_u32 s41, s41, s40
    s_add_u32 s41, s41, {C_AB*256}
    s_branch E_go
    """)
    a.label("E_h")
    a(f"""
    s_mov_b32 s42, 0
    s_mov_b32 s43, 0
    s_mov_b32 s{SRD_A}, s{SRD_B}
    s_mov_b32 s{SRD_A+1}, s{SRD_B+1}
    s_mov_b32 s{SRD_A+2}, s{SRD_B+2}
    s_sub_u32 s40, s46, 6
    s_mul_i32 s48, s40, 192
    s_mov_b32 s47, 4096
    s_lshl_b32 s41, s{S_M}, 8
    s_lshl_b32 s40, s40, 3
    s_add_u32 s41, s41, s40
    s_add_u32 s41, s41, {C_H*256}
    """)
    a.label("E_go")
    a(f"""
    s_lshl_b32 s40, s{S_WM}, 6
    s_add_u32 s49, s49, s40
    s_mul_i32 s40, s{S_WN}, 96
    s_add_u32 s48, s48, s40
    v_and_b32 v60, 15, v0
    v_add_u32 v60, s49, v60
    v_mul_lo_u32 v60, v60, s47
    v_bfe_u32 v61, v0, 4, 1
    v_bfe_u32 v62, v0, 5, 1
    v_lshlrev_b32 v61, 4, v61
    v_lshl_add_u32 v61, v62, 3, v61
    v_add_u32 v61, s48, v61
    """)
    for ni in range(3):
        a(f"""
        v_add_u32 v62, {32*ni}, v61
        v_lshrrev_b32 v63, 11, v62
        v_lshlrev_b32 v63, 23, v63
        v_and_b32 v62, 2047, v62
        v_add_u32 v63, v60, v63
        v_lshl_add_u32 v{2+ni}, v62, 1, v63
        """)
    for mi in range(2):
        a(f"s_mul_i32 s44, s47, {32*mi}")
        a(f"s_mul_i32 s45, s47, {32*mi+16}")
        for ni in range(3):
            c = ACC + 16 * (3 * mi + ni)
            t = 20 + 8 * (ni & 1)
            for r in range(8):
                a(f"v_cvt_pk_bf16_f32 v{t+r}, v{c+2*r}, v{c+2*r+1}")
            for r in range(8):
                a(f"v_pk_max_i16 v{t+r}, v{t+r}, s43")
            for r in range(8):
                a(f"v_xor_b32 v{t+r}, s42, v{t+r}")
            a("s_nop 1")
            a(f"v_permlane32_swap_b32 v{t}, v{t+2}")
            a(f"v_permlane32_swap_b32 v{t+1}, v{t+3}")
            a(f"v_permlane32_swap_b32 v{t+4}, v{t+6}")
            a(f"v_permlane32_swap_b32 v{t+5}, v{t+7}")
            a("s_nop 1")
            for r in range(4):
                a(f"v_permlane16_swap_b32 v{t+r}, v{t+4+r}")
            a(f"buffer_store_dwordx4 v[{t}:{t+3}], v{2+ni}, s[{SRD_A}:{SRD_A+3}], s44 offen sc1")
            a(f"buffer_store_dwordx4 v[{t+4}:{t+7}], v{2+ni}, s[{SRD_A}:{SRD_A+3}], s45 offen sc1")
        a("s_barrier")
    a("s_barrier")
    a("s_barrier")
    a("s_waitcnt vmcnt(0)")
    a("s_barrier")
    a("s_and_b32 s40, s3, 3")
    a("s_cmp_lg_u32 s40, 0")
    a("s_cbranch_scc1 E_sig")
    a("s_cmp_eq_u32 s3, 0")
    a("s_cbranch_scc1 E_sig0")
    get_nonce(a)
    a.label("E_sig0")
    signal(a, 41)
    a.label("E_sig")
    a("s_cmp_ge_u32 s3, 4")
    a("s_cbranch_scc1 K_done")
    zero_acc(a)
    consumer_addr_setup(a, "KN")
    a("s_barrier")
    a("s_barrier")
    a("s_barrier")
    stamp(a, 4)
    a("s_barrier")
    stamp(a, 5)
    cons_loop(a, "G2c", "KN", f"s{S_N2}", 18)
    stamp(a, 6)
    srd_off(a, SRD_A, S_WS, WS_P, P_BYTES)
    a(f"""
    s_mul_i32 s42, s{S_L}, {P_TILE}
    s_mul_i32 s41, s3, 12288
    s_add_u32 s42, s42, s41
    v_and_b32 v7, 63, v0
    v_lshlrev_b32 v7, 4, v7
    s_add_u32 s43, s3, 5
    s_sub_u32 s43, s43, s{S_SPLIT}
    """)
    for i in range(6):
        sk = a.new("pst")
        a(f"s_add_u32 s40, s43, {i}")
        a("s_cmp_eq_u32 s40, 5")
        a(f"s_cbranch_scc1 {sk}")
        a("s_cmp_eq_u32 s40, 10")
        a(f"s_cbranch_scc1 {sk}")
        a(f"s_add_u32 s41, s42, {i*2048}")
        t = 20 + 8 * (i & 1)
        for r in range(8):
            a(f"v_cvt_pk_bf16_f32 v{t+r}, v{ACC+16*i+2*r}, v{ACC+16*i+2*r+1}")
        a(f"buffer_store_dwordx4 v[{t}:{t+3}], v7, s[{SRD_A}:{SRD_A+3}], s41 offen sc1")
        a(f"buffer_store_dwordx4 v[{t+4}:{t+7}], v7, s[{SRD_A}:{SRD_A+3}], s41 offen offset:1024 sc1")
        a.label(sk)
    a("s_waitcnt vmcnt(0)")
    a("s_barrier")
    a(f"""
    s_lshl_b32 s41, s{S_TILE}, 8
    s_add_u32 s41, s41, {C_P*256}
    s_lshl_b32 s47, s{S_SPLIT}, 3
    s_add_u32 s47, s47, s41
    s_cmp_lg_u32 s3, 0
    s_cbranch_scc1 K_psig
    """)
    signal(a, 47)
    a("s_branch K_psig2")
    a.label("K_psig")
    get_nonce(a)
    a.label("K_psig2")
    srd(a, SRD_B, S_X, XN_BYTES)
    srd(a, SRD_C, S_OUT, XN_BYTES)
    a(f"""
    s_lshl_b32 s49, s{S_MT2}, 7
    s_lshl_b32 s40, s{S_WM}, 6
    s_add_u32 s49, s49, s40
    s_mul_i32 s48, s{S_NT2}, 384
    s_mul_i32 s40, s{S_WN}, 192
    s_add_u32 s48, s48, s40
    v_and_b32 v2, 63, v0
    v_and_b32 v3, 31, v2
    v_lshrrev_b32 v4, 5, v2
    v_add_u32 v3, s49, v3
    v_mul_u32_u24 v3, 1152, v3
    v_add_u32 v3, s48, v3
    v_lshl_add_u32 v5, v4, 3, v3
    v_lshl_add_u32 v6, v4, 4, v3
    s_mul_i32 s42, s{S_TILE}, {P_TILE}
    s_mul_i32 s40, s3, 12288
    s_add_u32 s42, s42, s40
    s_mov_b32 s46, 5
    """)
    poll(a, 41, 0x1f)
    stamp(a, 7)
    a.label("F_loop")
    a("s_sub_i32 s45, s46, s43")
    a("s_cmp_lt_i32 s45, 0")
    a("s_cbranch_scc1 F_next")
    a("s_cmp_gt_i32 s45, 5")
    a("s_cbranch_scc1 F_next")
    a(f"""
    s_cmp_ge_u32 s45, 3
    s_cselect_b32 s40, 3, 0
    s_cselect_b32 s47, {32*1152}, 0
    s_sub_u32 s40, s45, s40
    s_lshl_b32 s40, s40, 6
    s_add_u32 s47, s47, s40
    s_lshl_b32 s48, s45, 11
    s_add_u32 s48, s48, s42
    """)
    XR, PR, W = 160, 8, 40
    for gq in range(4):
        a(f"buffer_load_dwordx2 v[{XR+2*gq}:{XR+1+2*gq}], v5, s[{SRD_B}:{SRD_B+3}], s47 offen offset:{gq*16}")
    for d in range(1, 5):
        r0 = PR + 8 * (d - 1)
        a(f"""
        s_add_u32 s44, s{S_SPLIT}, {d}
        s_sub_u32 s40, s44, 5
        s_cmp_ge_u32 s44, 5
        s_cselect_b32 s44, s40, s44
        s_mul_i32 s44, s44, {48*P_TILE}
        s_add_u32 s44, s44, s48
        buffer_load_dwordx4 v[{r0}:{r0+3}], v7, s[{SRD_A}:{SRD_A+3}], s44 offen sc1
        buffer_load_dwordx4 v[{r0+4}:{r0+7}], v7, s[{SRD_A}:{SRD_A+3}], s44 offen offset:1024 sc1
        """)
    for i in range(6):
        a(f"s_cmp_lg_u32 s45, {i}")
        a(f"s_cbranch_scc1 F_m{i}")
        for r in range(16):
            a(f"v_mov_b32 v{W+r}, v{ACC+16*i+r}")
        a.label(f"F_m{i}")
    for d in range(1, 5):
        a(f"s_waitcnt vmcnt({2*(4-d)})")
        for r in range(8):
            src = PR + 8 * (d - 1) + r
            a(f"""
            v_lshlrev_b32 v56, 16, v{src}
            v_and_b32 v57, 0xffff0000, v{src}
            v_add_f32 v{W+2*r}, v{W+2*r}, v56
            v_add_f32 v{W+2*r+1}, v{W+2*r+1}, v57
            """)
    for gq in range(4):
        c = W + 4 * gq
        a(f"""
        v_lshlrev_b32 v56, 16, v{XR+2*gq}
        v_and_b32 v57, 0xffff0000, v{XR+2*gq}
        v_lshlrev_b32 v58, 16, v{XR+1+2*gq}
        v_and_b32 v59, 0xffff0000, v{XR+1+2*gq}
        v_add_f32 v{c}, v{c}, v56
        v_add_f32 v{c+1}, v{c+1}, v57
        v_add_f32 v{c+2}, v{c+2}, v58
        v_add_f32 v{c+3}, v{c+3}, v59
        v_cvt_pk_bf16_f32 v{8+2*gq}, v{c}, v{c+1}
        v_cvt_pk_bf16_f32 v{9+2*gq}, v{c+2}, v{c+3}
        """)
    a(f"""
    s_nop 1
    v_permlane32_swap_b32 v8, v10
    v_permlane32_swap_b32 v9, v11
    v_permlane32_swap_b32 v12, v14
    v_permlane32_swap_b32 v13, v15
    buffer_store_dwordx4 v[8:11], v6, s[{SRD_C}:{SRD_C+3}], s47 offen
    buffer_store_dwordx4 v[12:15], v6, s[{SRD_C}:{SRD_C+3}], s47 offen offset:32
    s_nop 1
    """)
    a.label("F_next")
    a("s_add_u32 s46, s46, 5")
    a("s_cmp_le_u32 s46, 10")
    a("s_cbranch_scc1 F_loop")
    if STAMP:
        a("s_waitcnt vmcnt(0)")
    flush_stamps(a, 9)
    a("s_endpgm")

    a.label("K_loader")
    a("s_cmp_ge_u32 s3, 10")
    a("s_cbranch_scc1 K_loadB")
    srd_off(a, SRD_B, S_WS, WS_XN, XN_BYTES)
    voff_ktype(a, 1152, 1, 2)
    voff_ktype(a, 4096, 3, 4)
    a(f"""
    s_sub_u32 s59, s3, 8
    s_lshl_b32 s41, s{S_M}, 7
    s_lshl_b32 s56, s59, 6
    s_add_u32 s41, s41, s56
    s_mul_i32 s55, s41, 1152
    s_lshl_b32 s41, s{S_MT2}, 7
    s_add_u32 s41, s41, s56
    s_lshl_b32 s49, s41, 12
    s_lshl_b32 s56, s59, 13
    s_add_u32 s60, s{S_WS}, {WS_H}
    s_addc_u32 s61, s{S_WS+1}, 0
    s_mov_b32 s{SRD_A+2}, {PANEL}
    s_mov_b32 s{SRD_A+3}, 0x00020000
    s_barrier
    s_lshr_b32 s41, s{S_M}, 1
    s_lshl_b32 s41, s41, 8
    s_add_u32 s41, s41, {C_LN*256}
    """)
    get_nonce(a)
    poll(a, 41, 0x3fffffff)
    a(f"""
    s_mov_b32 s48, 0x1f
    s_cmp_eq_u32 s{S_SPLIT}, 1
    s_cselect_b32 s48, 0x3f0, s48
    s_cmp_eq_u32 s{S_SPLIT}, 2
    s_cselect_b32 s48, 0x3e00, s48
    s_cmp_eq_u32 s{S_SPLIT}, 3
    s_cselect_b32 s48, 0x7c000, s48
    s_cmp_eq_u32 s{S_SPLIT}, 4
    s_cselect_b32 s48, 0xf80000, s48
    s_lshl_b32 s47, s{S_MT2}, 8
    s_add_u32 s47, s47, {C_H*256}
    """)

    def issueA():
        a("s_add_u32 s58, s51, s56")
        a("s_cmp_ge_u32 s50, 18")
        a("s_cbranch_scc1 LA_g2")
        a("""
        s_sub_u32 s62, s50, 9
        s_cmp_ge_u32 s50, 9
        s_cselect_b32 s62, s62, s50
        s_lshl_b32 s57, s62, 7
        s_add_u32 s57, s57, s55
        """)
        issue_k(a, 8, 1152, SRD_B, 1, LDF)
        a("s_branch LA_end")
        a.label("LA_g2")
        a(f"s_sub_u32 s62, s50, 18")
        a(f"s_cmp_lg_u32 s62, s{S_NF}")
        a("s_cbranch_scc1 LA_np")
        poll(a, 47, "s48")
        a.label("LA_np")
        g2_kk(a)
        a(f"""
        s_lshr_b32 s63, s62, 5
        s_sub_u32 s41, s63, 2
        s_lshl_b32 s41, s41, 23
        s_add_u32 s{SRD_A}, s60, s41
        s_addc_u32 s{SRD_A+1}, s61, 0
        s_cmp_eq_u32 s63, 0
        s_cselect_b32 s{SRD_A}, s{S_WSRE}, s{SRD_A}
        s_cselect_b32 s{SRD_A+1}, s{S_WSRE+1}, s{SRD_A+1}
        s_cmp_eq_u32 s63, 1
        s_cselect_b32 s{SRD_A}, s{S_WSIM}, s{SRD_A}
        s_cselect_b32 s{SRD_A+1}, s{S_WSIM+1}, s{SRD_A+1}
        s_and_b32 s{SRD_A+1}, s{SRD_A+1}, 0xffff
        s_and_b32 s57, s62, 31
        s_lshl_b32 s57, s57, 7
        s_add_u32 s57, s57, s49
        """)
        issue_k(a, 8, 4096, SRD_A, 3, LDF)
        a.label("LA_end")
    loader_loop(a, "LA", 8, SA, 0, issueA, False)

    a.label("K_loadB")
    a(f"""
    s_sub_u32 s59, s3, 10
    s_cmp_ge_u32 s{S_N1}, 3
    s_cselect_b32 s60, s{S_WDIM}, s{S_WDRE}
    s_cselect_b32 s61, s{S_WDIM+1}, s{S_WDRE+1}
    """)
    srd(a, SRD_B, 60, WD_BYTES)
    srd(a, SRD_C, S_W1, W1_BYTES)
    voff_ktype(a, 1152, 1, 2)
    voff_ntype(a, 9216, 3)
    voff_ntype(a, 1152, 6)
    a(f"""
    s_mul_i32 s56, s59, {32*9216}
    s_add_u32 s41, s{S_N1}, 9
    s_mul_i32 s49, s41, 384
    s_add_u32 s49, s49, s56
    s_sub_u32 s41, s{S_N1}, 6
    s_mul_i32 s55, s41, 384
    s_add_u32 s55, s55, s56
    s_cmp_ge_u32 s{S_N1}, 6
    s_cbranch_scc1 LB_s1
    s_cmp_ge_u32 s{S_N1}, 3
    s_cselect_b32 s41, 3, 0
    s_sub_u32 s41, s{S_N1}, s41
    s_mul_i32 s41, s41, 192
    s_mul_i32 s56, s59, 96
    s_add_u32 s41, s41, s56
    s_mul_i32 s55, s41, 1152
    """)
    a.label("LB_s1")
    a(f"""
    s_mul_i32 s48, s{S_NT2}, 384
    s_mul_i32 s56, s59, {32*1152}
    s_add_u32 s48, s48, s56
    s_mul_i32 s56, s59, 12288
    s_add_u32 s60, s{S_WS}, {WS_AB}
    s_addc_u32 s61, s{S_WS+1}, 0
    s_mov_b32 s{SRD_A+3}, 0x00020000
    """)

    def issueB():
        a("s_add_u32 s58, s51, s56")
        a("s_cmp_ge_u32 s50, 18")
        a("s_cbranch_scc1 LB_g2")
        a("s_cmp_ge_u32 s50, 9")
        a("s_cbranch_scc1 LB_t2")
        a(f"s_cmp_ge_u32 s{S_N1}, 6")
        a("s_cbranch_scc1 LB_t1kn")
        a("s_lshl_b32 s57, s50, 7")
        a("s_add_u32 s57, s57, s55")
        issue_k(a, 12, 1152, SRD_B, 1)
        a("s_branch LB_end")
        a.label("LB_t1kn")
        a(f"s_mul_i32 s57, s50, {64*9216}")
        a("s_add_u32 s57, s57, s55")
        a("s_branch LB_kn")
        a.label("LB_t2")
        a("s_sub_u32 s62, s50, 9")
        a(f"s_mul_i32 s57, s62, {64*9216}")
        a("s_add_u32 s57, s57, s49")
        a.label("LB_kn")
        issue_n(a, 9216, SRD_C, 3)
        a("s_branch LB_end")
        a.label("LB_g2")
        a("s_cmp_lg_u32 s50, 18")
        a("s_cbranch_scc1 LB_np")
        get_nonce(a)
        a(f"s_cmp_ge_u32 s{S_SPLIT}, 3")
        a("s_cbranch_scc1 LB_p2")
        a(f"s_lshl_b32 s41, s{S_NT2}, 8")
        a(f"s_add_u32 s41, s41, {C_AB*256}")
        poll(a, 41, 0xffff)
        a.label("LB_p2")
        a(f"s_cmp_lt_u32 s{S_SPLIT}, 2")
        a("s_cbranch_scc1 LB_np")
        a(f"s_lshl_b32 s41, s{S_NT2}, 8")
        a(f"s_add_u32 s41, s41, {(C_AB+3)*256}")
        poll(a, 41, 0xffff)
        a.label("LB_np")
        g2_kk(a)
        a(f"""
        s_sub_u32 s63, s62, 64
        s_cmp_lt_u32 s62, 64
        s_cselect_b32 s63, s62, s63
        s_cselect_b32 s{SRD_A}, s60, s{S_W2}
        s_cselect_b32 s{SRD_A+1}, s61, s{S_W2+1}
        s_mov_b32 s{SRD_A+2}, {W2_BYTES}
        s_cselect_b32 s{SRD_A+2}, {AB_BYTES}, s{SRD_A+2}
        s_and_b32 s{SRD_A+1}, s{SRD_A+1}, 0xffff
        s_mul_i32 s57, s63, {64*1152}
        s_add_u32 s57, s57, s48
        """)
        issue_n(a, 1152, SRD_A, 6, LDF)
        a.label("LB_end")
    loader_loop(a, "LB", 12, SB, LDS_B, issueB, True)
    a.label("K_done")
    a("s_endpgm")
    return name


def main():
    a = Asm()
    name = gen_kernel(a)
    head = f"; generated by gen3.py\n; @launch grid=({NWG},1,1) block=(768,1,1) lds={LDS_TOTAL}\n"
    head += '.amdgcn_target "amdgcn-amd-amdhsa--gfx950"\n.text\n'
    tail = f""".section .rodata,"a"
.p2align 6
.amdhsa_kernel {name}
  .amdhsa_next_free_vgpr 168
  .amdhsa_next_free_sgpr 102
  .amdhsa_accum_offset 168
  .amdhsa_group_segment_fixed_size 0
  .amdhsa_kernarg_size 88
  .amdhsa_user_sgpr_count 2
  .amdhsa_user_sgpr_kernarg_segment_ptr 1
  .amdhsa_system_sgpr_workgroup_id_x 1
  .amdhsa_float_denorm_mode_32 3
  .amdhsa_float_denorm_mode_16_64 3
.end_amdhsa_kernel
"""
    open(OUT, "w").write(head + a.text() + tail)


if __name__ == "__main__":
    main()
```

```python
import os
import gen2 as g
from gen2 import (Asm, srd, srd_off, stamp, flush_stamps, get_nonce, signal, poll, ln_phase, frag, reads_for,
                  LgkmTracker, substep, consumer_addr_setup, voff_ktype, voff_ntype,
                  S_X, S_WSRE, S_WSIM, S_WDRE, S_WDIM, S_W1, S_W2, S_OUT, S_DBG, S_WS,
                  S_SPLIT, S_TILE, S_MT2, S_NT2, SRD_DBG, S_L, S_NT1, S_MT1, S_WM, S_WN, SRD_A, SRD_B, SRD_C, SRD_F,
                  WS_XN, WS_AB, WS_H, WS_P, WS_F, F_BYTES, XN_BYTES, AB_BYTES, PANEL, W1_BYTES, W2_BYTES, WD_BYTES,
                  V_AB, V_AA, V_BB, V_BA, FR0, FR1, ACC, NAME, STAMP)

OUT = os.environ.get("OUT", "cdna_kernels/%s.s" % NAME)
TOUCH = int(os.environ.get("TOUCH3", "1"))
NWG = 240
NS = 4
SA, SB = 16384, 24576
LDS_B = NS * SA
g.LDS_B = LDS_B
LDS_TOTAL = LDS_B + NS * SB
WTOUCH = int(os.environ.get("WTOUCH", "1"))
TSTART = int(os.environ.get("TSTART", "0"))
LDF = os.environ.get("LDF", "sc1")
TSPAN = int(os.environ.get("TSPAN", "9"))
P_TILE = 128 * 192 * 2
P_BYTES = NWG * P_TILE
C_LN, C_AB, C_H, C_P = 0, 8, 16, 32
S_NF, S_N2, S_NT, S_M, S_N1 = 66, 67, 36, 64, 65


def cons_loop(a, pfx, btype, nsteps, t0):
    nb = 4 if btype == "NK" else 3
    sl = t0 % NS
    a(f"s_mov_b32 s44, {sl*SA}")
    a(f"s_mov_b32 s45, {sl*SB}")
    a("s_mov_b32 s46, 0")
    for j in range(4):
        a(f"v_add_u32 v{V_AA+j}, {sl*SA}, v{V_AB+j}")
    for j in range(nb):
        a(f"v_add_u32 v{V_BA+j}, {sl*SB}, v{V_BB+j}")
    trk = LgkmTracker(a)
    for t, ins in reads_for(btype, FR0, 0):
        trk.issue("s0" + t, ins)
    a.label(f"{pfx}_loop")
    entry_state = list(trk.out)
    substep(a, trk, FR0, reads_for(btype, FR1, 1), "s0", "s1")
    substep(a, trk, FR1, reads_for(btype, FR0, 2), "s1", "s2")
    substep(a, trk, FR0, reads_for(btype, FR1, 3), "s2", "s3")
    a(f"""
    s_add_u32 s44, s44, {SA}
    s_add_u32 s45, s45, {SB}
    s_cmp_ge_u32 s44, {SA*NS}
    s_cselect_b32 s44, 0, s44
    s_cselect_b32 s45, 0, s45
    """)
    trk.drain()
    for j in range(4):
        a(f"v_add_u32 v{V_AA+j}, s44, v{V_AB+j}")
    for j in range(nb):
        a(f"v_add_u32 v{V_BA+j}, s45, v{V_BB+j}")
    a("s_barrier")
    substep(a, trk, FR1, reads_for(btype, FR0, 0), "s3", "s0")
    assert trk.out == entry_state
    a(f"""
    s_add_u32 s46, s46, 1
    s_cmp_lt_u32 s46, {nsteps}
    s_cbranch_scc1 {pfx}_loop
    s_waitcnt lgkmcnt(0)
    s_nop 15
    s_nop 3
    """)


def zero_acc(a):
    for i in range(96):
        a(f"v_mov_b32 v{ACC+i}, 0")


def loader_loop(a, pfx, L, slot_bytes, ring_base, issue_fn, first_extra_barrier):
    a("s_mov_b32 s50, 0")
    a(f"s_mov_b32 s51, {ring_base}")
    a(f"s_mov_b32 s52, {-NS}")
    a.label(f"{pfx}_loop")
    a("s_cmp_lt_i32 s52, -1")
    a(f"s_cbranch_scc1 {pfx}_iss")
    if first_extra_barrier:
        a("s_cmp_lg_i32 s52, -1")
        a(f"s_cbranch_scc1 {pfx}_nx")
        a("s_barrier")
        a.label(f"{pfx}_nx")
    a(f"s_sub_i32 s53, s{S_NT}, s52")
    for c in range(NS - 2, 0, -1):
        a(f"s_cmp_ge_i32 s53, {c+2}")
        a(f"s_cbranch_scc1 {pfx}_w{c}")
    a("s_waitcnt vmcnt(0)")
    a(f"s_branch {pfx}_bar")
    for c in range(1, NS - 1):
        a.label(f"{pfx}_w{c}")
        a(f"s_waitcnt vmcnt({c*L})")
        if c != NS - 2:
            a(f"s_branch {pfx}_bar")
    a.label(f"{pfx}_bar")
    a("s_barrier")
    a.label(f"{pfx}_iss")
    a(f"s_cmp_ge_u32 s50, s{S_NT}")
    a(f"s_cbranch_scc1 {pfx}_skip")
    issue_fn()
    a("s_add_u32 s50, s50, 1")
    a(f"s_add_u32 s51, s51, {slot_bytes}")
    a(f"s_cmp_ge_u32 s51, {ring_base + NS*slot_bytes}")
    a(f"s_cselect_b32 s51, {ring_base}, s51")
    a.label(f"{pfx}_skip")
    a(f"""
    s_add_i32 s52, s52, 1
    s_cmp_lt_i32 s52, s{S_NT}
    s_cbranch_scc1 {pfx}_loop
    s_endpgm
    """)


def issue_k(a, nq, stride, srdr, ve, flags=""):
    for q in range(nq):
        a(f"s_add_u32 m0, s58, {q*1024}")
        a(f"s_add_u32 s54, s57, {q*8*stride}")
        a(f"buffer_load_dwordx4 v{ve+1 if q & 1 else ve}, s[{srdr}:{srdr+3}], s54 offen {flags} lds")


def issue_n(a, stride, srdr, vb, flags=""):
    for aa in range(4):
        for b in range(3):
            a(f"s_add_u32 m0, s58, {(3*aa+b)*1024}")
            a(f"s_add_u32 s54, s57, {aa*8*stride}")
            a(f"buffer_load_dwordx4 v{vb+b}, s[{srdr}:{srdr+3}], s54 offen {flags} lds")


def g2_kk(a):
    a(f"""
    s_sub_u32 s62, s50, 18
    s_mul_i32 s63, s{S_SPLIT}, 13
    s_cmp_lt_u32 s62, s{S_NF}
    s_cbranch_scc1 1f
    s_sub_u32 s62, s62, s{S_NF}
    s_mul_i32 s63, s{S_SPLIT}, 14
    s_add_u32 s63, s63, 64
    s_cmp_eq_u32 s{S_SPLIT}, 4
    s_addc_u32 s63, s63, 0
    """)
    a.lines.append("1:")
    a("s_add_u32 s62, s62, s63")


def gen_kernel(a):
    name = NAME + "_kernel"
    a.lines.append(f".globl {name}")
    a.lines.append(".p2align 8")
    a.lines.append(f".type {name},@function")
    a.label(name)
    a(f"""
    s_cmp_ge_u32 s2, {NWG}
    s_cbranch_scc1 K_done
    """)
    stamp(a, 0)
    a(f"""
    s_load_dwordx8 s[4:11], s[0:1], 0
    s_load_dwordx2 s[12:13], s[0:1], 32
    s_load_dwordx4 s[16:19], s[0:1], 48
    s_load_dwordx4 s[20:23], s[0:1], 64
    s_load_dwordx2 s[24:25], s[0:1], 80
    v_lshrrev_b32 v1, 6, v0
    s_and_b32 s33, s2, 7
    s_mul_i32 s33, s33, 30
    s_lshr_b32 s34, s2, 3
    v_readfirstlane_b32 s3, v1
    s_add_u32 s{S_L}, s33, s34
    s_lshr_b32 s{S_NT1}, s{S_L}, 3
    s_and_b32 s{S_MT1}, s{S_L}, 7
    s_lshr_b32 s{S_N1}, s{S_L}, 4
    s_and_b32 s{S_M}, s{S_L}, 15
    s_mul_i32 s{S_SPLIT}, s{S_L}, 1366
    s_lshr_b32 s{S_SPLIT}, s{S_SPLIT}, 16
    s_mul_i32 s40, s{S_SPLIT}, 48
    s_sub_u32 s{S_TILE}, s{S_L}, s40
    s_mul_i32 s{S_MT2}, s{S_TILE}, 21846
    s_lshr_b32 s{S_MT2}, s{S_MT2}, 16
    s_mul_i32 s40, s{S_MT2}, 3
    s_sub_u32 s{S_NT2}, s{S_TILE}, s40
    s_cmp_eq_u32 s{S_SPLIT}, 4
    s_cselect_b32 s{S_NF}, 12, 13
    s_cmp_eq_u32 s{S_SPLIT}, 3
    s_cselect_b32 s{S_N2}, 28, 27
    s_add_u32 s{S_NT}, s{S_N2}, 18
    s_waitcnt lgkmcnt(0)
    """)
    srd(a, SRD_DBG, S_DBG, 256)
    srd_off(a, SRD_F, S_WS, WS_F, F_BYTES)
    a(f"""
    s_or_b32 s40, s2, s3
    s_cmp_lg_u32 s40, 0
    s_cbranch_scc1 K_nopub
    s_memrealtime s[40:41]
    s_waitcnt lgkmcnt(0)
    s_or_b32 s40, s40, 1
    v_mov_b32 v60, s40
    v_mov_b32 v61, s41
    v_mov_b32 v63, 0
    s_mov_b64 exec, 1
    buffer_store_dwordx2 v[60:61], v63, s[{SRD_DBG}:{SRD_DBG+3}], 0 offen sc1
    s_mov_b64 exec, -1
    """)
    a.label("K_nopub")
    a("s_cmp_ge_u32 s3, 8")
    a("s_cbranch_scc1 K_loader")
    a("s_and_b32 s40, s3, 3")
    a(f"s_lshr_b32 s{S_WM}, s40, 1")
    a(f"s_and_b32 s{S_WN}, s40, 1")
    a("s_cmp_ge_u32 s3, 4")
    a("s_cbranch_scc1 K_g1")
    a("s_cmp_ge_u32 s3, 3")
    a("s_cbranch_scc1 K_lnskip")
    ln_phase(a)
    a.label("K_lnskip")
    a("s_barrier")
    a("s_cmp_lg_u32 s3, 0")
    a("s_cbranch_scc1 K_lnsig")
    get_nonce(a)
    a(f"s_lshl_b32 s41, s{S_MT1}, 8")
    a(f"s_lshl_b32 s40, s{S_NT1}, 3")
    a("s_add_u32 s41, s41, s40")
    a(f"s_add_u32 s41, s41, {C_LN*256}")
    signal(a, 41)
    a.label("K_lnsig")
    stamp(a, 1)
    zero_acc(a)
    a(f"s_cmp_ge_u32 s{S_N1}, 6")
    a("s_cbranch_scc1 T1_KN")
    consumer_addr_setup(a, "NK")
    a("s_barrier")
    stamp(a, 2)
    cons_loop(a, "T1nk", "NK", 9, 0)
    a("s_branch T1_done")
    a.label("T1_KN")
    consumer_addr_setup(a, "KN")
    a("s_barrier")
    stamp(a, 2)
    cons_loop(a, "T1kn", "KN", 9, 0)
    a.label("T1_done")
    stamp(a, 3)
    a(f"s_mov_b32 s46, s{S_N1}")
    a("s_branch K_epi")
    a.label("K_g1")
    if WTOUCH:
        srd(a, SRD_C, S_W1, W1_BYTES)
        a(f"""
        v_subrev_u32 v56, 256, v0
        v_mul_u32_u24 v57, 21846, v56
        v_lshrrev_b32 v57, 16, v57
        v_mul_u32_u24 v59, 3, v57
        v_sub_u32 v59, v56, v59
        s_mul_i32 s40, s{S_M}, 36
        v_add_u32 v57, s40, v57
        v_mul_u32_u24 v57, 9216, v57
        v_lshl_add_u32 v57, v59, 7, v57
        v_mov_b32 v59, 0x7f000000
        v_cmp_gt_u32 vcc, 108, v56
        s_add_u32 s40, s{S_N1}, 9
        s_mul_i32 s40, s40, 384
        v_cndmask_b32 v57, v59, v57, vcc
        buffer_load_dword v160, v57, s[{SRD_C}:{SRD_C+3}], s40 offen
        s_cmp_lt_u32 s{S_N1}, 6
        s_cbranch_scc1 K_wt2
        s_sub_u32 s40, s{S_N1}, 6
        s_mul_i32 s40, s40, 384
        buffer_load_dword v160, v57, s[{SRD_C}:{SRD_C+3}], s40 offen
        s_branch K_wt3
        """)
        a.label("K_wt2")
        a(f"""
        s_cmp_ge_u32 s{S_N1}, 3
        s_cselect_b32 s60, s{S_WDIM}, s{S_WDRE}
        s_cselect_b32 s61, s{S_WDIM+1}, s{S_WDRE+1}
        s_cselect_b32 s40, 3, 0
        s_sub_u32 s40, s{S_N1}, s40
        s_mul_i32 s40, s40, 192
        s_mul_i32 s41, s{S_M}, 12
        s_add_u32 s40, s40, s41
        s_mul_i32 s40, s40, 1152
        v_lshlrev_b32 v57, 7, v56
        v_cndmask_b32 v57, v59, v57, vcc
        """)
        srd(a, SRD_C, 60, WD_BYTES)
        a(f"buffer_load_dword v160, v57, s[{SRD_C}:{SRD_C+3}], s40 offen")
        a.label("K_wt3")
    a("s_barrier")
    zero_acc(a)
    consumer_addr_setup(a, "KN")
    a("s_barrier")
    if TOUCH:
        srd(a, SRD_A, S_WSRE, PANEL)
        srd(a, SRD_B, S_WSIM, PANEL)
        srd(a, SRD_C, S_W2, W2_BYTES)
        a(f"""
        v_and_b32 v59, 63, v0
        s_mul_i32 s40, s{S_L}, 274
        v_add_u32 v56, s40, v59
        v_lshlrev_b32 v56, 7, v56
        s_mul_i32 s40, s{S_L}, 173
        v_add_u32 v55, s40, v59
        v_lshlrev_b32 v55, 7, v55
        v_mov_b32 v53, 0x7f000000
        v_cmp_gt_u32 vcc, 18, v59
        s_nop 1
        v_cndmask_b32 v57, v53, v56, vcc
        v_cmp_gt_u32 vcc, 45, v59
        s_nop 1
        v_cndmask_b32 v54, v53, v55, vcc
        """)
        items = []
        for r in range(5):
            items.append((SRD_A, 56 if r < 4 else 57, r))
            items.append((SRD_B, 56 if r < 4 else 57, r))
        for r in range(3):
            items.append((SRD_C, 55 if r < 2 else 54, r))
        sched = {}
        for i, it in enumerate(items):
            sched.setdefault(TSTART + i * (TSPAN - TSTART) // 13, []).append((i & 3, it))
        for t in range(9):
            for w, (sr, vr, r) in sched.get(t, []):
                lb = a.new("tch")
                a(f"s_cmp_lg_u32 s3, {4+w}")
                a(f"s_cbranch_scc1 {lb}")
                a(f"s_mov_b32 s40, {r*8192}")
                a(f"buffer_load_dword v160, v{vr}, s[{sr}:{sr+3}], s40 offen")
                a.label(lb)
            a("s_barrier")
    else:
        for _ in range(9):
            a("s_barrier")
    cons_loop(a, "T2", "KN", 9, 9)
    a("s_waitcnt vmcnt(0)")
    a(f"s_add_u32 s46, s{S_N1}, 15")
    a.label("K_epi")
    srd_off(a, SRD_A, S_WS, WS_AB, AB_BYTES)
    srd_off(a, SRD_B, S_WS, WS_H, 3 * PANEL)
    a(f"""
    s_lshl_b32 s49, s{S_M}, 7
    s_cmp_ge_u32 s46, 6
    s_cbranch_scc1 E_h
    s_mov_b32 s43, 0x80008000
    s_cmp_ge_u32 s46, 3
    s_cselect_b32 s42, 0x80008000, 0
    s_cselect_b32 s41, 2048, 0
    s_cselect_b32 s40, 3, 0
    s_add_u32 s49, s49, s41
    s_sub_u32 s40, s46, s40
    s_mul_i32 s48, s40, 192
    s_mov_b32 s47, 1152
    s_lshl_b32 s41, s46, 8
    s_lshl_b32 s40, s{S_M}, 3
    s_add_u32 s41, s41, s40
    s_add_u32 s41, s41, {C_AB*256}
    s_branch E_go
    """)
    a.label("E_h")
    a(f"""
    s_mov_b32 s42, 0
    s_mov_b32 s43, 0
    s_mov_b32 s{SRD_A}, s{SRD_B}
    s_mov_b32 s{SRD_A+1}, s{SRD_B+1}
    s_mov_b32 s{SRD_A+2}, s{SRD_B+2}
    s_sub_u32 s40, s46, 6
    s_mul_i32 s48, s40, 192
    s_mov_b32 s47, 4096
    s_lshl_b32 s41, s{S_M}, 8
    s_lshl_b32 s40, s40, 3
    s_add_u32 s41, s41, s40
    s_add_u32 s41, s41, {C_H*256}
    """)
    a.label("E_go")
    a(f"""
    s_lshl_b32 s40, s{S_WM}, 6
    s_add_u32 s49, s49, s40
    s_mul_i32 s40, s{S_WN}, 96
    s_add_u32 s48, s48, s40
    v_and_b32 v60, 15, v0
    v_add_u32 v60, s49, v60
    v_mul_lo_u32 v60, v60, s47
    v_bfe_u32 v61, v0, 4, 1
    v_bfe_u32 v62, v0, 5, 1
    v_lshlrev_b32 v61, 4, v61
    v_lshl_add_u32 v61, v62, 3, v61
    v_add_u32 v61, s48, v61
    """)
    for ni in range(3):
        a(f"""
        v_add_u32 v62, {32*ni}, v61
        v_lshrrev_b32 v63, 11, v62
        v_lshlrev_b32 v63, 23, v63
        v_and_b32 v62, 2047, v62
        v_add_u32 v63, v60, v63
        v_lshl_add_u32 v{2+ni}, v62, 1, v63
        """)
    for mi in range(2):
        a(f"s_mul_i32 s44, s47, {32*mi}")
        a(f"s_mul_i32 s45, s47, {32*mi+16}")
        for ni in range(3):
            c = ACC + 16 * (3 * mi + ni)
            t = 20 + 8 * (ni & 1)
            for r in range(8):
                a(f"v_cvt_pk_bf16_f32 v{t+r}, v{c+2*r}, v{c+2*r+1}")
            for r in range(8):
                a(f"v_pk_max_i16 v{t+r}, v{t+r}, s43")
            for r in range(8):
                a(f"v_xor_b32 v{t+r}, s42, v{t+r}")
            a("s_nop 1")
            a(f"v_permlane32_swap_b32 v{t}, v{t+2}")
            a(f"v_permlane32_swap_b32 v{t+1}, v{t+3}")
            a(f"v_permlane32_swap_b32 v{t+4}, v{t+6}")
            a(f"v_permlane32_swap_b32 v{t+5}, v{t+7}")
            a("s_nop 1")
            for r in range(4):
                a(f"v_permlane16_swap_b32 v{t+r}, v{t+4+r}")
            a(f"buffer_store_dwordx4 v[{t}:{t+3}], v{2+ni}, s[{SRD_A}:{SRD_A+3}], s44 offen sc1")
            a(f"buffer_store_dwordx4 v[{t+4}:{t+7}], v{2+ni}, s[{SRD_A}:{SRD_A+3}], s45 offen sc1")
        a("s_barrier")
    a("s_barrier")
    a("s_barrier")
    a("s_waitcnt vmcnt(0)")
    a("s_barrier")
    a("s_and_b32 s40, s3, 3")
    a("s_cmp_lg_u32 s40, 0")
    a("s_cbranch_scc1 E_sig")
    a("s_cmp_eq_u32 s3, 0")
    a("s_cbranch_scc1 E_sig0")
    get_nonce(a)
    a.label("E_sig0")
    signal(a, 41)
    a.label("E_sig")
    a("s_cmp_ge_u32 s3, 4")
    a("s_cbranch_scc1 K_done")
    zero_acc(a)
    consumer_addr_setup(a, "KN")
    a("s_barrier")
    a("s_barrier")
    a("s_barrier")
    stamp(a, 4)
    a("s_barrier")
    stamp(a, 5)
    cons_loop(a, "G2c", "KN", f"s{S_N2}", 18)
    stamp(a, 6)
    srd_off(a, SRD_A, S_WS, WS_P, P_BYTES)
    a(f"""
    s_mul_i32 s42, s{S_L}, {P_TILE}
    s_mul_i32 s41, s3, 12288
    s_add_u32 s42, s42, s41
    v_and_b32 v7, 63, v0
    v_lshlrev_b32 v7, 4, v7
    s_add_u32 s43, s3, 5
    s_sub_u32 s43, s43, s{S_SPLIT}
    """)
    for i in range(6):
        sk = a.new("pst")
        a(f"s_add_u32 s40, s43, {i}")
        a("s_cmp_eq_u32 s40, 5")
        a(f"s_cbranch_scc1 {sk}")
        a("s_cmp_eq_u32 s40, 10")
        a(f"s_cbranch_scc1 {sk}")
        a(f"s_add_u32 s41, s42, {i*2048}")
        t = 20 + 8 * (i & 1)
        for r in range(8):
            a(f"v_cvt_pk_bf16_f32 v{t+r}, v{ACC+16*i+2*r}, v{ACC+16*i+2*r+1}")
        a(f"buffer_store_dwordx4 v[{t}:{t+3}], v7, s[{SRD_A}:{SRD_A+3}], s41 offen sc1")
        a(f"buffer_store_dwordx4 v[{t+4}:{t+7}], v7, s[{SRD_A}:{SRD_A+3}], s41 offen offset:1024 sc1")
        a.label(sk)
    a("s_waitcnt vmcnt(0)")
    a("s_barrier")
    a(f"""
    s_lshl_b32 s41, s{S_TILE}, 8
    s_add_u32 s41, s41, {C_P*256}
    s_lshl_b32 s47, s{S_SPLIT}, 3
    s_add_u32 s47, s47, s41
    s_cmp_lg_u32 s3, 0
    s_cbranch_scc1 K_psig
    """)
    signal(a, 47)
    a("s_branch K_psig2")
    a.label("K_psig")
    get_nonce(a)
    a.label("K_psig2")
    srd(a, SRD_B, S_X, XN_BYTES)
    srd(a, SRD_C, S_OUT, XN_BYTES)
    a(f"""
    s_lshl_b32 s49, s{S_MT2}, 7
    s_lshl_b32 s40, s{S_WM}, 6
    s_add_u32 s49, s49, s40
    s_mul_i32 s48, s{S_NT2}, 384
    s_mul_i32 s40, s{S_WN}, 192
    s_add_u32 s48, s48, s40
    v_and_b32 v2, 63, v0
    v_and_b32 v3, 31, v2
    v_lshrrev_b32 v4, 5, v2
    v_add_u32 v3, s49, v3
    v_mul_u32_u24 v3, 1152, v3
    v_add_u32 v3, s48, v3
    v_lshl_add_u32 v5, v4, 3, v3
    v_lshl_add_u32 v6, v4, 4, v3
    s_mul_i32 s42, s{S_TILE}, {P_TILE}
    s_mul_i32 s40, s3, 12288
    s_add_u32 s42, s42, s40
    s_mov_b32 s46, 5
    """)
    poll(a, 41, 0x1f)
    stamp(a, 7)
    a.label("F_loop")
    a("s_sub_i32 s45, s46, s43")
    a("s_cmp_lt_i32 s45, 0")
    a("s_cbranch_scc1 F_next")
    a("s_cmp_gt_i32 s45, 5")
    a("s_cbranch_scc1 F_next")
    a(f"""
    s_cmp_ge_u32 s45, 3
    s_cselect_b32 s40, 3, 0
    s_cselect_b32 s47, {32*1152}, 0
    s_sub_u32 s40, s45, s40
    s_lshl_b32 s40, s40, 6
    s_add_u32 s47, s47, s40
    s_lshl_b32 s48, s45, 11
    s_add_u32 s48, s48, s42
    """)
    XR, PR, W = 160, 8, 40
    for gq in range(4):
        a(f"buffer_load_dwordx2 v[{XR+2*gq}:{XR+1+2*gq}], v5, s[{SRD_B}:{SRD_B+3}], s47 offen offset:{gq*16}")
    for d in range(1, 5):
        r0 = PR + 8 * (d - 1)
        a(f"""
        s_add_u32 s44, s{S_SPLIT}, {d}
        s_sub_u32 s40, s44, 5
        s_cmp_ge_u32 s44, 5
        s_cselect_b32 s44, s40, s44
        s_mul_i32 s44, s44, {48*P_TILE}
        s_add_u32 s44, s44, s48
        buffer_load_dwordx4 v[{r0}:{r0+3}], v7, s[{SRD_A}:{SRD_A+3}], s44 offen sc1
        buffer_load_dwordx4 v[{r0+4}:{r0+7}], v7, s[{SRD_A}:{SRD_A+3}], s44 offen offset:1024 sc1
        """)
    for i in range(6):
        a(f"s_cmp_lg_u32 s45, {i}")
        a(f"s_cbranch_scc1 F_m{i}")
        for r in range(16):
            a(f"v_mov_b32 v{W+r}, v{ACC+16*i+r}")
        a.label(f"F_m{i}")
    for d in range(1, 5):
        a(f"s_waitcnt vmcnt({2*(4-d)})")
        for r in range(8):
            src = PR + 8 * (d - 1) + r
            a(f"""
            v_lshlrev_b32 v56, 16, v{src}
            v_and_b32 v57, 0xffff0000, v{src}
            v_add_f32 v{W+2*r}, v{W+2*r}, v56
            v_add_f32 v{W+2*r+1}, v{W+2*r+1}, v57
            """)
    for gq in range(4):
        c = W + 4 * gq
        a(f"""
        v_lshlrev_b32 v56, 16, v{XR+2*gq}
        v_and_b32 v57, 0xffff0000, v{XR+2*gq}
        v_lshlrev_b32 v58, 16, v{XR+1+2*gq}
        v_and_b32 v59, 0xffff0000, v{XR+1+2*gq}
        v_add_f32 v{c}, v{c}, v56
        v_add_f32 v{c+1}, v{c+1}, v57
        v_add_f32 v{c+2}, v{c+2}, v58
        v_add_f32 v{c+3}, v{c+3}, v59
        v_cvt_pk_bf16_f32 v{8+2*gq}, v{c}, v{c+1}
        v_cvt_pk_bf16_f32 v{9+2*gq}, v{c+2}, v{c+3}
        """)
    a(f"""
    s_nop 1
    v_permlane32_swap_b32 v8, v10
    v_permlane32_swap_b32 v9, v11
    v_permlane32_swap_b32 v12, v14
    v_permlane32_swap_b32 v13, v15
    buffer_store_dwordx4 v[8:11], v6, s[{SRD_C}:{SRD_C+3}], s47 offen
    buffer_store_dwordx4 v[12:15], v6, s[{SRD_C}:{SRD_C+3}], s47 offen offset:32
    s_nop 1
    """)
    a.label("F_next")
    a("s_add_u32 s46, s46, 5")
    a("s_cmp_le_u32 s46, 10")
    a("s_cbranch_scc1 F_loop")
    if STAMP:
        a("s_waitcnt vmcnt(0)")
    flush_stamps(a, 9)
    a("s_endpgm")

    a.label("K_loader")
    a("s_cmp_ge_u32 s3, 10")
    a("s_cbranch_scc1 K_loadB")
    srd_off(a, SRD_B, S_WS, WS_XN, XN_BYTES)
    voff_ktype(a, 1152, 1, 2)
    voff_ktype(a, 4096, 3, 4)
    a(f"""
    s_sub_u32 s59, s3, 8
    s_lshl_b32 s41, s{S_M}, 7
    s_lshl_b32 s56, s59, 6
    s_add_u32 s41, s41, s56
    s_mul_i32 s55, s41, 1152
    s_lshl_b32 s41, s{S_MT2}, 7
    s_add_u32 s41, s41, s56
    s_lshl_b32 s49, s41, 12
    s_lshl_b32 s56, s59, 13
    s_add_u32 s60, s{S_WS}, {WS_H}
    s_addc_u32 s61, s{S_WS+1}, 0
    s_mov_b32 s{SRD_A+2}, {PANEL}
    s_mov_b32 s{SRD_A+3}, 0x00020000
    s_barrier
    s_lshr_b32 s41, s{S_M}, 1
    s_lshl_b32 s41, s41, 8
    s_add_u32 s41, s41, {C_LN*256}
    """)
    get_nonce(a)
    poll(a, 41, 0x3fffffff)
    a(f"""
    s_mov_b32 s48, 0x1f
    s_cmp_eq_u32 s{S_SPLIT}, 1
    s_cselect_b32 s48, 0x3f0, s48
    s_cmp_eq_u32 s{S_SPLIT}, 2
    s_cselect_b32 s48, 0x3e00, s48
    s_cmp_eq_u32 s{S_SPLIT}, 3
    s_cselect_b32 s48, 0x7c000, s48
    s_cmp_eq_u32 s{S_SPLIT}, 4
    s_cselect_b32 s48, 0xf80000, s48
    s_lshl_b32 s47, s{S_MT2}, 8
    s_add_u32 s47, s47, {C_H*256}
    """)

    def issueA():
        a("s_add_u32 s58, s51, s56")
        a("s_cmp_ge_u32 s50, 18")
        a("s_cbranch_scc1 LA_g2")
        a("""
        s_sub_u32 s62, s50, 9
        s_cmp_ge_u32 s50, 9
        s_cselect_b32 s62, s62, s50
        s_lshl_b32 s57, s62, 7
        s_add_u32 s57, s57, s55
        """)
        issue_k(a, 8, 1152, SRD_B, 1, LDF)
        a("s_branch LA_end")
        a.label("LA_g2")
        a(f"s_sub_u32 s62, s50, 18")
        a(f"s_cmp_lg_u32 s62, s{S_NF}")
        a("s_cbranch_scc1 LA_np")
        poll(a, 47, "s48")
        a.label("LA_np")
        g2_kk(a)
        a(f"""
        s_lshr_b32 s63, s62, 5
        s_sub_u32 s41, s63, 2
        s_lshl_b32 s41, s41, 23
        s_add_u32 s{SRD_A}, s60, s41
        s_addc_u32 s{SRD_A+1}, s61, 0
        s_cmp_eq_u32 s63, 0
        s_cselect_b32 s{SRD_A}, s{S_WSRE}, s{SRD_A}
        s_cselect_b32 s{SRD_A+1}, s{S_WSRE+1}, s{SRD_A+1}
        s_cmp_eq_u32 s63, 1
        s_cselect_b32 s{SRD_A}, s{S_WSIM}, s{SRD_A}
        s_cselect_b32 s{SRD_A+1}, s{S_WSIM+1}, s{SRD_A+1}
        s_and_b32 s{SRD_A+1}, s{SRD_A+1}, 0xffff
        s_and_b32 s57, s62, 31
        s_lshl_b32 s57, s57, 7
        s_add_u32 s57, s57, s49
        """)
        issue_k(a, 8, 4096, SRD_A, 3, LDF)
        a.label("LA_end")
    loader_loop(a, "LA", 8, SA, 0, issueA, False)

    a.label("K_loadB")
    a(f"""
    s_sub_u32 s59, s3, 10
    s_cmp_ge_u32 s{S_N1}, 3
    s_cselect_b32 s60, s{S_WDIM}, s{S_WDRE}
    s_cselect_b32 s61, s{S_WDIM+1}, s{S_WDRE+1}
    """)
    srd(a, SRD_B, 60, WD_BYTES)
    srd(a, SRD_C, S_W1, W1_BYTES)
    voff_ktype(a, 1152, 1, 2)
    voff_ntype(a, 9216, 3)
    voff_ntype(a, 1152, 6)
    a(f"""
    s_mul_i32 s56, s59, {32*9216}
    s_add_u32 s41, s{S_N1}, 9
    s_mul_i32 s49, s41, 384
    s_add_u32 s49, s49, s56
    s_sub_u32 s41, s{S_N1}, 6
    s_mul_i32 s55, s41, 384
    s_add_u32 s55, s55, s56
    s_cmp_ge_u32 s{S_N1}, 6
    s_cbranch_scc1 LB_s1
    s_cmp_ge_u32 s{S_N1}, 3
    s_cselect_b32 s41, 3, 0
    s_sub_u32 s41, s{S_N1}, s41
    s_mul_i32 s41, s41, 192
    s_mul_i32 s56, s59, 96
    s_add_u32 s41, s41, s56
    s_mul_i32 s55, s41, 1152
    """)
    a.label("LB_s1")
    a(f"""
    s_mul_i32 s48, s{S_NT2}, 384
    s_mul_i32 s56, s59, {32*1152}
    s_add_u32 s48, s48, s56
    s_mul_i32 s56, s59, 12288
    s_add_u32 s60, s{S_WS}, {WS_AB}
    s_addc_u32 s61, s{S_WS+1}, 0
    s_mov_b32 s{SRD_A+3}, 0x00020000
    """)

    def issueB():
        a("s_add_u32 s58, s51, s56")
        a("s_cmp_ge_u32 s50, 18")
        a("s_cbranch_scc1 LB_g2")
        a("s_cmp_ge_u32 s50, 9")
        a("s_cbranch_scc1 LB_t2")
        a(f"s_cmp_ge_u32 s{S_N1}, 6")
        a("s_cbranch_scc1 LB_t1kn")
        a("s_lshl_b32 s57, s50, 7")
        a("s_add_u32 s57, s57, s55")
        issue_k(a, 12, 1152, SRD_B, 1)
        a("s_branch LB_end")
        a.label("LB_t1kn")
        a(f"s_mul_i32 s57, s50, {64*9216}")
        a("s_add_u32 s57, s57, s55")
        a("s_branch LB_kn")
        a.label("LB_t2")
        a("s_sub_u32 s62, s50, 9")
        a(f"s_mul_i32 s57, s62, {64*9216}")
        a("s_add_u32 s57, s57, s49")
        a.label("LB_kn")
        issue_n(a, 9216, SRD_C, 3)
        a("s_branch LB_end")
        a.label("LB_g2")
        a("s_cmp_lg_u32 s50, 18")
        a("s_cbranch_scc1 LB_np")
        get_nonce(a)
        a(f"s_cmp_ge_u32 s{S_SPLIT}, 3")
        a("s_cbranch_scc1 LB_p2")
        a(f"s_lshl_b32 s41, s{S_NT2}, 8")
        a(f"s_add_u32 s41, s41, {C_AB*256}")
        poll(a, 41, 0xffff)
        a.label("LB_p2")
        a(f"s_cmp_lt_u32 s{S_SPLIT}, 2")
        a("s_cbranch_scc1 LB_np")
        a(f"s_lshl_b32 s41, s{S_NT2}, 8")
        a(f"s_add_u32 s41, s41, {(C_AB+3)*256}")
        poll(a, 41, 0xffff)
        a.label("LB_np")
        g2_kk(a)
        a(f"""
        s_sub_u32 s63, s62, 64
        s_cmp_lt_u32 s62, 64
        s_cselect_b32 s63, s62, s63
        s_cselect_b32 s{SRD_A}, s60, s{S_W2}
        s_cselect_b32 s{SRD_A+1}, s61, s{S_W2+1}
        s_mov_b32 s{SRD_A+2}, {W2_BYTES}
        s_cselect_b32 s{SRD_A+2}, {AB_BYTES}, s{SRD_A+2}
        s_and_b32 s{SRD_A+1}, s{SRD_A+1}, 0xffff
        s_mul_i32 s57, s63, {64*1152}
        s_add_u32 s57, s57, s48
        """)
        issue_n(a, 1152, SRD_A, 6, LDF)
        a.label("LB_end")
    loader_loop(a, "LB", 12, SB, LDS_B, issueB, True)
    a.label("K_done")
    a("s_endpgm")
    return name


def main():
    a = Asm()
    name = gen_kernel(a)
    head = f"; generated by gen3.py\n; @launch grid=({NWG},1,1) block=(768,1,1) lds={LDS_TOTAL}\n"
    head += '.amdgcn_target "amdgcn-amd-amdhsa--gfx950"\n.text\n'
    tail = f""".section .rodata,"a"
.p2align 6
.amdhsa_kernel {name}
  .amdhsa_next_free_vgpr 168
  .amdhsa_next_free_sgpr 102
  .amdhsa_accum_offset 168
  .amdhsa_group_segment_fixed_size 0
  .amdhsa_kernarg_size 88
  .amdhsa_user_sgpr_count 2
  .amdhsa_user_sgpr_kernarg_segment_ptr 1
  .amdhsa_system_sgpr_workgroup_id_x 1
  .amdhsa_float_denorm_mode_32 3
  .amdhsa_float_denorm_mode_16_64 3
.end_amdhsa_kernel
"""
    open(OUT, "w").write(head + a.text() + tail)


if __name__ == "__main__":
    main()
```

```python
import sys, os
NOLOAD = int(os.environ.get("NOLOAD", "0"))
NOCOMP = int(os.environ.get("NOCOMP", "0"))
STAMP = int(os.environ.get("STAMP", "0"))
WS_STAMP = 0x5000000

NAME = "parallel_sum__spectral_fnet__dense_activation_relu__prompt"
OUT = os.environ.get("OUT", "cdna_kernels/%s.s" % NAME)

WS_BASE = int(os.environ.get("WS_BASE", "0"), 0)
WS_XN = WS_BASE + 0x0
WS_AB = WS_BASE + 0x400000
WS_H = WS_BASE + 0x1000000
WS_P = WS_BASE + 0x2800000
XN_BYTES = 2048 * 576 * 2
AB_BYTES = 4096 * 576 * 2
PANEL = 2048 * 2048 * 2
W1_BYTES = 576 * 4608 * 2
W2_BYTES = 4608 * 576 * 2
WD_BYTES = 576 * 576 * 2
NSPLIT = 5
G2_TILES = 48
NWG = 240
P_TILE = 128 * 192 * 4
P_BYTES = NWG * P_TILE

C_LN, C_AB, C_H, C_P = 0, 8, 16, 40

S_X, S_WSRE, S_WSIM, S_WDRE, S_WDIM, S_W1, S_W2, S_OUT, S_DBG, S_WS = 4, 6, 8, 10, 12, 16, 18, 20, 22, 24
S_SPLIT, S_TILE, S_MT2, S_NT2, S_K0, S_N2 = 26, 27, 32, 39, 66, 67
SRD_DBG = 28
S_L, S_NT1, S_MT1, S_NS, S_WM, S_WN = 33, 34, 35, 36, 37, 38
SRD_A, SRD_B, SRD_C = 68, 72, 76
SRD_F = 92


class Asm:
    def __init__(self):
        self.lines = []
        self.uid = 0

    def __call__(self, s=""):
        for l in s.split("\n"):
            l = l.strip()
            if NOLOAD and l.endswith(" lds"):
                continue
            if NOCOMP and (l.startswith("v_mfma") or l.startswith("ds_read_b64_tr") or (l.startswith("ds_read_b128") and "offset" in l)):
                continue
            if l:
                self.lines.append("    " + l if not l.endswith(":") else l)

    def label(self, s):
        self.lines.append(s + ":")

    def new(self, p):
        self.uid += 1
        return f"{p}_{self.uid}"

    def text(self):
        return "\n".join(self.lines) + "\n"


def srd(a, d, lo, size):
    a(f"s_mov_b32 s{d}, s{lo}")
    a(f"s_and_b32 s{d+1}, s{lo+1}, 0xffff")
    a(f"s_mov_b32 s{d+2}, {size}")
    a(f"s_mov_b32 s{d+3}, 0x00020000")


def srd_off(a, d, lo, off, size):
    a(f"s_add_u32 s{d}, s{lo}, {off}")
    a(f"s_addc_u32 s{d+1}, s{lo+1}, 0")
    a(f"s_and_b32 s{d+1}, s{d+1}, 0xffff")
    a(f"s_mov_b32 s{d+2}, {size}")
    a(f"s_mov_b32 s{d+3}, 0x00020000")


def stamp(a, i, wait=False):
    if STAMP:
        a("s_memrealtime s[98:99]")
        a("s_waitcnt lgkmcnt(0)")
        a(f"s_mov_b32 s{80+i}, s98")


def flush_stamps(a, n):
    if not STAMP:
        return
    lbl = a.new("ST_skip")
    a("s_cmp_lg_u32 s3, 0")
    a(f"s_cbranch_scc1 {lbl}")
    stamp(a, n - 1)
    if STAMP == 2:
        l2 = a.new("ST2")
        a("v_mov_b32 v1, 0")
        a("s_cmp_lg_u32 s2, 0")
        a(f"s_cbranch_scc1 {l2}")
        for i in range(n):
            a(f"s_sub_u32 s40, s{80+i}, s{S_NLO}")
            a("v_mov_b32 v2, s40")
            a(f"buffer_store_dword v2, v1, s[{SRD_DBG}:{SRD_DBG+3}], 0 offen offset:{8+4*i}")
        a.label(l2)
        a("s_cmp_lg_u32 s2, 101")
        a(f"s_cbranch_scc1 {lbl}")
        for j, i in enumerate((2, 3, 5, 6, 8)):
            a(f"s_sub_u32 s40, s{80+i}, s{S_NLO}")
            a("v_mov_b32 v2, s40")
            a(f"buffer_store_dword v2, v1, s[{SRD_DBG}:{SRD_DBG+3}], 0 offen offset:{44+4*j}")
        a.label(lbl)
        return
    srd_off(a, SRD_A, S_WS, WS_STAMP, 0x10000)
    a("s_lshl_b32 s100, s2, 6")
    a("v_mov_b32 v1, 0")
    a("s_waitcnt lgkmcnt(0)")
    for i in range(n):
        a(f"v_mov_b32 v2, s{80+i}")
        a(f"buffer_store_dword v2, v1, s[{SRD_A}:{SRD_A+3}], s100 offen offset:{4*i}")
    a.label(lbl)


WS_F = WS_BASE + 0x3f00000
F_BYTES = 96 * 256
S_NLO, S_NHI = 14, 15
POLL_SLEEP = int(os.environ.get("POLL_SLEEP", "4"))
CODEPF = int(os.environ.get("CODEPF", "1"))
TOUCH = os.environ.get("TOUCH", "plain")


def get_nonce(a):
    l = a.new("nonce")
    d = a.new("nonced")
    a("v_mov_b32 v63, 0")
    a("s_mov_b32 s101, 0")
    a.label(l)
    a("s_add_u32 s101, s101, 1")
    a("s_cmp_ge_u32 s101, 0x40000")
    a(f"s_cbranch_scc1 {d}")
    a(f"buffer_load_dwordx2 v[60:61], v63, s[{SRD_DBG}:{SRD_DBG+3}], 0 offen sc1")
    a("s_waitcnt vmcnt(0)")
    a(f"v_readfirstlane_b32 s{S_NLO}, v60")
    a(f"v_readfirstlane_b32 s{S_NHI}, v61")
    a(f"s_or_b32 s40, s{S_NLO}, s{S_NHI}")
    a("s_cmp_lg_u32 s40, 0")
    a(f"s_cbranch_scc1 {d}")
    a("s_sleep 2")
    a(f"s_branch {l}")
    a.label(d)


def signal(a, s_off):
    a(f"""
    v_mov_b32 v60, s{S_NLO}
    v_mov_b32 v61, s{S_NHI}
    v_mov_b32 v63, 0
    s_mov_b64 exec, 1
    buffer_store_dwordx2 v[60:61], v63, s[{SRD_F}:{SRD_F+3}], s{s_off} offen sc1
    s_mov_b64 exec, -1
    """)


def poll(a, s_off, mask):
    l = a.new("poll")
    d = a.new("polld")
    a("v_and_b32 v63, 31, v0")
    a("v_lshlrev_b32 v63, 3, v63")
    a("s_mov_b32 s101, 0")
    a.label(l)
    a("s_add_u32 s101, s101, 1")
    a("s_cmp_ge_u32 s101, 0x40000")
    a(f"s_cbranch_scc1 {d}")
    a(f"buffer_load_dwordx2 v[60:61], v63, s[{SRD_F}:{SRD_F+3}], s{s_off} offen sc1")
    a("s_waitcnt vmcnt(0)")
    a(f"v_cmp_eq_u32 s[62:63], s{S_NLO}, v60")
    a(f"v_cmp_eq_u32 vcc, s{S_NHI}, v61")
    a("s_nop 1")
    a("s_and_b32 s40, s62, vcc_lo")
    a(f"s_and_b32 s40, s40, {mask}")
    a(f"s_cmp_eq_u32 s40, {mask}")
    a(f"s_cbranch_scc1 {d}")
    a(f"s_sleep {POLL_SLEEP}")
    a(f"s_branch {l}")
    a.label(d)


def ln_phase(a):
    a(f"""
    v_lshrrev_b32 v1, 4, v0
    v_mul_u32_u24 v2, 30, v1
    v_add_u32 v2, s{S_NT1}, v2
    s_lshl_b32 s40, s{S_MT1}, 8
    v_add_u32 v3, s40, v2
    v_mul_u32_u24 v3, 1152, v3
    v_and_b32 v4, 15, v0
    v_lshl_add_u32 v3, v4, 3, v3
    v_mov_b32 v4, 0x7f000000
    v_cmp_gt_u32 vcc, 256, v2
    s_nop 1
    v_cndmask_b32 v1, v4, v3, vcc
    """)
    srd(a, SRD_A, S_X, XN_BYTES)
    srd_off(a, SRD_B, S_WS, WS_XN, XN_BYTES)
    for p in range(9):
        a(f"buffer_load_dwordx2 v[{4+2*p}:{5+2*p}], v1, s[{SRD_A}:{SRD_A+3}], 0 offen offset:{p*128}")
    X = 24
    for p in range(9):
        a(f"s_waitcnt vmcnt({8-p})")
        for j in range(2):
            src = 4 + 2 * p + j
            a(f"v_lshlrev_b32 v{X+4*p+2*j}, 16, v{src}")
            a(f"v_and_b32 v{X+4*p+2*j+1}, 0xffff0000, v{src}")
    a(f"v_add_f32 v60, v{X}, v{X+1}")
    a(f"v_add_f32 v61, v{X+2}, v{X+3}")
    for i in range(4, 36, 2):
        a(f"v_add_f32 v60, v60, v{X+i}")
        a(f"v_add_f32 v61, v61, v{X+i+1}")
    a("v_add_f32 v60, v60, v61")

    def allreduce(r, t):
        for sh in (8, 4, 2, 1):
            a("s_nop 1")
            a(f"v_add_f32_dpp v{t}, v{r}, v{r} row_ror:{sh} row_mask:0xf bank_mask:0xf")
            a(f"v_mov_b32 v{r}, v{t}")
    allreduce(60, 61)
    a("v_mul_f32 v60, 0x3ae38e39, v60")
    a(f"v_sub_f32 v62, v{X}, v60")
    a("v_mul_f32 v63, v62, v62")
    a(f"v_sub_f32 v62, v{X+1}, v60")
    a("v_mul_f32 v64, v62, v62")
    for i in range(2, 36, 2):
        a(f"v_sub_f32 v62, v{X+i}, v60")
        a(f"v_sub_f32 v65, v{X+i+1}, v60")
        a("v_fmac_f32 v63, v62, v62")
        a("v_fmac_f32 v64, v65, v65")
    a("v_add_f32 v63, v63, v64")
    allreduce(63, 61)
    a("""
    v_mul_f32 v63, 0x3ae38e39, v63
    v_cvt_pk_bf16_f32 v61, v60, v63
    v_lshlrev_b32 v60, 16, v61
    v_and_b32 v63, 0xffff0000, v61
    v_add_f32 v63, 0x3727c5ac, v63
    v_cvt_pk_bf16_f32 v63, v63, v63
    v_and_b32 v63, 0xffff0000, v63
    v_sqrt_f32 v63, v63
    s_nop 0
    v_cvt_pk_bf16_f32 v63, v63, v63
    v_and_b32 v63, 0xffff0000, v63
    v_rcp_f32 v64, v63
    s_nop 0
    """)
    for p in range(9):
        for j in range(2):
            e0 = X + 4 * p + 2 * j
            e1 = e0 + 1
            a(f"""
            v_sub_f32 v{e0}, v{e0}, v60
            v_sub_f32 v{e1}, v{e1}, v60
            v_cvt_pk_bf16_f32 v66, v{e0}, v{e1}
            v_lshlrev_b32 v{e0}, 16, v66
            v_and_b32 v{e1}, 0xffff0000, v66
            v_mul_f32 v66, v{e0}, v64
            v_mul_f32 v67, v{e1}, v64
            v_fma_f32 v68, -v66, v63, v{e0}
            v_fma_f32 v69, -v67, v63, v{e1}
            v_fmac_f32 v66, v68, v64
            v_fmac_f32 v67, v69, v64
            v_cvt_pk_bf16_f32 v{4+2*p+j}, v66, v67
            """)
        a(f"buffer_store_dwordx2 v[{4+2*p}:{5+2*p}], v1, s[{SRD_B}:{SRD_B+3}], 0 offen offset:{p*128} sc1")
    a("s_waitcnt vmcnt(0)")


V_AB, V_AA, V_BB, V_BA = 1, 5, 9, 13
FR0, FR1, ACC = 20, 40, 64
LDS_B = 65536


def frag(setb, which):
    return setb + {"A0": 0, "A1": 4, "B0": 8, "B1": 12, "B2": 16}[which]


def reads_for(btype, setb, j):
    r = []

    def aread(mi):
        d = frag(setb, f"A{mi}")
        return (f"A{mi}", f"ds_read_b128 v[{d}:{d+3}], v{V_AA+j} offset:{4096*mi}")

    def bread(ni):
        d = frag(setb, f"B{ni}")
        if btype == "NK":
            return [(f"B{ni}", f"ds_read_b128 v[{d}:{d+3}], v{V_BA+j} offset:{4096*ni}")]
        return [(f"B{ni}", f"ds_read_b64_tr_b16 v[{d}:{d+1}], v{V_BA+ni} offset:{(16*j)*384}"),
                (f"B{ni}", f"ds_read_b64_tr_b16 v[{d+2}:{d+3}], v{V_BA+ni} offset:{(16*j+4)*384}")]
    r.append(aread(0))
    r += bread(0)
    r += bread(1)
    r += bread(2)
    r.append(aread(1))
    return r


class LgkmTracker:
    def __init__(self, a):
        self.a = a
        self.out = []

    def issue(self, tag, instr):
        self.a(instr)
        self.out.append(tag)

    def need(self, tags):
        last = -1
        for i, t in enumerate(self.out):
            if t in tags:
                last = i
        if last < 0:
            return
        n = len(self.out) - 1 - last
        assert n <= 15
        self.a(f"s_waitcnt lgkmcnt({n})")
        self.out = self.out[last + 1:]

    def drain(self):
        self.a("s_waitcnt lgkmcnt(0)")
        self.out = []


def substep(a, trk, cur, nxt_reads, curtag, nxttag):
    order = [(0, 0), (0, 1), (0, 2), (1, 0), (1, 1), (1, 2)]
    nr = len(nxt_reads)
    per = [2, 2, 2, 2, 0, 0] if nr == 8 else [2, 1, 1, 1, 0, 0]
    ri = 0
    for idx, (mi, ni) in enumerate(order):
        trk.need([curtag + f"A{mi}", curtag + f"B{ni}"])
        A = frag(cur, f"A{mi}")
        B = frag(cur, f"B{ni}")
        c = ACC + 16 * (3 * mi + ni)
        a(f"v_mfma_f32_32x32x16_bf16 v[{c}:{c+15}], v[{B}:{B+3}], v[{A}:{A+3}], v[{c}:{c+15}]")
        for _ in range(per[idx]):
            t, ins = nxt_reads[ri]
            trk.issue(nxttag + t, ins)
            ri += 1
    assert ri == nr


def consumer_addr_setup(a, btype):
    a(f"""
    v_and_b32 v60, 63, v0
    v_and_b32 v61, 31, v60
    v_lshrrev_b32 v62, 5, v60
    v_lshrrev_b32 v63, 1, v60
    v_and_b32 v63, 7, v63
    s_lshl_b32 s40, s{S_WM}, 6
    v_add_u32 v17, s40, v61
    v_lshlrev_b32 v17, 7, v17
    """)
    for j in range(4):
        a(f"v_add_u32 v18, {2*j}, v62")
        a("v_xor_b32 v18, v18, v63")
        a(f"v_lshl_add_u32 v{V_AB+j}, v18, 4, v17")
    if btype == "NK":
        a(f"""
        s_mul_i32 s40, s{S_WN}, 96
        v_add_u32 v17, s40, v61
        v_lshlrev_b32 v17, 7, v17
        v_add_u32 v17, {LDS_B}, v17
        """)
        for j in range(4):
            a(f"v_add_u32 v18, {2*j}, v62")
            a("v_xor_b32 v18, v18, v63")
            a(f"v_lshl_add_u32 v{V_BB+j}, v18, 4, v17")
    else:
        a(f"""
        v_and_b32 v17, 15, v60
        v_lshrrev_b32 v18, 2, v17
        v_lshl_add_u32 v18, v62, 3, v18
        v_mul_u32_u24 v18, 384, v18
        v_add_u32 v18, {LDS_B}, v18
        v_bfe_u32 v19, v60, 4, 1
        v_lshlrev_b32 v19, 5, v19
        v_add_u32 v18, v18, v19
        v_and_b32 v19, 3, v17
        v_lshlrev_b32 v19, 3, v19
        v_add_u32 v18, v18, v19
        v_lshrrev_b32 v19, 3, v17
        s_mul_i32 s40, s{S_WN}, 3
        """)
        for ni in range(3):
            a(f"s_add_u32 s41, s40, {ni}")
            a("v_xor_b32 v17, s41, v19")
            a(f"v_lshl_add_u32 v{V_BB+ni}, v17, 6, v18")


def consumer_loop(a, pfx, btype, SA, NSA, SB, NSB, s_nsteps, st):
    nb = 4 if btype == "NK" else 3
    for i in range(96):
        a(f"v_mov_b32 v{ACC+i}, 0")
    a("s_mov_b32 s44, 0")
    a("s_mov_b32 s45, 0")
    a("s_mov_b32 s46, 0")
    for j in range(4):
        a(f"v_mov_b32 v{V_AA+j}, v{V_AB+j}")
    for j in range(nb):
        a(f"v_mov_b32 v{V_BA+j}, v{V_BB+j}")
    a("s_barrier")
    stamp(a, st, True)
    trk = LgkmTracker(a)
    for t, ins in reads_for(btype, FR0, 0):
        trk.issue("s0" + t, ins)
    a.label(f"{pfx}_loop")
    entry_state = list(trk.out)
    substep(a, trk, FR0, reads_for(btype, FR1, 1), "s0", "s1")
    substep(a, trk, FR1, reads_for(btype, FR0, 2), "s1", "s2")
    substep(a, trk, FR0, reads_for(btype, FR1, 3), "s2", "s3")
    a(f"""
    s_add_u32 s44, s44, {SA}
    s_cmp_ge_u32 s44, {SA*NSA}
    s_cselect_b32 s44, 0, s44
    s_add_u32 s45, s45, {SB}
    s_cmp_ge_u32 s45, {SB*NSB}
    s_cselect_b32 s45, 0, s45
    """)
    trk.drain()
    for j in range(4):
        a(f"v_add_u32 v{V_AA+j}, s44, v{V_AB+j}")
    for j in range(nb):
        a(f"v_add_u32 v{V_BA+j}, s45, v{V_BB+j}")
    a("s_barrier")
    substep(a, trk, FR1, reads_for(btype, FR0, 0), "s3", "s0")
    assert trk.out == entry_state
    a(f"""
    s_add_u32 s46, s46, 1
    s_cmp_lt_u32 s46, s{s_nsteps}
    s_cbranch_scc1 {pfx}_loop
    s_waitcnt lgkmcnt(0)
    s_nop 15
    s_nop 3
    """)


def loader_loop(a, pfx, NS, L, slot_bytes, ring_base, issue_fn, s_nsteps, mid=None):
    a("s_mov_b32 s50, 0")
    a(f"s_mov_b32 s51, {ring_base}")
    for j in range(NS):
        issue_fn()
        a("s_add_u32 s50, s50, 1")
        a(f"s_add_u32 s51, s51, {slot_bytes}")
    a(f"s_mov_b32 s51, {ring_base}")
    if mid:
        mid()
    a(f"s_waitcnt vmcnt({(NS-1)*L})")
    a("s_barrier")
    a("s_mov_b32 s52, 0")
    a.label(f"{pfx}_loop")
    a(f"s_sub_i32 s53, s{s_nsteps}, s52")
    a("s_sub_i32 s53, s53, 2")
    for c in range(NS - 2, 0, -1):
        a(f"s_cmp_ge_i32 s53, {c}")
        a(f"s_cbranch_scc1 {pfx}_w{c}")
    a("s_waitcnt vmcnt(0)")
    a(f"s_branch {pfx}_bar")
    for c in range(1, NS - 1):
        a.label(f"{pfx}_w{c}")
        a(f"s_waitcnt vmcnt({c*L})")
        if c != NS - 2:
            a(f"s_branch {pfx}_bar")
    a.label(f"{pfx}_bar")
    a("s_barrier")
    a(f"s_cmp_ge_u32 s50, s{s_nsteps}")
    a(f"s_cbranch_scc1 {pfx}_skip")
    issue_fn()
    a("s_add_u32 s50, s50, 1")
    a(f"s_add_u32 s51, s51, {slot_bytes}")
    a(f"s_cmp_ge_u32 s51, {ring_base + NS*slot_bytes}")
    a(f"s_cselect_b32 s51, {ring_base}, s51")
    a.label(f"{pfx}_skip")
    a(f"""
    s_add_u32 s52, s52, 1
    s_cmp_lt_u32 s52, s{s_nsteps}
    s_cbranch_scc1 {pfx}_loop
    """)


def voff_ktype(a, stride, ve, vo):
    a(f"""
    v_and_b32 v60, 63, v0
    v_lshrrev_b32 v61, 3, v60
    v_mul_u32_u24 v61, {stride}, v61
    v_and_b32 v62, 7, v60
    v_lshrrev_b32 v63, 4, v60
    v_xor_b32 v62, v62, v63
    v_lshl_add_u32 v{ve}, v62, 4, v61
    v_xor_b32 v62, 4, v62
    v_lshl_add_u32 v{vo}, v62, 4, v61
    """)


def voff_ntype(a, stride, vb):
    for p in range(192):
        assert (p * 2731) >> 16 == p // 24
    a("v_and_b32 v60, 63, v0")
    for b in range(3):
        a(f"""
        v_add_u32 v61, {64*b}, v60
        v_mul_u32_u24 v62, 2731, v61
        v_lshrrev_b32 v62, 16, v62
        v_mul_u32_u24 v63, 24, v62
        v_sub_u32 v61, v61, v63
        v_and_b32 v63, 2, v62
        v_lshlrev_b32 v63, 1, v63
        v_xor_b32 v61, v61, v63
        v_mul_u32_u24 v62, {stride}, v62
        v_lshl_add_u32 v{vb+b}, v61, 4, v62
        """)


def issue_k(a, nq, stride, flags=""):
    for q in range(nq):
        a(f"s_add_u32 m0, s58, {q*1024}")
        a(f"s_add_u32 s54, s57, {q*8*stride}")
        a(f"buffer_load_dwordx4 v{2 if q & 1 else 1}, s[{SRD_A}:{SRD_A+3}], s54 offen {flags} lds")


def issue_n(a, stride, flags=""):
    for aa in range(4):
        for b in range(3):
            a(f"s_add_u32 m0, s58, {(3*aa+b)*1024}")
            a(f"s_add_u32 s54, s57, {aa*8*stride}")
            a(f"buffer_load_dwordx4 v{1+b}, s[{SRD_A}:{SRD_A+3}], s54 offen {flags} lds")


def gen_kernel(a):
    name = NAME + "_kernel"
    G1 = (32768, 2, 24576, 4)
    G2 = (16384, 4, 24576, 4)
    RS = 400
    a.lines.append(f".globl {name}")
    a.lines.append(".p2align 8")
    a.lines.append(f".type {name},@function")
    a.label(name)
    a(f"""
    s_cmp_ge_u32 s2, {NWG}
    s_cbranch_scc1 K_done
    """)
    stamp(a, 0)
    if CODEPF:
        a(f"""
        s_getpc_b64 s[40:41]
        """)
        a.label("K_pc")
        a(f"""
        v_subrev_u32 v2, 256, v0
        v_cmp_gt_u32 vcc, (K_end-{name})/128+1, v2
        s_and_saveexec_b64 s[42:43], vcc
        s_cbranch_execz K_nopf
        s_sub_u32 s40, s40, K_pc-{name}
        s_subb_u32 s41, s41, 0
        v_lshlrev_b32 v2, 7, v2
        v_mov_b32 v3, s41
        v_add_co_u32 v2, vcc, s40, v2
        s_nop 1
        v_addc_co_u32 v3, vcc, 0, v3, vcc
        global_load_dword v58, v[2:3], off
        """)
        a.label("K_nopf")
        a("s_mov_b64 exec, s[42:43]")
    a(f"""
    s_load_dwordx8 s[4:11], s[0:1], 0
    s_load_dwordx2 s[12:13], s[0:1], 32
    s_load_dwordx4 s[16:19], s[0:1], 48
    s_load_dwordx4 s[20:23], s[0:1], 64
    s_load_dwordx2 s[24:25], s[0:1], 80
    v_lshrrev_b32 v1, 6, v0
    s_and_b32 s33, s2, 7
    s_mul_i32 s33, s33, 30
    s_lshr_b32 s34, s2, 3
    v_readfirstlane_b32 s3, v1
    s_add_u32 s{S_L}, s33, s34
    s_lshr_b32 s{S_NT1}, s{S_L}, 3
    s_and_b32 s{S_MT1}, s{S_L}, 7
    s_mul_i32 s{S_SPLIT}, s{S_L}, 1366
    s_lshr_b32 s{S_SPLIT}, s{S_SPLIT}, 16
    s_mul_i32 s40, s{S_SPLIT}, 48
    s_sub_u32 s{S_TILE}, s{S_L}, s40
    s_mul_i32 s{S_MT2}, s{S_TILE}, 21846
    s_lshr_b32 s{S_MT2}, s{S_MT2}, 16
    s_mul_i32 s40, s{S_MT2}, 3
    s_sub_u32 s{S_NT2}, s{S_TILE}, s40
    s_mul_i32 s{S_K0}, s{S_SPLIT}, 27
    s_add_u32 s{S_K0}, s{S_K0}, 1
    s_mov_b32 s{S_N2}, 27
    s_cmp_eq_u32 s{S_SPLIT}, 0
    s_cselect_b32 s{S_K0}, 0, s{S_K0}
    s_cselect_b32 s{S_N2}, 28, s{S_N2}
    s_mov_b32 s{S_NS}, 9
    s_waitcnt lgkmcnt(0)
    """)
    for L in range(240):
        assert (L * 1366) >> 16 == L // 48
    for r in range(48):
        assert (r * 21846) >> 16 == r // 3
    srd(a, SRD_DBG, S_DBG, 256)
    srd_off(a, SRD_F, S_WS, WS_F, F_BYTES)
    a(f"""
    s_or_b32 s40, s2, s3
    s_cmp_lg_u32 s40, 0
    s_cbranch_scc1 K_nopub
    s_memrealtime s[40:41]
    s_waitcnt lgkmcnt(0)
    s_or_b32 s40, s40, 1
    v_mov_b32 v60, s40
    v_mov_b32 v61, s41
    v_mov_b32 v63, 0
    s_mov_b64 exec, 1
    buffer_store_dwordx2 v[60:61], v63, s[{SRD_DBG}:{SRD_DBG+3}], 0 offen sc1
    s_mov_b64 exec, -1
    """)
    a.label("K_nopub")
    a("s_cmp_ge_u32 s3, 8")
    a("s_cbranch_scc1 K_loader")
    a("s_cmp_ge_u32 s3, 3")
    a("s_cbranch_scc1 K_lnskip")
    ln_phase(a)
    if TOUCH:
        fl = "" if TOUCH == "plain" else TOUCH
        a("s_branch K_lnskip2")
        a.label("K_lnskip")
        srd(a, SRD_A, S_WSRE, PANEL)
        srd(a, SRD_B, S_WSIM, PANEL)
        srd(a, SRD_C, S_W2, W2_BYTES)
        a(f"""
        v_subrev_u32 v1, 192, v0
        s_mul_i32 s40, s{S_L}, 274
        v_add_u32 v2, s40, v1
        v_lshlrev_b32 v2, 7, v2
        s_mul_i32 s40, s{S_L}, 173
        v_add_u32 v3, s40, v1
        v_lshlrev_b32 v3, 7, v3
        v_mov_b32 v4, 0x7f000000
        v_cmp_gt_u32 vcc, 274, v1
        s_nop 1
        v_cndmask_b32 v2, v4, v2, vcc
        v_cmp_gt_u32 vcc, 173, v1
        s_nop 1
        v_cndmask_b32 v3, v4, v3, vcc
        buffer_load_dword v58, v2, s[{SRD_A}:{SRD_A+3}], 0 offen {fl}
        buffer_load_dword v58, v2, s[{SRD_B}:{SRD_B+3}], 0 offen {fl}
        buffer_load_dword v58, v3, s[{SRD_C}:{SRD_C+3}], 0 offen {fl}
        """)
        a.label("K_lnskip2")
    else:
        a.label("K_lnskip")
    a("s_barrier")
    a("s_cmp_lg_u32 s3, 0")
    a("s_cbranch_scc1 K_lnsig")
    get_nonce(a)
    a(f"s_lshl_b32 s41, s{S_MT1}, 8")
    a(f"s_lshl_b32 s40, s{S_NT1}, 3")
    a("s_add_u32 s41, s41, s40")
    a(f"s_add_u32 s41, s41, {C_LN*256}")
    signal(a, 41)
    a.label("K_lnsig")
    stamp(a, 1)
    a(f"s_lshr_b32 s{S_WM}, s3, 1")
    a(f"s_and_b32 s{S_WN}, s3, 1")
    a(f"s_cmp_ge_u32 s{S_NT1}, 6")
    a("s_cbranch_scc1 G1_consKN")
    consumer_addr_setup(a, "NK")
    consumer_loop(a, "G1cNK", "NK", *G1, S_NS, 2)
    a("s_branch G1_epi")
    a.label("G1_consKN")
    consumer_addr_setup(a, "KN")
    consumer_loop(a, "G1cKN", "KN", *G1, S_NS, 2)
    a.label("G1_epi")
    a("s_waitcnt vmcnt(0)")
    stamp(a, 3)
    a(f"""
    s_mov_b32 s42, 0
    s_cmp_ge_u32 s{S_NT1}, 3
    s_cselect_b32 s42, 0x80008000, s42
    s_cmp_ge_u32 s{S_NT1}, 6
    s_cselect_b32 s42, 0, s42
    s_mov_b32 s43, 0xff800000
    s_cselect_b32 s43, 0, s43
    v_and_b32 v60, 63, v0
    v_and_b32 v61, 31, v60
    v_lshrrev_b32 v62, 5, v60
    s_lshl_b32 s40, s{S_WM}, 6
    v_add_u32 v61, s40, v61
    v_mul_u32_u24 v61, {RS}, v61
    s_mul_i32 s40, s{S_WN}, 192
    v_lshl_add_u32 v61, v62, 3, v61
    v_add_u32 v61, s40, v61
    """)
    for mi in range(2):
        for ni in range(3):
            for g in range(4):
                c = ACC + 16 * (3 * mi + ni) + 4 * g
                t = 20 + 2 * ((ni * 4 + g) & 7)
                for r in range(4):
                    a(f"v_max_f32 v{c+r}, s43, v{c+r}")
                a(f"v_cvt_pk_bf16_f32 v{t}, v{c}, v{c+1}")
                a(f"v_cvt_pk_bf16_f32 v{t+1}, v{c+2}, v{c+3}")
                a(f"v_xor_b32 v{t}, s42, v{t}")
                a(f"v_xor_b32 v{t+1}, s42, v{t+1}")
                a(f"ds_write_b64 v61, v[{t}:{t+1}] offset:{mi*32*RS + ni*64 + g*16}")
    a("s_waitcnt lgkmcnt(0)")
    a("s_barrier")
    srd_off(a, SRD_A, S_WS, WS_AB, AB_BYTES)
    srd_off(a, SRD_B, S_WS, WS_H, 3 * PANEL)
    a(f"""
    s_lshl_b32 s49, s{S_MT1}, 8
    s_cmp_ge_u32 s{S_NT1}, 6
    s_cbranch_scc1 G1_epiH
    s_cmp_ge_u32 s{S_NT1}, 3
    s_cselect_b32 s41, 2048, 0
    s_cselect_b32 s40, 3, 0
    s_add_u32 s49, s49, s41
    s_sub_u32 s40, s{S_NT1}, s40
    s_mul_i32 s48, s40, 192
    s_mov_b32 s47, 1152
    s_lshl_b32 s41, s{S_NT1}, 8
    s_lshl_b32 s40, s{S_MT1}, 3
    s_add_u32 s41, s41, s40
    s_add_u32 s41, s41, {C_AB*256}
    s_branch G1_epiS
    """)
    a.label("G1_epiH")
    a(f"""
    s_mov_b32 s{SRD_A}, s{SRD_B}
    s_mov_b32 s{SRD_A+1}, s{SRD_B+1}
    s_mov_b32 s{SRD_A+2}, s{SRD_B+2}
    s_sub_u32 s40, s{S_NT1}, 6
    s_mul_i32 s48, s40, 192
    s_mov_b32 s47, 4096
    s_mul_i32 s41, s{S_MT1}, 3
    s_mov_b32 s46, s40
    s_cmp_ge_u32 s40, 6
    s_addc_u32 s41, s41, 0
    s_cmp_ge_u32 s40, 6
    s_cselect_b32 s45, 6, 0
    s_cmp_ge_u32 s40, 15
    s_addc_u32 s41, s41, 0
    s_cmp_ge_u32 s40, 15
    s_cselect_b32 s45, 15, s45
    s_sub_u32 s46, s46, s45
    s_lshl_b32 s41, s41, 8
    s_lshl_b32 s46, s46, 3
    s_add_u32 s41, s41, s46
    s_add_u32 s41, s41, {C_H*256}
    """)
    a.label("G1_epiS")
    for it in range(12):
        t = 20 + 4 * (it % 8)
        a(f"""
        v_add_u32 v60, {512*it}, v0
        v_mul_u32_u24 v61, 2731, v60
        v_lshrrev_b32 v61, 16, v61
        v_mul_u32_u24 v62, 24, v61
        v_sub_u32 v62, v60, v62
        v_mul_u32_u24 v63, {RS}, v61
        v_lshl_add_u32 v63, v62, 4, v63
        ds_read_b128 v[{t}:{t+3}], v63
        v_lshl_add_u32 v62, v62, 3, s48
        v_add_u32 v61, s49, v61
        v_mul_lo_u32 v61, v61, s47
        v_lshrrev_b32 v63, 11, v62
        v_lshlrev_b32 v63, 23, v63
        v_and_b32 v62, 2047, v62
        v_add_u32 v61, v61, v63
        v_lshl_add_u32 v{52+(it%8)}, v62, 1, v61
        """)
        if it % 4 == 3:
            for jt in range(it - 3, it + 1):
                t = 20 + 4 * (jt % 8)
                a(f"s_waitcnt lgkmcnt({it-jt})")
                a(f"buffer_store_dwordx4 v[{t}:{t+3}], v{52+(jt%8)}, s[{SRD_A}:{SRD_A+3}], 0 offen sc1")
    a("s_waitcnt vmcnt(0)")
    a("s_barrier")
    a("s_cmp_ge_u32 s3, 4")
    a("s_cbranch_scc1 K_done")
    a("s_cmp_lg_u32 s3, 0")
    a("s_cbranch_scc1 K_g1sig")
    signal(a, 41)
    a.label("K_g1sig")
    stamp(a, 4)
    consumer_addr_setup(a, "KN")
    consumer_loop(a, "G2c", "KN", *G2, S_N2, 5)
    stamp(a, 6)
    srd_off(a, SRD_A, S_WS, WS_P, P_BYTES)
    a(f"""
    s_mul_i32 s42, s{S_L}, {P_TILE}
    s_mul_i32 s41, s3, 24576
    s_add_u32 s42, s42, s41
    v_and_b32 v60, 63, v0
    v_lshlrev_b32 v60, 4, v60
    s_add_u32 s43, s3, 5
    s_sub_u32 s43, s43, s{S_SPLIT}
    """)
    for i in range(6):
        sk = a.new("pst")
        a(f"s_add_u32 s40, s43, {i}")
        a("s_cmp_eq_u32 s40, 5")
        a(f"s_cbranch_scc1 {sk}")
        a("s_cmp_eq_u32 s40, 10")
        a(f"s_cbranch_scc1 {sk}")
        a(f"s_add_u32 s41, s42, {i*4096}")
        for g in range(4):
            c = ACC + 16 * i + 4 * g
            a(f"buffer_store_dwordx4 v[{c}:{c+3}], v60, s[{SRD_A}:{SRD_A+3}], s41 offen offset:{g*1024} sc1")
        a.label(sk)
    a("s_waitcnt vmcnt(0)")
    a("s_barrier")
    a(f"""
    s_lshl_b32 s41, s{S_TILE}, 8
    s_add_u32 s41, s41, {C_P*256}
    s_lshl_b32 s47, s{S_SPLIT}, 3
    s_add_u32 s47, s47, s41
    s_cmp_lg_u32 s3, 0
    s_cbranch_scc1 K_psig
    """)
    signal(a, 47)
    a("s_branch K_psig2")
    a.label("K_psig")
    get_nonce(a)
    a.label("K_psig2")
    a("v_and_b32 v59, 63, v0")
    a("v_lshlrev_b32 v59, 4, v59")
    srd(a, SRD_B, S_X, XN_BYTES)
    srd(a, SRD_C, S_OUT, XN_BYTES)
    a(f"""
    s_lshl_b32 s49, s{S_MT2}, 7
    s_lshl_b32 s40, s{S_WM}, 6
    s_add_u32 s49, s49, s40
    s_mul_i32 s48, s{S_NT2}, 384
    s_mul_i32 s40, s{S_WN}, 192
    s_add_u32 s48, s48, s40
    v_and_b32 v2, 63, v0
    v_and_b32 v3, 31, v2
    v_lshrrev_b32 v4, 5, v2
    v_add_u32 v3, s49, v3
    v_mul_u32_u24 v3, 1152, v3
    v_add_u32 v3, s48, v3
    v_lshl_add_u32 v5, v4, 3, v3
    v_lshl_add_u32 v6, v4, 4, v3
    s_mul_i32 s42, s{S_TILE}, {P_TILE}
    s_mul_i32 s40, s3, 24576
    s_add_u32 s42, s42, s40
    """)
    poll(a, 41, 0x1f)
    stamp(a, 7)
    for i in range(6):
        mi, ni = divmod(i, 3)
        sk = a.new("fin")
        go = a.new("fing")
        a(f"s_add_u32 s40, s43, {i}")
        a("s_cmp_eq_u32 s40, 5")
        a(f"s_cbranch_scc1 {go}")
        a("s_cmp_lg_u32 s40, 10")
        a(f"s_cbranch_scc1 {sk}")
        a.label(go)
        boff = mi * 32 * 1152 + ni * 64
        a(f"s_mov_b32 s40, {boff}")
        for g in range(4):
            a(f"buffer_load_dwordx2 v[{8+2*g}:{9+2*g}], v5, s[{SRD_B}:{SRD_B+3}], s40 offen offset:{g*16}")
        c0 = ACC + 16 * i
        for half in range(2):
            for dd in range(2):
                d = 1 + 2 * half + dd
                a(f"s_add_u32 s44, s{S_SPLIT}, {d}")
                a("s_sub_u32 s45, s44, 5")
                a("s_cmp_ge_u32 s44, 5")
                a("s_cselect_b32 s44, s45, s44")
                a(f"s_mul_i32 s44, s44, {G2_TILES*P_TILE}")
                a("s_add_u32 s44, s44, s42")
                a(f"s_add_u32 s44, s44, {i*4096}")
                for g in range(4):
                    r = 16 + 16 * dd + 4 * g
                    a(f"buffer_load_dwordx4 v[{r}:{r+3}], v59, s[{SRD_A}:{SRD_A+3}], s44 offen offset:{g*1024} sc1")
            for dd in range(2):
                a(f"s_waitcnt vmcnt({4 if dd == 0 else 0})")
                for r in range(16):
                    a(f"v_add_f32 v{c0+r}, v{c0+r}, v{16+16*dd+r}")
        for g in range(4):
            c = c0 + 4 * g
            a(f"""
            v_lshlrev_b32 v16, 16, v{8+2*g}
            v_and_b32 v17, 0xffff0000, v{8+2*g}
            v_lshlrev_b32 v18, 16, v{9+2*g}
            v_and_b32 v19, 0xffff0000, v{9+2*g}
            v_add_f32 v{c}, v{c}, v16
            v_add_f32 v{c+1}, v{c+1}, v17
            v_add_f32 v{c+2}, v{c+2}, v18
            v_add_f32 v{c+3}, v{c+3}, v19
            v_cvt_pk_bf16_f32 v{48+2*g}, v{c}, v{c+1}
            v_cvt_pk_bf16_f32 v{49+2*g}, v{c+2}, v{c+3}
            """)
        a("s_nop 1")
        a("v_permlane32_swap_b32 v48, v50")
        a("v_permlane32_swap_b32 v49, v51")
        a("v_permlane32_swap_b32 v52, v54")
        a("v_permlane32_swap_b32 v53, v55")
        a(f"s_mov_b32 s40, {boff}")
        a(f"buffer_store_dwordx4 v[48:51], v6, s[{SRD_C}:{SRD_C+3}], s40 offen")
        a(f"buffer_store_dwordx4 v[52:55], v6, s[{SRD_C}:{SRD_C+3}], s40 offen offset:32")
        a("s_nop 1")
        a.label(sk)
    if STAMP:
        a("s_waitcnt vmcnt(0)")
    flush_stamps(a, 9)
    a("s_endpgm")

    a.label("K_loader")
    a("s_cmp_ge_u32 s3, 10")
    a("s_cbranch_scc1 K_loadB")
    srd_off(a, SRD_A, S_WS, WS_XN, XN_BYTES)
    voff_ktype(a, 1152, 1, 2)
    a(f"""
    s_sub_u32 s59, s3, 8
    s_lshl_b32 s41, s{S_MT1}, 8
    s_lshl_b32 s56, s59, 7
    s_add_u32 s41, s41, s56
    s_mul_i32 s55, s41, 1152
    s_lshl_b32 s56, s59, 14
    s_barrier
    s_lshl_b32 s41, s{S_MT1}, 8
    s_add_u32 s41, s41, {C_LN*256}
    """)
    get_nonce(a)
    poll(a, 41, 0x3fffffff)

    def issueA1():
        a("s_lshl_b32 s57, s50, 7")
        a("s_add_u32 s57, s57, s55")
        a("s_add_u32 s58, s51, s56")
        issue_k(a, 16, 1152, "sc1")
    loader_loop(a, "G1lA", G1[1], 16, G1[0], 0, issueA1, S_NS)
    a("s_barrier")
    a("s_barrier")
    voff_ktype(a, 4096, 1, 2)
    a(f"""
    s_add_u32 s60, s{S_WS}, {WS_H}
    s_addc_u32 s61, s{S_WS+1}, 0
    s_mov_b32 s{SRD_A+2}, {PANEL}
    s_lshl_b32 s41, s{S_MT2}, 7
    s_lshl_b32 s56, s59, 6
    s_add_u32 s41, s41, s56
    s_lshl_b32 s55, s41, 12
    s_lshl_b32 s56, s59, 13
    s_cmp_lt_u32 s{S_SPLIT}, 2
    s_cbranch_scc1 G2lA_nopoll
    s_lshr_b32 s41, s{S_MT2}, 1
    s_mul_i32 s41, s41, 3
    s_add_u32 s41, s41, s{S_SPLIT}
    s_sub_u32 s41, s41, 2
    s_lshl_b32 s41, s41, 8
    s_add_u32 s41, s41, {C_H*256}
    s_cmp_eq_u32 s{S_SPLIT}, 2
    s_cselect_b32 s42, 0x3f, 0x1ff
    """)
    poll(a, 41, "s42")
    a.label("G2lA_nopoll")

    def issueA2():
        a(f"""
        s_add_u32 s62, s50, s{S_K0}
        s_lshr_b32 s63, s62, 5
        s_sub_u32 s64, s63, 2
        s_lshl_b32 s64, s64, 23
        s_add_u32 s{SRD_A}, s60, s64
        s_addc_u32 s{SRD_A+1}, s61, 0
        s_cmp_eq_u32 s63, 0
        s_cselect_b32 s{SRD_A}, s{S_WSRE}, s{SRD_A}
        s_cselect_b32 s{SRD_A+1}, s{S_WSRE+1}, s{SRD_A+1}
        s_cmp_eq_u32 s63, 1
        s_cselect_b32 s{SRD_A}, s{S_WSIM}, s{SRD_A}
        s_cselect_b32 s{SRD_A+1}, s{S_WSIM+1}, s{SRD_A+1}
        s_and_b32 s{SRD_A+1}, s{SRD_A+1}, 0xffff
        s_and_b32 s57, s62, 31
        s_lshl_b32 s57, s57, 7
        s_add_u32 s57, s57, s55
        s_add_u32 s58, s51, s56
        """)
        issue_k(a, 8, 4096, "sc1")
    loader_loop(a, "G2lA", G2[1], 8, G2[0], 0, issueA2, S_N2)
    a("s_endpgm")

    a.label("K_loadB")
    a("s_sub_u32 s59, s3, 10")
    a(f"s_cmp_ge_u32 s{S_NT1}, 6")
    a("s_cbranch_scc1 G1_loadBKN")
    a(f"""
    s_cmp_ge_u32 s{S_NT1}, 3
    s_cselect_b32 s60, s{S_WDIM}, s{S_WDRE}
    s_cselect_b32 s61, s{S_WDIM+1}, s{S_WDRE+1}
    s_cselect_b32 s41, 3, 0
    s_sub_u32 s41, s{S_NT1}, s41
    s_mul_i32 s41, s41, 192
    s_mul_i32 s56, s59, 96
    s_add_u32 s41, s41, s56
    s_mul_i32 s55, s41, 1152
    s_mul_i32 s56, s59, 12288
    """)
    srd(a, SRD_A, 60, WD_BYTES)
    voff_ktype(a, 1152, 1, 2)

    def issueBNK():
        a("s_lshl_b32 s57, s50, 7")
        a("s_add_u32 s57, s57, s55")
        a("s_add_u32 s58, s51, s56")
        issue_k(a, 12, 1152)
    loader_loop(a, "G1lBNK", G1[3], 12, G1[2], LDS_B, issueBNK, S_NS, mid=lambda: a("s_barrier"))
    a("s_branch G2_loadB")
    a.label("G1_loadBKN")
    srd(a, SRD_A, S_W1, W1_BYTES)
    voff_ntype(a, 9216, 1)
    a(f"""
    s_sub_u32 s41, s{S_NT1}, 6
    s_mul_i32 s55, s41, 384
    s_mul_i32 s56, s59, {32*9216}
    s_add_u32 s55, s55, s56
    s_mul_i32 s56, s59, 12288
    """)

    def issueBKN():
        a(f"s_mul_i32 s57, s50, {64*9216}")
        a("s_add_u32 s57, s57, s55")
        a("s_add_u32 s58, s51, s56")
        issue_n(a, 9216)
    loader_loop(a, "G1lBKN", G1[3], 12, G1[2], LDS_B, issueBKN, S_NS, mid=lambda: a("s_barrier"))
    a.label("G2_loadB")
    a("s_barrier")
    a("s_barrier")
    voff_ntype(a, 1152, 1)
    get_nonce(a)
    a(f"""
    s_add_u32 s60, s{S_WS}, {WS_AB}
    s_addc_u32 s61, s{S_WS+1}, 0
    s_mul_i32 s55, s{S_NT2}, 384
    s_mul_i32 s56, s59, {32*1152}
    s_add_u32 s55, s55, s56
    s_mul_i32 s56, s59, 12288
    s_cmp_ge_u32 s{S_SPLIT}, 2
    s_cbranch_scc1 G2lB_p2
    s_lshl_b32 s41, s{S_NT2}, 8
    s_add_u32 s41, s41, {C_AB*256}
    """)
    poll(a, 41, 0xff)
    a.label("G2lB_p2")
    a(f"""
    s_cmp_eq_u32 s{S_SPLIT}, 0
    s_cbranch_scc1 G2lB_nopoll
    s_cmp_ge_u32 s{S_SPLIT}, 3
    s_cbranch_scc1 G2lB_nopoll
    s_lshl_b32 s41, s{S_NT2}, 8
    s_add_u32 s41, s41, {(C_AB+3)*256}
    """)
    poll(a, 41, 0xff)
    a.label("G2lB_nopoll")

    def issueB2():
        a(f"""
        s_add_u32 s62, s50, s{S_K0}
        s_sub_u32 s63, s62, 64
        s_cmp_lt_u32 s62, 64
        s_cselect_b32 s63, s62, s63
        s_cselect_b32 s{SRD_A}, s60, s{S_W2}
        s_cselect_b32 s{SRD_A+1}, s61, s{S_W2+1}
        s_mov_b32 s{SRD_A+2}, {W2_BYTES}
        s_cselect_b32 s{SRD_A+2}, {AB_BYTES}, s{SRD_A+2}
        s_and_b32 s{SRD_A+1}, s{SRD_A+1}, 0xffff
        s_mul_i32 s57, s63, {64*1152}
        s_add_u32 s57, s57, s55
        s_add_u32 s58, s51, s56
        """)
        issue_n(a, 1152, "sc1")
    loader_loop(a, "G2lB", G2[3], 12, G2[2], LDS_B, issueB2, S_N2)
    a.label("K_done")
    a("s_endpgm")
    a.label("K_end")
    return name


def main():
    a = Asm()
    name = gen_kernel(a)
    head = f"; generated by gen2.py\n; @launch grid=({NWG},1,1) block=(768,1,1) lds=163840\n"
    head += '.amdgcn_target "amdgcn-amd-amdhsa--gfx950"\n.text\n'
    tail = f""".section .rodata,"a"
.p2align 6
.amdhsa_kernel {name}
  .amdhsa_next_free_vgpr 160
  .amdhsa_next_free_sgpr 102
  .amdhsa_accum_offset 160
  .amdhsa_group_segment_fixed_size 0
  .amdhsa_kernarg_size 88
  .amdhsa_user_sgpr_count 2
  .amdhsa_user_sgpr_kernarg_segment_ptr 1
  .amdhsa_system_sgpr_workgroup_id_x 1
  .amdhsa_float_denorm_mode_32 3
  .amdhsa_float_denorm_mode_16_64 3
.end_amdhsa_kernel
"""
    open(OUT, "w").write(head + a.text() + tail)


if __name__ == "__main__":
    main()
```

```python
import os
import gen2 as g
from gen2 import (Asm, srd, srd_off, stamp, flush_stamps, get_nonce, signal, poll, ln_phase, frag, reads_for,
                  LgkmTracker, substep, consumer_addr_setup, voff_ktype, voff_ntype,
                  S_X, S_WSRE, S_WSIM, S_WDRE, S_WDIM, S_W1, S_W2, S_OUT, S_DBG, S_WS,
                  S_SPLIT, S_TILE, S_MT2, S_NT2, SRD_DBG, S_L, S_NT1, S_MT1, S_WM, S_WN, SRD_A, SRD_B, SRD_C, SRD_F,
                  WS_XN, WS_AB, WS_H, WS_P, WS_F, F_BYTES, XN_BYTES, AB_BYTES, PANEL, W1_BYTES, W2_BYTES, WD_BYTES,
                  V_AB, V_AA, V_BB, V_BA, FR0, FR1, ACC, NAME, STAMP)

OUT = os.environ.get("OUT", "cdna_kernels/%s.s" % NAME)
TOUCH = int(os.environ.get("TOUCH3", "1"))
NWG = 240
NS = 4
SA, SB = 16384, 24576
LDS_B = NS * SA
g.LDS_B = LDS_B
LDS_TOTAL = LDS_B + NS * SB
WTOUCH = int(os.environ.get("WTOUCH", "1"))
TSTART = int(os.environ.get("TSTART", "0"))
LDF = os.environ.get("LDF", "sc1")
TSPAN = int(os.environ.get("TSPAN", "9"))
PBF16 = int(os.environ.get("PBF16", "1"))
PEL = 2 if PBF16 else 4
P_TILE = 128 * 192 * PEL
PW = P_TILE // 4
PB = PW // 6
P_BYTES = NWG * P_TILE
C_LN, C_AB, C_H, C_P = 0, 8, 16, 32
S_NF, S_N2, S_NT, S_M, S_N1 = 66, 67, 36, 64, 65


def cons_loop(a, pfx, btype, nsteps, t0):
    nb = 4 if btype == "NK" else 3
    sl = t0 % NS
    a(f"s_mov_b32 s44, {sl*SA}")
    a(f"s_mov_b32 s45, {sl*SB}")
    a("s_mov_b32 s46, 0")
    for j in range(4):
        a(f"v_add_u32 v{V_AA+j}, {sl*SA}, v{V_AB+j}")
    for j in range(nb):
        a(f"v_add_u32 v{V_BA+j}, {sl*SB}, v{V_BB+j}")
    trk = LgkmTracker(a)
    for t, ins in reads_for(btype, FR0, 0):
        trk.issue("s0" + t, ins)
    a.label(f"{pfx}_loop")
    entry_state = list(trk.out)
    substep(a, trk, FR0, reads_for(btype, FR1, 1), "s0", "s1")
    substep(a, trk, FR1, reads_for(btype, FR0, 2), "s1", "s2")
    substep(a, trk, FR0, reads_for(btype, FR1, 3), "s2", "s3")
    a(f"""
    s_add_u32 s44, s44, {SA}
    s_add_u32 s45, s45, {SB}
    s_cmp_ge_u32 s44, {SA*NS}
    s_cselect_b32 s44, 0, s44
    s_cselect_b32 s45, 0, s45
    """)
    trk.drain()
    for j in range(4):
        a(f"v_add_u32 v{V_AA+j}, s44, v{V_AB+j}")
    for j in range(nb):
        a(f"v_add_u32 v{V_BA+j}, s45, v{V_BB+j}")
    a("s_barrier")
    substep(a, trk, FR1, reads_for(btype, FR0, 0), "s3", "s0")
    assert trk.out == entry_state
    a(f"""
    s_add_u32 s46, s46, 1
    s_cmp_lt_u32 s46, {nsteps}
    s_cbranch_scc1 {pfx}_loop
    s_waitcnt lgkmcnt(0)
    s_nop 15
    s_nop 3
    """)


def zero_acc(a):
    for i in range(96):
        a(f"v_mov_b32 v{ACC+i}, 0")


def loader_loop(a, pfx, L, slot_bytes, ring_base, issue_fn, first_extra_barrier):
    a("s_mov_b32 s50, 0")
    a(f"s_mov_b32 s51, {ring_base}")
    a(f"s_mov_b32 s52, {-NS}")
    a.label(f"{pfx}_loop")
    a("s_cmp_lt_i32 s52, -1")
    a(f"s_cbranch_scc1 {pfx}_iss")
    if first_extra_barrier:
        a("s_cmp_lg_i32 s52, -1")
        a(f"s_cbranch_scc1 {pfx}_nx")
        a("s_barrier")
        a.label(f"{pfx}_nx")
    a(f"s_sub_i32 s53, s{S_NT}, s52")
    for c in range(NS - 2, 0, -1):
        a(f"s_cmp_ge_i32 s53, {c+2}")
        a(f"s_cbranch_scc1 {pfx}_w{c}")
    a("s_waitcnt vmcnt(0)")
    a(f"s_branch {pfx}_bar")
    for c in range(1, NS - 1):
        a.label(f"{pfx}_w{c}")
        a(f"s_waitcnt vmcnt({c*L})")
        if c != NS - 2:
            a(f"s_branch {pfx}_bar")
    a.label(f"{pfx}_bar")
    a("s_barrier")
    a.label(f"{pfx}_iss")
    a(f"s_cmp_ge_u32 s50, s{S_NT}")
    a(f"s_cbranch_scc1 {pfx}_skip")
    issue_fn()
    a("s_add_u32 s50, s50, 1")
    a(f"s_add_u32 s51, s51, {slot_bytes}")
    a(f"s_cmp_ge_u32 s51, {ring_base + NS*slot_bytes}")
    a(f"s_cselect_b32 s51, {ring_base}, s51")
    a.label(f"{pfx}_skip")
    a(f"""
    s_add_i32 s52, s52, 1
    s_cmp_lt_i32 s52, s{S_NT}
    s_cbranch_scc1 {pfx}_loop
    s_endpgm
    """)


def issue_k(a, nq, stride, srdr, ve, flags=""):
    for q in range(nq):
        a(f"s_add_u32 m0, s58, {q*1024}")
        a(f"s_add_u32 s54, s57, {q*8*stride}")
        a(f"buffer_load_dwordx4 v{ve+1 if q & 1 else ve}, s[{srdr}:{srdr+3}], s54 offen {flags} lds")


def issue_n(a, stride, srdr, vb, flags=""):
    for aa in range(4):
        for b in range(3):
            a(f"s_add_u32 m0, s58, {(3*aa+b)*1024}")
            a(f"s_add_u32 s54, s57, {aa*8*stride}")
            a(f"buffer_load_dwordx4 v{vb+b}, s[{srdr}:{srdr+3}], s54 offen {flags} lds")


def g2_kk(a):
    a(f"""
    s_sub_u32 s62, s50, 18
    s_mul_i32 s63, s{S_SPLIT}, 13
    s_cmp_lt_u32 s62, s{S_NF}
    s_cbranch_scc1 1f
    s_sub_u32 s62, s62, s{S_NF}
    s_mul_i32 s63, s{S_SPLIT}, 14
    s_add_u32 s63, s63, 64
    s_cmp_eq_u32 s{S_SPLIT}, 4
    s_addc_u32 s63, s63, 0
    """)
    a.lines.append("1:")
    a("s_add_u32 s62, s62, s63")


def ws_touch_setup(a):
    a(f"""
    v_and_b32 v162, 63, v0
    s_mul_i32 s40, s{S_NT2}, 43
    v_add_u32 v163, s40, v162
    s_lshl_b32 s40, s{S_MT2}, 7
    v_add_u32 v161, s40, v163
    v_lshlrev_b32 v161, 12, v161
    v_mov_b32 v164, 0x7f000000
    v_cmp_gt_u32 vcc, 43, v162
    s_nop 1
    v_cndmask_b32 v161, v164, v161, vcc
    v_cmp_gt_u32 vcc, 128, v163
    s_nop 1
    v_cndmask_b32 v161, v164, v161, vcc
    s_mov_b32 s{SRD_C+2}, {PANEL}
    s_mov_b32 s{SRD_C+3}, 0x00020000
    """)


def ws_touch(a, j, wave):
    lb = a.new("tch")
    a(f"""
    s_cmp_lg_u32 s3, {wave}
    s_cbranch_scc1 {lb}
    s_cmp_le_u32 s{S_NF}, {j}
    s_cbranch_scc1 {lb}
    s_mul_i32 s40, s{S_SPLIT}, 13
    s_add_u32 s40, s40, {j}
    s_cmp_lt_u32 s40, 32
    s_cselect_b32 s{SRD_C}, s{S_WSRE}, s{S_WSIM}
    s_cselect_b32 s{SRD_C+1}, s{S_WSRE+1}, s{S_WSIM+1}
    s_and_b32 s{SRD_C+1}, s{SRD_C+1}, 0xffff
    s_and_b32 s40, s40, 31
    s_lshl_b32 s40, s40, 7
    buffer_load_dword v160, v161, s[{SRD_C}:{SRD_C+3}], s40 offen
    """)
    a.label(lb)


def w2_touch(a):
    for p in range(64):
        assert (p * 5462) >> 16 == p // 12 and ((p % 12) * 21846) >> 16 == (p % 12) // 3
    lb = a.new("w2t")
    srd(a, SRD_C, S_W2, W2_BYTES)
    a(f"""
    s_cmp_ge_u32 s3, 7
    s_cbranch_scc1 {lb}
    v_and_b32 v162, 63, v0
    v_mul_u32_u24 v163, 5462, v162
    v_lshrrev_b32 v163, 16, v163
    v_mul_u32_u24 v164, 12, v163
    v_sub_u32 v164, v162, v164
    v_mul_u32_u24 v165, 21846, v164
    v_lshrrev_b32 v165, 16, v165
    v_mul_u32_u24 v166, 3, v165
    v_sub_u32 v166, v164, v166
    s_sub_u32 s40, s3, 4
    s_mul_i32 s40, s40, 5
    v_add_u32 v163, s40, v163
    s_sub_u32 s44, s{S_N2}, s{S_NF}
    v_cmp_gt_u32 vcc, s44, v163
    v_cmp_gt_u32 s[44:45], 60, v162
    s_mul_i32 s40, s{S_SPLIT}, 14
    s_cmp_eq_u32 s{S_SPLIT}, 4
    s_addc_u32 s40, s40, 0
    s_and_b64 vcc, vcc, s[44:45]
    v_add_u32 v163, s40, v163
    v_lshlrev_b32 v163, 6, v163
    s_lshl_b32 s40, s{S_MT2}, 2
    v_add3_u32 v163, v163, v165, s40
    v_mul_u32_u24 v163, 1152, v163
    v_lshl_add_u32 v163, v166, 7, v163
    v_mov_b32 v164, 0x7f000000
    v_cndmask_b32 v163, v164, v163, vcc
    s_mul_i32 s40, s{S_NT2}, 384
    buffer_load_dword v160, v163, s[{SRD_C}:{SRD_C+3}], s40 offen
    """)
    a.label(lb)


def gen_kernel(a):
    name = NAME + "_kernel"
    a.lines.append(f".globl {name}")
    a.lines.append(".p2align 8")
    a.lines.append(f".type {name},@function")
    a.label(name)
    a(f"""
    s_cmp_ge_u32 s2, {NWG}
    s_cbranch_scc1 K_done
    """)
    stamp(a, 0)
    a(f"""
    s_load_dwordx8 s[4:11], s[0:1], 0
    s_load_dwordx2 s[12:13], s[0:1], 32
    s_load_dwordx4 s[16:19], s[0:1], 48
    s_load_dwordx4 s[20:23], s[0:1], 64
    s_load_dwordx2 s[24:25], s[0:1], 80
    v_lshrrev_b32 v1, 6, v0
    s_and_b32 s33, s2, 7
    s_mul_i32 s33, s33, 30
    s_lshr_b32 s34, s2, 3
    v_readfirstlane_b32 s3, v1
    s_add_u32 s{S_L}, s33, s34
    s_lshr_b32 s{S_NT1}, s{S_L}, 3
    s_and_b32 s{S_MT1}, s{S_L}, 7
    s_cmp_ge_u32 s{S_L}, 120
    s_cselect_b32 s40, 120, 0
    s_cselect_b32 s41, 8, 0
    s_sub_u32 s40, s{S_L}, s40
    s_lshr_b32 s{S_N1}, s40, 3
    s_and_b32 s{S_M}, s40, 7
    s_add_u32 s{S_M}, s{S_M}, s41
    s_mul_i32 s{S_SPLIT}, s{S_L}, 1366
    s_lshr_b32 s{S_SPLIT}, s{S_SPLIT}, 16
    s_mul_i32 s40, s{S_SPLIT}, 48
    s_sub_u32 s{S_TILE}, s{S_L}, s40
    s_mul_i32 s{S_MT2}, s{S_TILE}, 21846
    s_lshr_b32 s{S_MT2}, s{S_MT2}, 16
    s_mul_i32 s40, s{S_MT2}, 3
    s_sub_u32 s{S_NT2}, s{S_TILE}, s40
    s_cmp_eq_u32 s{S_SPLIT}, 4
    s_cselect_b32 s{S_NF}, 12, 13
    s_cmp_eq_u32 s{S_SPLIT}, 3
    s_cselect_b32 s{S_N2}, 28, 27
    s_add_u32 s{S_NT}, s{S_N2}, 18
    s_waitcnt lgkmcnt(0)
    """)
    srd(a, SRD_DBG, S_DBG, 256)
    srd_off(a, SRD_F, S_WS, WS_F, F_BYTES)
    a(f"""
    s_or_b32 s40, s2, s3
    s_cmp_lg_u32 s40, 0
    s_cbranch_scc1 K_nopub
    s_memrealtime s[40:41]
    s_waitcnt lgkmcnt(0)
    s_or_b32 s40, s40, 1
    v_mov_b32 v60, s40
    v_mov_b32 v61, s41
    v_mov_b32 v63, 0
    s_mov_b64 exec, 1
    buffer_store_dwordx2 v[60:61], v63, s[{SRD_DBG}:{SRD_DBG+3}], 0 offen sc1
    s_mov_b64 exec, -1
    """)
    a.label("K_nopub")
    a("s_cmp_ge_u32 s3, 8")
    a("s_cbranch_scc1 K_loader")
    a("s_and_b32 s40, s3, 3")
    a(f"s_lshr_b32 s{S_WM}, s40, 1")
    a(f"s_and_b32 s{S_WN}, s40, 1")
    a("s_cmp_ge_u32 s3, 4")
    a("s_cbranch_scc1 K_g1")
    a("s_cmp_ge_u32 s3, 3")
    a("s_cbranch_scc1 K_lnskip")
    ln_phase(a)
    a.label("K_lnskip")
    a("s_barrier")
    a("s_cmp_lg_u32 s3, 0")
    a("s_cbranch_scc1 K_lnsig")
    get_nonce(a)
    a(f"s_lshl_b32 s41, s{S_MT1}, 8")
    a(f"s_lshl_b32 s40, s{S_NT1}, 3")
    a("s_add_u32 s41, s41, s40")
    a(f"s_add_u32 s41, s41, {C_LN*256}")
    signal(a, 41)
    a.label("K_lnsig")
    stamp(a, 1)
    zero_acc(a)
    a(f"s_cmp_ge_u32 s{S_N1}, 6")
    a("s_cbranch_scc1 T1_KN")
    consumer_addr_setup(a, "NK")
    a("s_barrier")
    stamp(a, 2)
    cons_loop(a, "T1nk", "NK", 9, 0)
    a("s_branch T1_done")
    a.label("T1_KN")
    consumer_addr_setup(a, "KN")
    a("s_barrier")
    stamp(a, 2)
    cons_loop(a, "T1kn", "KN", 9, 0)
    a.label("T1_done")
    stamp(a, 3)
    a(f"s_mov_b32 s46, s{S_N1}")
    a("s_branch K_epi")
    a.label("K_g1")
    if WTOUCH:
        srd(a, SRD_C, S_W1, W1_BYTES)
        a(f"""
        v_subrev_u32 v56, 256, v0
        v_mul_u32_u24 v57, 21846, v56
        v_lshrrev_b32 v57, 16, v57
        v_mul_u32_u24 v59, 3, v57
        v_sub_u32 v59, v56, v59
        s_mul_i32 s40, s{S_M}, 36
        v_add_u32 v57, s40, v57
        v_mul_u32_u24 v57, 9216, v57
        v_lshl_add_u32 v57, v59, 7, v57
        v_mov_b32 v59, 0x7f000000
        v_cmp_gt_u32 vcc, 108, v56
        s_add_u32 s40, s{S_N1}, 9
        s_mul_i32 s40, s40, 384
        v_cndmask_b32 v57, v59, v57, vcc
        buffer_load_dword v160, v57, s[{SRD_C}:{SRD_C+3}], s40 offen
        s_cmp_lt_u32 s{S_N1}, 6
        s_cbranch_scc1 K_wt2
        s_sub_u32 s40, s{S_N1}, 6
        s_mul_i32 s40, s40, 384
        buffer_load_dword v160, v57, s[{SRD_C}:{SRD_C+3}], s40 offen
        s_branch K_wt3
        """)
        a.label("K_wt2")
        a(f"""
        s_cmp_ge_u32 s{S_N1}, 3
        s_cselect_b32 s60, s{S_WDIM}, s{S_WDRE}
        s_cselect_b32 s61, s{S_WDIM+1}, s{S_WDRE+1}
        s_cselect_b32 s40, 3, 0
        s_sub_u32 s40, s{S_N1}, s40
        s_mul_i32 s40, s40, 192
        s_mul_i32 s41, s{S_M}, 12
        s_add_u32 s40, s40, s41
        s_mul_i32 s40, s40, 1152
        v_lshlrev_b32 v57, 7, v56
        v_cndmask_b32 v57, v59, v57, vcc
        """)
        srd(a, SRD_C, 60, WD_BYTES)
        a(f"buffer_load_dword v160, v57, s[{SRD_C}:{SRD_C+3}], s40 offen")
        a.label("K_wt3")
    a("s_barrier")
    zero_acc(a)
    consumer_addr_setup(a, "KN")
    a("s_barrier")
    if TOUCH:
        ws_touch_setup(a)
        sched = {1: [0], 2: [1], 4: [2], 5: [3], 7: [4], 8: [5]}
        for t in range(9):
            for j in sched.get(t, []):
                ws_touch(a, j, 4 + (j & 3))
            a("s_barrier")
    else:
        for _ in range(9):
            a("s_barrier")
    cons_loop(a, "T2", "KN", 9, 9)
    a("s_waitcnt vmcnt(0)")
    a(f"s_add_u32 s46, s{S_N1}, 15")
    a.label("K_epi")
    srd_off(a, SRD_A, S_WS, WS_AB, AB_BYTES)
    srd_off(a, SRD_B, S_WS, WS_H, 3 * PANEL)
    a(f"""
    s_lshl_b32 s49, s{S_M}, 7
    s_cmp_ge_u32 s46, 6
    s_cbranch_scc1 E_h
    s_mov_b32 s43, 0x80008000
    s_cmp_ge_u32 s46, 3
    s_cselect_b32 s42, 0x80008000, 0
    s_cselect_b32 s41, 2048, 0
    s_cselect_b32 s40, 3, 0
    s_add_u32 s49, s49, s41
    s_sub_u32 s40, s46, s40
    s_mul_i32 s48, s40, 192
    s_mov_b32 s47, 1152
    s_lshl_b32 s41, s46, 8
    s_lshl_b32 s40, s{S_M}, 3
    s_add_u32 s41, s41, s40
    s_add_u32 s41, s41, {C_AB*256}
    s_branch E_go
    """)
    a.label("E_h")
    a(f"""
    s_mov_b32 s42, 0
    s_mov_b32 s43, 0
    s_mov_b32 s{SRD_A}, s{SRD_B}
    s_mov_b32 s{SRD_A+1}, s{SRD_B+1}
    s_mov_b32 s{SRD_A+2}, s{SRD_B+2}
    s_sub_u32 s40, s46, 6
    s_mul_i32 s48, s40, 192
    s_mov_b32 s47, 4096
    s_lshl_b32 s41, s{S_M}, 8
    s_lshl_b32 s40, s40, 3
    s_add_u32 s41, s41, s40
    s_add_u32 s41, s41, {C_H*256}
    """)
    a.label("E_go")
    a(f"""
    s_lshl_b32 s40, s{S_WM}, 6
    s_add_u32 s49, s49, s40
    s_mul_i32 s40, s{S_WN}, 96
    s_add_u32 s48, s48, s40
    v_and_b32 v60, 15, v0
    v_add_u32 v60, s49, v60
    v_mul_lo_u32 v60, v60, s47
    v_bfe_u32 v61, v0, 4, 1
    v_bfe_u32 v62, v0, 5, 1
    v_lshlrev_b32 v61, 4, v61
    v_lshl_add_u32 v61, v62, 3, v61
    v_add_u32 v61, s48, v61
    """)
    for ni in range(3):
        a(f"""
        v_add_u32 v62, {32*ni}, v61
        v_lshrrev_b32 v63, 11, v62
        v_lshlrev_b32 v63, 23, v63
        v_and_b32 v62, 2047, v62
        v_add_u32 v63, v60, v63
        v_lshl_add_u32 v{2+ni}, v62, 1, v63
        """)
    for mi in range(2):
        a(f"s_mul_i32 s44, s47, {32*mi}")
        a(f"s_mul_i32 s45, s47, {32*mi+16}")
        for ni in range(3):
            c = ACC + 16 * (3 * mi + ni)
            t = 20 + 8 * (ni & 1)
            for r in range(8):
                a(f"v_cvt_pk_bf16_f32 v{t+r}, v{c+2*r}, v{c+2*r+1}")
            for r in range(8):
                a(f"v_pk_max_i16 v{t+r}, v{t+r}, s43")
            for r in range(8):
                a(f"v_xor_b32 v{t+r}, s42, v{t+r}")
            a("s_nop 1")
            a(f"v_permlane32_swap_b32 v{t}, v{t+2}")
            a(f"v_permlane32_swap_b32 v{t+1}, v{t+3}")
            a(f"v_permlane32_swap_b32 v{t+4}, v{t+6}")
            a(f"v_permlane32_swap_b32 v{t+5}, v{t+7}")
            a("s_nop 1")
            for r in range(4):
                a(f"v_permlane16_swap_b32 v{t+r}, v{t+4+r}")
            a(f"buffer_store_dwordx4 v[{t}:{t+3}], v{2+ni}, s[{SRD_A}:{SRD_A+3}], s44 offen sc1")
            a(f"buffer_store_dwordx4 v[{t+4}:{t+7}], v{2+ni}, s[{SRD_A}:{SRD_A+3}], s45 offen sc1")
        a("s_barrier")
    a("s_barrier")
    a("s_barrier")
    a("s_waitcnt vmcnt(0)")
    a("s_barrier")
    a("s_and_b32 s40, s3, 3")
    a("s_cmp_lg_u32 s40, 0")
    a("s_cbranch_scc1 E_sig")
    a("s_cmp_eq_u32 s3, 0")
    a("s_cbranch_scc1 E_sig0")
    get_nonce(a)
    a.label("E_sig0")
    signal(a, 41)
    a.label("E_sig")
    a("s_cmp_lt_u32 s3, 4")
    a("s_cbranch_scc1 E_g0")
    if TOUCH:
        w2_touch(a)
    a("s_endpgm")
    a.label("E_g0")
    if TOUCH:
        ws_touch_setup(a)
        ws_touch(a, 6, 1)
        ws_touch(a, 7, 2)
    zero_acc(a)
    consumer_addr_setup(a, "KN")
    a("s_barrier")
    if TOUCH:
        ws_touch(a, 8, 3)
        ws_touch(a, 9, 0)
    a("s_barrier")
    if TOUCH:
        ws_touch(a, 10, 1)
        ws_touch(a, 11, 2)
    a("s_barrier")
    if TOUCH:
        ws_touch(a, 12, 3)
    stamp(a, 4)
    a("s_barrier")
    stamp(a, 5)
    cons_loop(a, "G2c", "KN", f"s{S_N2}", 18)
    stamp(a, 6)
    srd_off(a, SRD_A, S_WS, WS_P, P_BYTES)
    a(f"""
    s_mul_i32 s42, s{S_L}, {P_TILE}
    s_mul_i32 s41, s3, {PW}
    s_add_u32 s42, s42, s41
    v_and_b32 v7, 63, v0
    v_lshlrev_b32 v7, 4, v7
    s_add_u32 s43, s3, 5
    s_sub_u32 s43, s43, s{S_SPLIT}
    """)
    for i in range(6):
        sk = a.new("pst")
        a(f"s_add_u32 s40, s43, {i}")
        a("s_cmp_eq_u32 s40, 5")
        a(f"s_cbranch_scc1 {sk}")
        a("s_cmp_eq_u32 s40, 10")
        a(f"s_cbranch_scc1 {sk}")
        a(f"s_add_u32 s41, s42, {i*PB}")
        t = 20 + 8 * (i & 1)
        if PBF16:
            for r in range(8):
                a(f"v_cvt_pk_bf16_f32 v{t+r}, v{ACC+16*i+2*r}, v{ACC+16*i+2*r+1}")
            a(f"buffer_store_dwordx4 v[{t}:{t+3}], v7, s[{SRD_A}:{SRD_A+3}], s41 offen sc1")
            a(f"buffer_store_dwordx4 v[{t+4}:{t+7}], v7, s[{SRD_A}:{SRD_A+3}], s41 offen offset:1024 sc1")
        else:
            for q in range(4):
                c = ACC + 16 * i + 4 * q
                a(f"buffer_store_dwordx4 v[{c}:{c+3}], v7, s[{SRD_A}:{SRD_A+3}], s41 offen offset:{q*1024} sc1")
        a.label(sk)
    a("s_waitcnt vmcnt(0)")
    a("s_barrier")
    a(f"""
    s_lshl_b32 s41, s{S_TILE}, 8
    s_add_u32 s41, s41, {C_P*256}
    s_lshl_b32 s47, s{S_SPLIT}, 3
    s_add_u32 s47, s47, s41
    s_cmp_lg_u32 s3, 0
    s_cbranch_scc1 K_psig
    """)
    signal(a, 47)
    a("s_branch K_psig2")
    a.label("K_psig")
    get_nonce(a)
    a.label("K_psig2")
    srd(a, SRD_B, S_X, XN_BYTES)
    srd(a, SRD_C, S_OUT, XN_BYTES)
    a(f"""
    s_lshl_b32 s49, s{S_MT2}, 7
    s_lshl_b32 s40, s{S_WM}, 6
    s_add_u32 s49, s49, s40
    s_mul_i32 s48, s{S_NT2}, 384
    s_mul_i32 s40, s{S_WN}, 192
    s_add_u32 s48, s48, s40
    v_and_b32 v2, 63, v0
    v_and_b32 v3, 31, v2
    v_lshrrev_b32 v4, 5, v2
    v_add_u32 v3, s49, v3
    v_mul_u32_u24 v3, 1152, v3
    v_add_u32 v3, s48, v3
    v_lshl_add_u32 v5, v4, 3, v3
    v_lshl_add_u32 v6, v4, 4, v3
    s_mul_i32 s42, s{S_TILE}, {P_TILE}
    s_mul_i32 s40, s3, {PW}
    s_add_u32 s42, s42, s40
    s_mov_b32 s46, 5
    """)
    poll(a, 41, 0x1f)
    stamp(a, 7)
    a.label("F_loop")
    a("s_sub_i32 s45, s46, s43")
    a("s_cmp_lt_i32 s45, 0")
    a("s_cbranch_scc1 F_next")
    a("s_cmp_gt_i32 s45, 5")
    a("s_cbranch_scc1 F_next")
    a(f"""
    s_cmp_ge_u32 s45, 3
    s_cselect_b32 s40, 3, 0
    s_cselect_b32 s47, {32*1152}, 0
    s_sub_u32 s40, s45, s40
    s_lshl_b32 s40, s40, 6
    s_add_u32 s47, s47, s40
    s_mul_i32 s48, s45, {PB}
    s_add_u32 s48, s48, s42
    """)
    XR, PR, W = 160, 8, 40
    for gq in range(4):
        a(f"buffer_load_dwordx2 v[{XR+2*gq}:{XR+1+2*gq}], v5, s[{SRD_B}:{SRD_B+3}], s47 offen offset:{gq*16}")
    def src_addr(d):
        a(f"""
        s_add_u32 s44, s{S_SPLIT}, {d}
        s_sub_u32 s40, s44, 5
        s_cmp_ge_u32 s44, 5
        s_cselect_b32 s44, s40, s44
        s_mul_i32 s44, s44, {48*P_TILE}
        s_add_u32 s44, s44, s48
        """)

    def movs():
        for i in range(6):
            a(f"s_cmp_lg_u32 s45, {i}")
            a(f"s_cbranch_scc1 F_m{i}")
            for r in range(16):
                a(f"v_mov_b32 v{W+r}, v{ACC+16*i+r}")
            a.label(f"F_m{i}")
    if PBF16:
        for d in range(1, 5):
            r0 = PR + 8 * (d - 1)
            src_addr(d)
            a(f"buffer_load_dwordx4 v[{r0}:{r0+3}], v7, s[{SRD_A}:{SRD_A+3}], s44 offen sc1")
            a(f"buffer_load_dwordx4 v[{r0+4}:{r0+7}], v7, s[{SRD_A}:{SRD_A+3}], s44 offen offset:1024 sc1")
        movs()
        for d in range(1, 5):
            a(f"s_waitcnt vmcnt({2*(4-d)})")
            for r in range(8):
                src = PR + 8 * (d - 1) + r
                a(f"""
                v_lshlrev_b32 v56, 16, v{src}
                v_and_b32 v57, 0xffff0000, v{src}
                v_add_f32 v{W+2*r}, v{W+2*r}, v56
                v_add_f32 v{W+2*r+1}, v{W+2*r+1}, v57
                """)
    else:
        for half in range(2):
            for dd in range(2):
                src_addr(1 + 2 * half + dd)
                for q in range(4):
                    r0 = PR + 16 * dd + 4 * q
                    a(f"buffer_load_dwordx4 v[{r0}:{r0+3}], v7, s[{SRD_A}:{SRD_A+3}], s44 offen offset:{q*1024} sc1")
            if half == 0:
                movs()
            for dd in range(2):
                a(f"s_waitcnt vmcnt({4 if dd == 0 else 0})")
                for r in range(16):
                    a(f"v_add_f32 v{W+r}, v{W+r}, v{PR+16*dd+r}")
    for gq in range(4):
        c = W + 4 * gq
        a(f"""
        v_lshlrev_b32 v56, 16, v{XR+2*gq}
        v_and_b32 v57, 0xffff0000, v{XR+2*gq}
        v_lshlrev_b32 v58, 16, v{XR+1+2*gq}
        v_and_b32 v59, 0xffff0000, v{XR+1+2*gq}
        v_add_f32 v{c}, v{c}, v56
        v_add_f32 v{c+1}, v{c+1}, v57
        v_add_f32 v{c+2}, v{c+2}, v58
        v_add_f32 v{c+3}, v{c+3}, v59
        v_cvt_pk_bf16_f32 v{8+2*gq}, v{c}, v{c+1}
        v_cvt_pk_bf16_f32 v{9+2*gq}, v{c+2}, v{c+3}
        """)
    a(f"""
    s_nop 1
    v_permlane32_swap_b32 v8, v10
    v_permlane32_swap_b32 v9, v11
    v_permlane32_swap_b32 v12, v14
    v_permlane32_swap_b32 v13, v15
    buffer_store_dwordx4 v[8:11], v6, s[{SRD_C}:{SRD_C+3}], s47 offen
    buffer_store_dwordx4 v[12:15], v6, s[{SRD_C}:{SRD_C+3}], s47 offen offset:32
    s_nop 1
    """)
    a.label("F_next")
    a("s_add_u32 s46, s46, 5")
    a("s_cmp_le_u32 s46, 10")
    a("s_cbranch_scc1 F_loop")
    if STAMP:
        a("s_waitcnt vmcnt(0)")
    flush_stamps(a, 9)
    a("s_endpgm")

    a.label("K_loader")
    a("s_cmp_ge_u32 s3, 10")
    a("s_cbranch_scc1 K_loadB")
    srd_off(a, SRD_B, S_WS, WS_XN, XN_BYTES)
    voff_ktype(a, 1152, 1, 2)
    voff_ktype(a, 4096, 3, 4)
    a(f"""
    s_sub_u32 s59, s3, 8
    s_lshl_b32 s41, s{S_M}, 7
    s_lshl_b32 s56, s59, 6
    s_add_u32 s41, s41, s56
    s_mul_i32 s55, s41, 1152
    s_lshl_b32 s41, s{S_MT2}, 7
    s_add_u32 s41, s41, s56
    s_lshl_b32 s49, s41, 12
    s_lshl_b32 s56, s59, 13
    s_add_u32 s60, s{S_WS}, {WS_H}
    s_addc_u32 s61, s{S_WS+1}, 0
    s_mov_b32 s{SRD_A+2}, {PANEL}
    s_mov_b32 s{SRD_A+3}, 0x00020000
    s_barrier
    s_lshr_b32 s41, s{S_M}, 1
    s_lshl_b32 s41, s41, 8
    s_add_u32 s41, s41, {C_LN*256}
    """)
    get_nonce(a)
    poll(a, 41, 0x3fffffff)
    a(f"""
    s_mov_b32 s48, 0x1f
    s_cmp_eq_u32 s{S_SPLIT}, 1
    s_cselect_b32 s48, 0x3f0, s48
    s_cmp_eq_u32 s{S_SPLIT}, 2
    s_cselect_b32 s48, 0x3e00, s48
    s_cmp_eq_u32 s{S_SPLIT}, 3
    s_cselect_b32 s48, 0x7c000, s48
    s_cmp_eq_u32 s{S_SPLIT}, 4
    s_cselect_b32 s48, 0xf80000, s48
    s_lshl_b32 s47, s{S_MT2}, 8
    s_add_u32 s47, s47, {C_H*256}
    """)

    def issueA():
        a("s_add_u32 s58, s51, s56")
        a("s_cmp_ge_u32 s50, 18")
        a("s_cbranch_scc1 LA_g2")
        a("""
        s_sub_u32 s62, s50, 9
        s_cmp_ge_u32 s50, 9
        s_cselect_b32 s62, s62, s50
        s_lshl_b32 s57, s62, 7
        s_add_u32 s57, s57, s55
        """)
        issue_k(a, 8, 1152, SRD_B, 1, LDF)
        a("s_branch LA_end")
        a.label("LA_g2")
        a(f"s_sub_u32 s62, s50, 18")
        a(f"s_cmp_lg_u32 s62, s{S_NF}")
        a("s_cbranch_scc1 LA_np")
        poll(a, 47, "s48")
        a.label("LA_np")
        g2_kk(a)
        a(f"""
        s_lshr_b32 s63, s62, 5
        s_sub_u32 s41, s63, 2
        s_lshl_b32 s41, s41, 23
        s_add_u32 s{SRD_A}, s60, s41
        s_addc_u32 s{SRD_A+1}, s61, 0
        s_cmp_eq_u32 s63, 0
        s_cselect_b32 s{SRD_A}, s{S_WSRE}, s{SRD_A}
        s_cselect_b32 s{SRD_A+1}, s{S_WSRE+1}, s{SRD_A+1}
        s_cmp_eq_u32 s63, 1
        s_cselect_b32 s{SRD_A}, s{S_WSIM}, s{SRD_A}
        s_cselect_b32 s{SRD_A+1}, s{S_WSIM+1}, s{SRD_A+1}
        s_and_b32 s{SRD_A+1}, s{SRD_A+1}, 0xffff
        s_and_b32 s57, s62, 31
        s_lshl_b32 s57, s57, 7
        s_add_u32 s57, s57, s49
        """)
        issue_k(a, 8, 4096, SRD_A, 3, LDF)
        a.label("LA_end")
    loader_loop(a, "LA", 8, SA, 0, issueA, False)

    a.label("K_loadB")
    a(f"""
    s_sub_u32 s59, s3, 10
    s_cmp_ge_u32 s{S_N1}, 3
    s_cselect_b32 s60, s{S_WDIM}, s{S_WDRE}
    s_cselect_b32 s61, s{S_WDIM+1}, s{S_WDRE+1}
    """)
    srd(a, SRD_B, 60, WD_BYTES)
    srd(a, SRD_C, S_W1, W1_BYTES)
    voff_ktype(a, 1152, 1, 2)
    voff_ntype(a, 9216, 3)
    voff_ntype(a, 1152, 6)
    a(f"""
    s_mul_i32 s56, s59, {32*9216}
    s_add_u32 s41, s{S_N1}, 9
    s_mul_i32 s49, s41, 384
    s_add_u32 s49, s49, s56
    s_sub_u32 s41, s{S_N1}, 6
    s_mul_i32 s55, s41, 384
    s_add_u32 s55, s55, s56
    s_cmp_ge_u32 s{S_N1}, 6
    s_cbranch_scc1 LB_s1
    s_cmp_ge_u32 s{S_N1}, 3
    s_cselect_b32 s41, 3, 0
    s_sub_u32 s41, s{S_N1}, s41
    s_mul_i32 s41, s41, 192
    s_mul_i32 s56, s59, 96
    s_add_u32 s41, s41, s56
    s_mul_i32 s55, s41, 1152
    """)
    a.label("LB_s1")
    a(f"""
    s_mul_i32 s48, s{S_NT2}, 384
    s_mul_i32 s56, s59, {32*1152}
    s_add_u32 s48, s48, s56
    s_mul_i32 s56, s59, 12288
    s_add_u32 s60, s{S_WS}, {WS_AB}
    s_addc_u32 s61, s{S_WS+1}, 0
    s_mov_b32 s{SRD_A+3}, 0x00020000
    """)

    def issueB():
        a("s_add_u32 s58, s51, s56")
        a("s_cmp_ge_u32 s50, 18")
        a("s_cbranch_scc1 LB_g2")
        a("s_cmp_ge_u32 s50, 9")
        a("s_cbranch_scc1 LB_t2")
        a(f"s_cmp_ge_u32 s{S_N1}, 6")
        a("s_cbranch_scc1 LB_t1kn")
        a("s_lshl_b32 s57, s50, 7")
        a("s_add_u32 s57, s57, s55")
        issue_k(a, 12, 1152, SRD_B, 1)
        a("s_branch LB_end")
        a.label("LB_t1kn")
        a(f"s_mul_i32 s57, s50, {64*9216}")
        a("s_add_u32 s57, s57, s55")
        a("s_branch LB_kn")
        a.label("LB_t2")
        a("s_sub_u32 s62, s50, 9")
        a(f"s_mul_i32 s57, s62, {64*9216}")
        a("s_add_u32 s57, s57, s49")
        a.label("LB_kn")
        issue_n(a, 9216, SRD_C, 3)
        a("s_branch LB_end")
        a.label("LB_g2")
        a("s_cmp_lg_u32 s50, 18")
        a("s_cbranch_scc1 LB_np")
        get_nonce(a)
        a(f"s_cmp_ge_u32 s{S_SPLIT}, 3")
        a("s_cbranch_scc1 LB_p2")
        a(f"s_lshl_b32 s41, s{S_NT2}, 8")
        a(f"s_add_u32 s41, s41, {C_AB*256}")
        poll(a, 41, 0xffff)
        a.label("LB_p2")
        a(f"s_cmp_lt_u32 s{S_SPLIT}, 2")
        a("s_cbranch_scc1 LB_np")
        a(f"s_lshl_b32 s41, s{S_NT2}, 8")
        a(f"s_add_u32 s41, s41, {(C_AB+3)*256}")
        poll(a, 41, 0xffff)
        a.label("LB_np")
        g2_kk(a)
        a(f"""
        s_sub_u32 s63, s62, 64
        s_cmp_lt_u32 s62, 64
        s_cselect_b32 s63, s62, s63
        s_cselect_b32 s{SRD_A}, s60, s{S_W2}
        s_cselect_b32 s{SRD_A+1}, s61, s{S_W2+1}
        s_mov_b32 s{SRD_A+2}, {W2_BYTES}
        s_cselect_b32 s{SRD_A+2}, {AB_BYTES}, s{SRD_A+2}
        s_and_b32 s{SRD_A+1}, s{SRD_A+1}, 0xffff
        s_mul_i32 s57, s63, {64*1152}
        s_add_u32 s57, s57, s48
        """)
        issue_n(a, 1152, SRD_A, 6, LDF)
        a.label("LB_end")
    loader_loop(a, "LB", 12, SB, LDS_B, issueB, True)
    a.label("K_done")
    a("s_endpgm")
    return name


def main():
    a = Asm()
    name = gen_kernel(a)
    head = f"; generated by gen3.py\n; @launch grid=({NWG},1,1) block=(768,1,1) lds={LDS_TOTAL}\n"
    head += '.amdgcn_target "amdgcn-amd-amdhsa--gfx950"\n.text\n'
    tail = f""".section .rodata,"a"
.p2align 6
.amdhsa_kernel {name}
  .amdhsa_next_free_vgpr 168
  .amdhsa_next_free_sgpr 102
  .amdhsa_accum_offset 168
  .amdhsa_group_segment_fixed_size 0
  .amdhsa_kernarg_size 88
  .amdhsa_user_sgpr_count 2
  .amdhsa_user_sgpr_kernarg_segment_ptr 1
  .amdhsa_system_sgpr_workgroup_id_x 1
  .amdhsa_float_denorm_mode_32 3
  .amdhsa_float_denorm_mode_16_64 3
.end_amdhsa_kernel
"""
    open(OUT, "w").write(head + a.text() + tail)


if __name__ == "__main__":
    main()
```

```python
import os
import gen2 as g
from gen2 import (Asm, srd, srd_off, stamp, flush_stamps, get_nonce, signal, poll, ln_phase, frag, reads_for,
                  LgkmTracker, substep, consumer_addr_setup, voff_ktype, voff_ntype,
                  S_X, S_WSRE, S_WSIM, S_WDRE, S_WDIM, S_W1, S_W2, S_OUT, S_DBG, S_WS,
                  S_SPLIT, S_TILE, S_MT2, S_NT2, SRD_DBG, S_L, S_NT1, S_MT1, S_WM, S_WN, SRD_A, SRD_B, SRD_C, SRD_F,
                  WS_XN, WS_AB, WS_H, WS_P, WS_F, F_BYTES, XN_BYTES, AB_BYTES, PANEL, W1_BYTES, W2_BYTES, WD_BYTES,
                  V_AB, V_AA, V_BB, V_BA, FR0, FR1, ACC, NAME, STAMP)

OUT = os.environ.get("OUT", "cdna_kernels/%s.s" % NAME)
TOUCH = int(os.environ.get("TOUCH3", "1"))
NWG = 240
NS = 4
SA, SB = 16384, 24576
LDS_B = NS * SA
g.LDS_B = LDS_B
LDS_TOTAL = LDS_B + NS * SB
WTOUCH = int(os.environ.get("WTOUCH", "1"))
TSTART = int(os.environ.get("TSTART", "0"))
NB1 = int(os.environ.get("NB1", "6"))
HOLD = (14, 15, 17) if int(os.environ.get("HOLD", "1")) else None
LDF = os.environ.get("LDF", "sc1")
TSPAN = int(os.environ.get("TSPAN", "9"))
PBF16 = int(os.environ.get("PBF16", "1"))
PEL = 2 if PBF16 else 4
P_TILE = 128 * 192 * PEL
PW = P_TILE // 4
PB = PW // 6
P_BYTES = NWG * P_TILE
C_LN, C_AB, C_H, C_P = 0, 8, 16, 32
S_NF, S_N2, S_NT, S_M, S_N1, S_NR = 66, 67, 36, 64, 65, 89


def cons_loop(a, pfx, btype, nsteps, t0):
    nb = 4 if btype == "NK" else 3
    sl = t0 % NS
    a(f"s_mov_b32 s44, {sl*SA}")
    a(f"s_mov_b32 s45, {sl*SB}")
    a("s_mov_b32 s46, 0")
    for j in range(4):
        a(f"v_add_u32 v{V_AA+j}, {sl*SA}, v{V_AB+j}")
    for j in range(nb):
        a(f"v_add_u32 v{V_BA+j}, {sl*SB}, v{V_BB+j}")
    trk = LgkmTracker(a)
    for t, ins in reads_for(btype, FR0, 0):
        trk.issue("s0" + t, ins)
    a.label(f"{pfx}_loop")
    entry_state = list(trk.out)
    substep(a, trk, FR0, reads_for(btype, FR1, 1), "s0", "s1")
    substep(a, trk, FR1, reads_for(btype, FR0, 2), "s1", "s2")
    substep(a, trk, FR0, reads_for(btype, FR1, 3), "s2", "s3")
    a(f"""
    s_add_u32 s44, s44, {SA}
    s_add_u32 s45, s45, {SB}
    s_cmp_ge_u32 s44, {SA*NS}
    s_cselect_b32 s44, 0, s44
    s_cselect_b32 s45, 0, s45
    """)
    trk.drain()
    for j in range(4):
        a(f"v_add_u32 v{V_AA+j}, s44, v{V_AB+j}")
    for j in range(nb):
        a(f"v_add_u32 v{V_BA+j}, s45, v{V_BB+j}")
    a("s_barrier")
    substep(a, trk, FR1, reads_for(btype, FR0, 0), "s3", "s0")
    assert trk.out == entry_state
    a(f"""
    s_add_u32 s46, s46, 1
    s_cmp_lt_u32 s46, {nsteps}
    s_cbranch_scc1 {pfx}_loop
    s_waitcnt lgkmcnt(0)
    s_nop 15
    s_nop 3
    """)


def zero_acc(a):
    for i in range(96):
        a(f"v_mov_b32 v{ACC+i}, 0")


def loader_loop(a, pfx, L, slot_bytes, ring_base, issue_fn, first_extra_barrier, hold=None):
    a("s_mov_b32 s50, 0")
    a(f"s_mov_b32 s51, {ring_base}")
    a(f"s_mov_b32 s52, {-NS}")
    a.label(f"{pfx}_loop")
    a("s_cmp_lt_i32 s52, -1")
    a(f"s_cbranch_scc1 {pfx}_iss0")
    if first_extra_barrier:
        a("s_cmp_lg_i32 s52, -1")
        a(f"s_cbranch_scc1 {pfx}_nx")
        a("s_barrier")
        a.label(f"{pfx}_nx")
    a("s_sub_i32 s53, s50, s52")
    for c in range(NS - 2, 0, -1):
        a(f"s_cmp_ge_i32 s53, {c+2}")
        a(f"s_cbranch_scc1 {pfx}_w{c}")
    a("s_waitcnt vmcnt(0)")
    a(f"s_branch {pfx}_bar")
    for c in range(1, NS - 1):
        a.label(f"{pfx}_w{c}")
        a(f"s_waitcnt vmcnt({c*L})")
        if c != NS - 2:
            a(f"s_branch {pfx}_bar")
    a.label(f"{pfx}_bar")
    a("s_barrier")
    a.label(f"{pfx}_iss0")
    a(f"s_add_i32 s43, s52, {NS}")
    if hold:
        a(f"s_cmp_ge_i32 s52, {hold[0]}")
        a(f"s_cselect_b32 s42, {hold[2]}, s43")
        a(f"s_cmp_le_i32 s52, {hold[1]}")
        a("s_cselect_b32 s43, s42, s43")
    a(f"s_sub_u32 s42, s{S_NT}, 1")
    a("s_min_i32 s43, s43, s42")
    a.label(f"{pfx}_iss")
    a("s_cmp_gt_i32 s50, s43")
    a(f"s_cbranch_scc1 {pfx}_skip")
    issue_fn()
    a("s_add_u32 s50, s50, 1")
    a(f"s_add_u32 s51, s51, {slot_bytes}")
    a(f"s_cmp_ge_u32 s51, {ring_base + NS*slot_bytes}")
    a(f"s_cselect_b32 s51, {ring_base}, s51")
    a(f"s_branch {pfx}_iss")
    a.label(f"{pfx}_skip")
    a(f"""
    s_add_i32 s52, s52, 1
    s_cmp_lt_i32 s52, s{S_NT}
    s_cbranch_scc1 {pfx}_loop
    s_endpgm
    """)


def issue_k(a, nq, stride, srdr, ve, flags=""):
    for q in range(nq):
        a(f"s_add_u32 m0, s58, {q*1024}")
        a(f"s_add_u32 s54, s57, {q*8*stride}")
        a(f"buffer_load_dwordx4 v{ve+1 if q & 1 else ve}, s[{srdr}:{srdr+3}], s54 offen {flags} lds")


def issue_n(a, stride, srdr, vb, flags=""):
    for aa in range(4):
        for b in range(3):
            a(f"s_add_u32 m0, s58, {(3*aa+b)*1024}")
            a(f"s_add_u32 s54, s57, {aa*8*stride}")
            a(f"buffer_load_dwordx4 v{vb+b}, s[{srdr}:{srdr+3}], s54 offen {flags} lds")


def g2_kk(a):
    a(f"""
    s_sub_u32 s62, s50, 18
    s_mul_i32 s63, s{S_SPLIT}, 13
    s_cmp_lt_u32 s62, s{S_NF}
    s_cbranch_scc1 1f
    s_cmp_lt_u32 s62, s{S_NR}
    s_cbranch_scc1 2f
    s_sub_u32 s62, s62, s{S_NR}
    s_mul_i32 s63, s{S_SPLIT}, 9
    s_add_u32 s63, s63, 91
    s_branch 1f
    """)
    a.lines.append("2:")
    a(f"""
    s_sub_u32 s62, s62, s{S_NF}
    s_mul_i32 s63, s{S_SPLIT}, 5
    s_add_u32 s63, s63, 64
    s_cmp_eq_u32 s{S_SPLIT}, 4
    s_addc_u32 s63, s63, 0
    """)
    a.lines.append("1:")
    a("s_add_u32 s62, s62, s63")


def ws_touch_setup(a):
    a(f"""
    v_and_b32 v162, 63, v0
    s_mul_i32 s40, s{S_NT2}, 43
    v_add_u32 v163, s40, v162
    s_lshl_b32 s40, s{S_MT2}, 7
    v_add_u32 v161, s40, v163
    v_lshlrev_b32 v161, 12, v161
    v_mov_b32 v164, 0x7f000000
    v_cmp_gt_u32 vcc, 43, v162
    s_nop 1
    v_cndmask_b32 v161, v164, v161, vcc
    v_cmp_gt_u32 vcc, 128, v163
    s_nop 1
    v_cndmask_b32 v161, v164, v161, vcc
    s_mov_b32 s{SRD_C+2}, {PANEL}
    s_mov_b32 s{SRD_C+3}, 0x00020000
    """)


def ws_touch(a, j, wave):
    lb = a.new("tch")
    a(f"""
    s_cmp_lg_u32 s3, {wave}
    s_cbranch_scc1 {lb}
    s_cmp_le_u32 s{S_NF}, {j}
    s_cbranch_scc1 {lb}
    s_mul_i32 s40, s{S_SPLIT}, 13
    s_add_u32 s40, s40, {j}
    s_cmp_lt_u32 s40, 32
    s_cselect_b32 s{SRD_C}, s{S_WSRE}, s{S_WSIM}
    s_cselect_b32 s{SRD_C+1}, s{S_WSRE+1}, s{S_WSIM+1}
    s_and_b32 s{SRD_C+1}, s{SRD_C+1}, 0xffff
    s_and_b32 s40, s40, 31
    s_lshl_b32 s40, s40, 7
    buffer_load_dword v160, v161, s[{SRD_C}:{SRD_C+3}], s40 offen
    """)
    a.label(lb)


def w2_touch(a):
    for p in range(64):
        assert (p * 5462) >> 16 == p // 12 and ((p % 12) * 21846) >> 16 == (p % 12) // 3
    lb = a.new("w2t")
    srd(a, SRD_C, S_W2, W2_BYTES)
    a(f"""
    s_cmp_ge_u32 s3, 7
    s_cbranch_scc1 {lb}
    v_and_b32 v162, 63, v0
    v_mul_u32_u24 v163, 5462, v162
    v_lshrrev_b32 v163, 16, v163
    v_mul_u32_u24 v164, 12, v163
    v_sub_u32 v164, v162, v164
    v_mul_u32_u24 v165, 21846, v164
    v_lshrrev_b32 v165, 16, v165
    v_mul_u32_u24 v166, 3, v165
    v_sub_u32 v166, v164, v166
    s_sub_u32 s40, s3, 4
    s_mul_i32 s40, s40, 5
    v_add_u32 v163, s40, v163
    s_sub_u32 s44, s{S_N2}, s{S_NF}
    v_cmp_gt_u32 vcc, s44, v163
    v_cmp_gt_u32 s[44:45], 60, v162
    s_mul_i32 s40, s{S_SPLIT}, 14
    s_cmp_eq_u32 s{S_SPLIT}, 4
    s_addc_u32 s40, s40, 0
    s_and_b64 vcc, vcc, s[44:45]
    v_add_u32 v163, s40, v163
    v_lshlrev_b32 v163, 6, v163
    s_lshl_b32 s40, s{S_MT2}, 2
    v_add3_u32 v163, v163, v165, s40
    v_mul_u32_u24 v163, 1152, v163
    v_lshl_add_u32 v163, v166, 7, v163
    v_mov_b32 v164, 0x7f000000
    v_cndmask_b32 v163, v164, v163, vcc
    s_mul_i32 s40, s{S_NT2}, 384
    buffer_load_dword v160, v163, s[{SRD_C}:{SRD_C+3}], s40 offen
    """)
    a.label(lb)


def gen_kernel(a):
    name = NAME + "_kernel"
    a.lines.append(f".globl {name}")
    a.lines.append(".p2align 8")
    a.lines.append(f".type {name},@function")
    a.label(name)
    a(f"""
    s_cmp_ge_u32 s2, {NWG}
    s_cbranch_scc1 K_done
    """)
    stamp(a, 0)
    a(f"""
    s_load_dwordx8 s[4:11], s[0:1], 0
    s_load_dwordx2 s[12:13], s[0:1], 32
    s_load_dwordx4 s[16:19], s[0:1], 48
    s_load_dwordx4 s[20:23], s[0:1], 64
    s_load_dwordx2 s[24:25], s[0:1], 80
    v_lshrrev_b32 v1, 6, v0
    s_and_b32 s33, s2, 7
    s_mul_i32 s33, s33, 30
    s_lshr_b32 s34, s2, 3
    v_readfirstlane_b32 s3, v1
    s_add_u32 s{S_L}, s33, s34
    s_lshr_b32 s{S_NT1}, s{S_L}, 3
    s_and_b32 s{S_MT1}, s{S_L}, 7
    s_cmp_ge_u32 s{S_L}, 120
    s_cselect_b32 s40, 120, 0
    s_cselect_b32 s41, 8, 0
    s_sub_u32 s40, s{S_L}, s40
    s_lshr_b32 s{S_N1}, s40, 3
    s_and_b32 s{S_M}, s40, 7
    s_add_u32 s{S_M}, s{S_M}, s41
    s_mul_i32 s{S_SPLIT}, s{S_L}, 1366
    s_lshr_b32 s{S_SPLIT}, s{S_SPLIT}, 16
    s_mul_i32 s40, s{S_SPLIT}, 48
    s_sub_u32 s{S_TILE}, s{S_L}, s40
    s_mul_i32 s{S_MT2}, s{S_TILE}, 21846
    s_lshr_b32 s{S_MT2}, s{S_MT2}, 16
    s_mul_i32 s40, s{S_MT2}, 3
    s_sub_u32 s{S_NT2}, s{S_TILE}, s40
    s_cmp_eq_u32 s{S_SPLIT}, 4
    s_cselect_b32 s{S_NF}, 12, 13
    s_cmp_eq_u32 s{S_SPLIT}, 3
    s_cselect_b32 s{S_N2}, 28, 27
    s_add_u32 s{S_NT}, s{S_N2}, 18
    s_sub_u32 s{S_NR}, s{S_N2}, 9
    s_waitcnt lgkmcnt(0)
    """)
    srd(a, SRD_DBG, S_DBG, 256)
    srd_off(a, SRD_F, S_WS, WS_F, F_BYTES)
    a(f"""
    s_or_b32 s40, s2, s3
    s_cmp_lg_u32 s40, 0
    s_cbranch_scc1 K_nopub
    s_memrealtime s[40:41]
    s_waitcnt lgkmcnt(0)
    s_or_b32 s40, s40, 1
    v_mov_b32 v60, s40
    v_mov_b32 v61, s41
    v_mov_b32 v63, 0
    s_mov_b64 exec, 1
    buffer_store_dwordx2 v[60:61], v63, s[{SRD_DBG}:{SRD_DBG+3}], 0 offen sc1
    s_mov_b64 exec, -1
    """)
    a.label("K_nopub")
    a("s_cmp_ge_u32 s3, 8")
    a("s_cbranch_scc1 K_loader")
    a("s_and_b32 s40, s3, 3")
    a(f"s_lshr_b32 s{S_WM}, s40, 1")
    a(f"s_and_b32 s{S_WN}, s40, 1")
    a("s_cmp_ge_u32 s3, 4")
    a("s_cbranch_scc1 K_g1")
    a("s_cmp_ge_u32 s3, 3")
    a("s_cbranch_scc1 K_lnskip")
    ln_phase(a)
    a.label("K_lnskip")
    a("s_barrier")
    a("s_cmp_lg_u32 s3, 0")
    a("s_cbranch_scc1 K_lnsig")
    get_nonce(a)
    a(f"s_lshl_b32 s41, s{S_MT1}, 8")
    a(f"s_lshl_b32 s40, s{S_NT1}, 3")
    a("s_add_u32 s41, s41, s40")
    a(f"s_add_u32 s41, s41, {C_LN*256}")
    signal(a, 41)
    a.label("K_lnsig")
    stamp(a, 1)
    zero_acc(a)
    a(f"s_cmp_ge_u32 s{S_N1}, 6")
    a("s_cbranch_scc1 T1_KN")
    consumer_addr_setup(a, "NK")
    a("s_barrier")
    stamp(a, 2)
    cons_loop(a, "T1nk", "NK", 9, 0)
    a("s_branch T1_done")
    a.label("T1_KN")
    consumer_addr_setup(a, "KN")
    a("s_barrier")
    stamp(a, 2)
    cons_loop(a, "T1kn", "KN", 9, 0)
    a.label("T1_done")
    stamp(a, 3)
    a(f"s_mov_b32 s46, s{S_N1}")
    a("s_branch K_epi")
    a.label("K_g1")
    if WTOUCH == 2:
        a("s_barrier")
    if WTOUCH:
        srd(a, SRD_C, S_W1, W1_BYTES)
        a(f"""
        v_subrev_u32 v56, 256, v0
        v_mul_u32_u24 v57, 21846, v56
        v_lshrrev_b32 v57, 16, v57
        v_mul_u32_u24 v59, 3, v57
        v_sub_u32 v59, v56, v59
        s_mul_i32 s40, s{S_M}, 36
        v_add_u32 v57, s40, v57
        v_mul_u32_u24 v57, 9216, v57
        v_lshl_add_u32 v57, v59, 7, v57
        v_mov_b32 v59, 0x7f000000
        v_cmp_gt_u32 vcc, 108, v56
        s_add_u32 s40, s{S_N1}, 9
        s_mul_i32 s40, s40, 384
        v_cndmask_b32 v57, v59, v57, vcc
        buffer_load_dword v160, v57, s[{SRD_C}:{SRD_C+3}], s40 offen
        s_cmp_lt_u32 s{S_N1}, 6
        s_cbranch_scc1 K_wt2
        s_sub_u32 s40, s{S_N1}, 6
        s_mul_i32 s40, s40, 384
        buffer_load_dword v160, v57, s[{SRD_C}:{SRD_C+3}], s40 offen
        s_branch K_wt3
        """)
        a.label("K_wt2")
        a(f"""
        s_cmp_ge_u32 s{S_N1}, 3
        s_cselect_b32 s60, s{S_WDIM}, s{S_WDRE}
        s_cselect_b32 s61, s{S_WDIM+1}, s{S_WDRE+1}
        s_cselect_b32 s40, 3, 0
        s_sub_u32 s40, s{S_N1}, s40
        s_mul_i32 s40, s40, 192
        s_mul_i32 s41, s{S_M}, 12
        s_add_u32 s40, s40, s41
        s_mul_i32 s40, s40, 1152
        v_lshlrev_b32 v57, 7, v56
        v_cndmask_b32 v57, v59, v57, vcc
        """)
        srd(a, SRD_C, 60, WD_BYTES)
        a(f"buffer_load_dword v160, v57, s[{SRD_C}:{SRD_C+3}], s40 offen")
        a.label("K_wt3")
    if WTOUCH != 2:
        a("s_barrier")
    zero_acc(a)
    consumer_addr_setup(a, "KN")
    a("s_barrier")
    if TOUCH:
        ws_touch_setup(a)
        sched = {1: [0], 2: [1], 4: [2], 5: [3], 7: [4], 8: [5]}
        for t in range(9):
            for j in sched.get(t, []):
                ws_touch(a, j, 4 + (j & 3))
            a("s_barrier")
    else:
        for _ in range(9):
            a("s_barrier")
    cons_loop(a, "T2", "KN", 9, 9)
    if TOUCH:
        w2_touch(a)
    a(f"s_add_u32 s46, s{S_N1}, 15")
    a.label("K_epi")
    srd_off(a, SRD_A, S_WS, WS_AB, AB_BYTES)
    srd_off(a, SRD_B, S_WS, WS_H, 3 * PANEL)
    a(f"""
    s_lshl_b32 s49, s{S_M}, 7
    s_cmp_ge_u32 s46, 6
    s_cbranch_scc1 E_h
    s_mov_b32 s43, 0x80008000
    s_cmp_ge_u32 s46, 3
    s_cselect_b32 s42, 0x80008000, 0
    s_cselect_b32 s41, 2048, 0
    s_cselect_b32 s40, 3, 0
    s_add_u32 s49, s49, s41
    s_sub_u32 s40, s46, s40
    s_mul_i32 s48, s40, 192
    s_mov_b32 s47, 1152
    s_lshl_b32 s41, s46, 8
    s_lshl_b32 s40, s{S_M}, 3
    s_add_u32 s41, s41, s40
    s_add_u32 s41, s41, {C_AB*256}
    s_branch E_go
    """)
    a.label("E_h")
    a(f"""
    s_mov_b32 s42, 0
    s_mov_b32 s43, 0
    s_mov_b32 s{SRD_A}, s{SRD_B}
    s_mov_b32 s{SRD_A+1}, s{SRD_B+1}
    s_mov_b32 s{SRD_A+2}, s{SRD_B+2}
    s_sub_u32 s40, s46, 6
    s_mul_i32 s48, s40, 192
    s_mov_b32 s47, 4096
    s_lshl_b32 s41, s{S_M}, 8
    s_lshl_b32 s40, s40, 3
    s_add_u32 s41, s41, s40
    s_add_u32 s41, s41, {C_H*256}
    """)
    a.label("E_go")
    a(f"""
    s_lshl_b32 s40, s{S_WM}, 6
    s_add_u32 s49, s49, s40
    s_mul_i32 s40, s{S_WN}, 96
    s_add_u32 s48, s48, s40
    v_and_b32 v60, 15, v0
    v_add_u32 v60, s49, v60
    v_mul_lo_u32 v60, v60, s47
    v_bfe_u32 v61, v0, 4, 1
    v_bfe_u32 v62, v0, 5, 1
    v_lshlrev_b32 v61, 4, v61
    v_lshl_add_u32 v61, v62, 3, v61
    v_add_u32 v61, s48, v61
    """)
    for ni in range(3):
        a(f"""
        v_add_u32 v62, {32*ni}, v61
        v_lshrrev_b32 v63, 11, v62
        v_lshlrev_b32 v63, 23, v63
        v_and_b32 v62, 2047, v62
        v_add_u32 v63, v60, v63
        v_lshl_add_u32 v{2+ni}, v62, 1, v63
        """)
    for mi in range(2):
        a(f"s_mul_i32 s44, s47, {32*mi}")
        a(f"s_mul_i32 s45, s47, {32*mi+16}")
        for ni in range(3):
            c = ACC + 16 * (3 * mi + ni)
            t = 20 + 8 * (ni & 1)
            for r in range(8):
                a(f"v_cvt_pk_bf16_f32 v{t+r}, v{c+2*r}, v{c+2*r+1}")
            for r in range(8):
                a(f"v_pk_max_i16 v{t+r}, v{t+r}, s43")
            for r in range(8):
                a(f"v_xor_b32 v{t+r}, s42, v{t+r}")
            a("s_nop 1")
            a(f"v_permlane32_swap_b32 v{t}, v{t+2}")
            a(f"v_permlane32_swap_b32 v{t+1}, v{t+3}")
            a(f"v_permlane32_swap_b32 v{t+4}, v{t+6}")
            a(f"v_permlane32_swap_b32 v{t+5}, v{t+7}")
            a("s_nop 1")
            for r in range(4):
                a(f"v_permlane16_swap_b32 v{t+r}, v{t+4+r}")
            a(f"buffer_store_dwordx4 v[{t}:{t+3}], v{2+ni}, s[{SRD_A}:{SRD_A+3}], s44 offen sc1")
            a(f"buffer_store_dwordx4 v[{t+4}:{t+7}], v{2+ni}, s[{SRD_A}:{SRD_A+3}], s45 offen sc1")
        a("s_barrier")
    a(f"""
    s_mov_b32 s44, 5
    s_cmp_lt_u32 s46, 6
    s_cselect_b32 s44, 2, s44
    s_cmp_ge_u32 s3, 4
    s_cselect_b32 s44, {NB1}, s44
    s_sub_u32 s45, 6, s44
    """)
    a.label("E_w1")
    a("s_barrier")
    a("s_sub_u32 s44, s44, 1")
    a("s_cmp_lg_u32 s44, 0")
    a("s_cbranch_scc1 E_w1")
    a("s_waitcnt vmcnt(0)")
    a("s_barrier")
    a("s_and_b32 s40, s3, 3")
    a("s_cmp_lg_u32 s40, 0")
    a("s_cbranch_scc1 E_sig")
    a("s_cmp_eq_u32 s3, 0")
    a("s_cbranch_scc1 E_sig0")
    get_nonce(a)
    a.label("E_sig0")
    signal(a, 41)
    a.label("E_sig")
    a("s_cmp_lt_u32 s3, 4")
    a("s_cbranch_scc1 E_g0")
    a("s_endpgm")
    a.label("E_g0")
    if TOUCH:
        ws_touch_setup(a)
        for j in range(6, 13):
            ws_touch(a, j, (j + 3) & 3)
    zero_acc(a)
    consumer_addr_setup(a, "KN")
    stamp(a, 4)
    a.label("E_w2")
    a("s_barrier")
    a("s_sub_u32 s45, s45, 1")
    a("s_cmp_lg_u32 s45, 0")
    a("s_cbranch_scc1 E_w2")
    stamp(a, 5)
    cons_loop(a, "G2c", "KN", f"s{S_N2}", 18)
    stamp(a, 6)
    srd_off(a, SRD_A, S_WS, WS_P, P_BYTES)
    a(f"""
    s_mul_i32 s42, s{S_L}, {P_TILE}
    s_mul_i32 s41, s3, {PW}
    s_add_u32 s42, s42, s41
    v_and_b32 v7, 63, v0
    v_lshlrev_b32 v7, 4, v7
    s_add_u32 s43, s3, 5
    s_sub_u32 s43, s43, s{S_SPLIT}
    """)
    for i in range(6):
        sk = a.new("pst")
        a(f"s_add_u32 s40, s43, {i}")
        a("s_cmp_eq_u32 s40, 5")
        a(f"s_cbranch_scc1 {sk}")
        a("s_cmp_eq_u32 s40, 10")
        a(f"s_cbranch_scc1 {sk}")
        a(f"s_add_u32 s41, s42, {i*PB}")
        t = 20 + 8 * (i & 1)
        if PBF16:
            for r in range(8):
                a(f"v_cvt_pk_bf16_f32 v{t+r}, v{ACC+16*i+2*r}, v{ACC+16*i+2*r+1}")
            a(f"buffer_store_dwordx4 v[{t}:{t+3}], v7, s[{SRD_A}:{SRD_A+3}], s41 offen sc1")
            a(f"buffer_store_dwordx4 v[{t+4}:{t+7}], v7, s[{SRD_A}:{SRD_A+3}], s41 offen offset:1024 sc1")
        else:
            for q in range(4):
                c = ACC + 16 * i + 4 * q
                a(f"buffer_store_dwordx4 v[{c}:{c+3}], v7, s[{SRD_A}:{SRD_A+3}], s41 offen offset:{q*1024} sc1")
        a.label(sk)
    a("s_waitcnt vmcnt(0)")
    a("s_barrier")
    a(f"""
    s_lshl_b32 s41, s{S_TILE}, 8
    s_add_u32 s41, s41, {C_P*256}
    s_lshl_b32 s47, s{S_SPLIT}, 3
    s_add_u32 s47, s47, s41
    s_cmp_lg_u32 s3, 0
    s_cbranch_scc1 K_psig
    """)
    signal(a, 47)
    a("s_branch K_psig2")
    a.label("K_psig")
    get_nonce(a)
    a.label("K_psig2")
    srd(a, SRD_B, S_X, XN_BYTES)
    srd(a, SRD_C, S_OUT, XN_BYTES)
    a(f"""
    s_lshl_b32 s49, s{S_MT2}, 7
    s_lshl_b32 s40, s{S_WM}, 6
    s_add_u32 s49, s49, s40
    s_mul_i32 s48, s{S_NT2}, 384
    s_mul_i32 s40, s{S_WN}, 192
    s_add_u32 s48, s48, s40
    v_and_b32 v2, 63, v0
    v_and_b32 v3, 31, v2
    v_lshrrev_b32 v4, 5, v2
    v_add_u32 v3, s49, v3
    v_mul_u32_u24 v3, 1152, v3
    v_add_u32 v3, s48, v3
    v_lshl_add_u32 v5, v4, 3, v3
    v_lshl_add_u32 v6, v4, 4, v3
    s_mul_i32 s42, s{S_TILE}, {P_TILE}
    s_mul_i32 s40, s3, {PW}
    s_add_u32 s42, s42, s40
    s_mov_b32 s46, 5
    """)
    poll(a, 41, 0x1f)
    stamp(a, 7)
    a.label("F_loop")
    a("s_sub_i32 s45, s46, s43")
    a("s_cmp_lt_i32 s45, 0")
    a("s_cbranch_scc1 F_next")
    a("s_cmp_gt_i32 s45, 5")
    a("s_cbranch_scc1 F_next")
    a(f"""
    s_cmp_ge_u32 s45, 3
    s_cselect_b32 s40, 3, 0
    s_cselect_b32 s47, {32*1152}, 0
    s_sub_u32 s40, s45, s40
    s_lshl_b32 s40, s40, 6
    s_add_u32 s47, s47, s40
    s_mul_i32 s48, s45, {PB}
    s_add_u32 s48, s48, s42
    """)
    XR, PR, W = 160, 8, 40
    for gq in range(4):
        a(f"buffer_load_dwordx2 v[{XR+2*gq}:{XR+1+2*gq}], v5, s[{SRD_B}:{SRD_B+3}], s47 offen offset:{gq*16}")
    def src_addr(d):
        a(f"""
        s_add_u32 s44, s{S_SPLIT}, {d}
        s_sub_u32 s40, s44, 5
        s_cmp_ge_u32 s44, 5
        s_cselect_b32 s44, s40, s44
        s_mul_i32 s44, s44, {48*P_TILE}
        s_add_u32 s44, s44, s48
        """)

    def movs():
        for i in range(6):
            a(f"s_cmp_lg_u32 s45, {i}")
            a(f"s_cbranch_scc1 F_m{i}")
            for r in range(16):
                a(f"v_mov_b32 v{W+r}, v{ACC+16*i+r}")
            a.label(f"F_m{i}")
    if PBF16:
        for d in range(1, 5):
            r0 = PR + 8 * (d - 1)
            src_addr(d)
            a(f"buffer_load_dwordx4 v[{r0}:{r0+3}], v7, s[{SRD_A}:{SRD_A+3}], s44 offen sc1")
            a(f"buffer_load_dwordx4 v[{r0+4}:{r0+7}], v7, s[{SRD_A}:{SRD_A+3}], s44 offen offset:1024 sc1")
        movs()
        for d in range(1, 5):
            a(f"s_waitcnt vmcnt({2*(4-d)})")
            for r in range(8):
                src = PR + 8 * (d - 1) + r
                a(f"""
                v_lshlrev_b32 v56, 16, v{src}
                v_and_b32 v57, 0xffff0000, v{src}
                v_add_f32 v{W+2*r}, v{W+2*r}, v56
                v_add_f32 v{W+2*r+1}, v{W+2*r+1}, v57
                """)
    else:
        for half in range(2):
            for dd in range(2):
                src_addr(1 + 2 * half + dd)
                for q in range(4):
                    r0 = PR + 16 * dd + 4 * q
                    a(f"buffer_load_dwordx4 v[{r0}:{r0+3}], v7, s[{SRD_A}:{SRD_A+3}], s44 offen offset:{q*1024} sc1")
            if half == 0:
                movs()
            for dd in range(2):
                a(f"s_waitcnt vmcnt({4 if dd == 0 else 0})")
                for r in range(16):
                    a(f"v_add_f32 v{W+r}, v{W+r}, v{PR+16*dd+r}")
    for gq in range(4):
        c = W + 4 * gq
        a(f"""
        v_lshlrev_b32 v56, 16, v{XR+2*gq}
        v_and_b32 v57, 0xffff0000, v{XR+2*gq}
        v_lshlrev_b32 v58, 16, v{XR+1+2*gq}
        v_and_b32 v59, 0xffff0000, v{XR+1+2*gq}
        v_add_f32 v{c}, v{c}, v56
        v_add_f32 v{c+1}, v{c+1}, v57
        v_add_f32 v{c+2}, v{c+2}, v58
        v_add_f32 v{c+3}, v{c+3}, v59
        v_cvt_pk_bf16_f32 v{8+2*gq}, v{c}, v{c+1}
        v_cvt_pk_bf16_f32 v{9+2*gq}, v{c+2}, v{c+3}
        """)
    a(f"""
    s_nop 1
    v_permlane32_swap_b32 v8, v10
    v_permlane32_swap_b32 v9, v11
    v_permlane32_swap_b32 v12, v14
    v_permlane32_swap_b32 v13, v15
    buffer_store_dwordx4 v[8:11], v6, s[{SRD_C}:{SRD_C+3}], s47 offen
    buffer_store_dwordx4 v[12:15], v6, s[{SRD_C}:{SRD_C+3}], s47 offen offset:32
    s_nop 1
    """)
    a.label("F_next")
    a("s_add_u32 s46, s46, 5")
    a("s_cmp_le_u32 s46, 10")
    a("s_cbranch_scc1 F_loop")
    if STAMP:
        a("s_waitcnt vmcnt(0)")
    flush_stamps(a, 9)
    a("s_endpgm")

    a.label("K_loader")
    a("s_cmp_ge_u32 s3, 10")
    a("s_cbranch_scc1 K_loadB")
    srd_off(a, SRD_B, S_WS, WS_XN, XN_BYTES)
    voff_ktype(a, 1152, 1, 2)
    voff_ktype(a, 4096, 3, 4)
    a(f"""
    s_sub_u32 s59, s3, 8
    s_lshl_b32 s41, s{S_M}, 7
    s_lshl_b32 s56, s59, 6
    s_add_u32 s41, s41, s56
    s_mul_i32 s55, s41, 1152
    s_lshl_b32 s41, s{S_MT2}, 7
    s_add_u32 s41, s41, s56
    s_lshl_b32 s49, s41, 12
    s_lshl_b32 s56, s59, 13
    s_add_u32 s60, s{S_WS}, {WS_H}
    s_addc_u32 s61, s{S_WS+1}, 0
    s_mov_b32 s{SRD_A+2}, {PANEL}
    s_mov_b32 s{SRD_A+3}, 0x00020000
    s_barrier
    s_lshr_b32 s41, s{S_M}, 1
    s_lshl_b32 s41, s41, 8
    s_add_u32 s41, s41, {C_LN*256}
    """)
    get_nonce(a)
    poll(a, 41, 0x3fffffff)
    a(f"""
    s_mov_b32 s48, 0x3
    s_cmp_eq_u32 s{S_SPLIT}, 1
    s_cselect_b32 s48, 0xe, s48
    s_cmp_eq_u32 s{S_SPLIT}, 2
    s_cselect_b32 s48, 0x18, s48
    s_cmp_eq_u32 s{S_SPLIT}, 3
    s_cselect_b32 s48, 0x60, s48
    s_cmp_eq_u32 s{S_SPLIT}, 4
    s_cselect_b32 s48, 0x180, s48
    s_mul_i32 s46, s{S_SPLIT}, 3
    s_lshl_b32 s46, 0xe00, s46
    s_lshl_b32 s47, s{S_MT2}, 8
    s_add_u32 s47, s47, {C_H*256}
    """)

    def issueA():
        a("s_add_u32 s58, s51, s56")
        a("s_cmp_ge_u32 s50, 18")
        a("s_cbranch_scc1 LA_g2")
        a("""
        s_sub_u32 s62, s50, 9
        s_cmp_ge_u32 s50, 9
        s_cselect_b32 s62, s62, s50
        s_lshl_b32 s57, s62, 7
        s_add_u32 s57, s57, s55
        """)
        issue_k(a, 8, 1152, SRD_B, 1, LDF)
        a("s_branch LA_end")
        a.label("LA_g2")
        a(f"s_sub_u32 s62, s50, 18")
        a(f"s_cmp_lg_u32 s62, s{S_NF}")
        a("s_cbranch_scc1 LA_np")
        poll(a, 47, "s48")
        a.label("LA_np")
        a(f"s_sub_u32 s62, s50, 18")
        a(f"s_cmp_lg_u32 s62, s{S_NR}")
        a("s_cbranch_scc1 LA_np2")
        poll(a, 47, "s46")
        a.label("LA_np2")
        g2_kk(a)
        a(f"""
        s_lshr_b32 s63, s62, 5
        s_sub_u32 s41, s63, 2
        s_lshl_b32 s41, s41, 23
        s_add_u32 s{SRD_A}, s60, s41
        s_addc_u32 s{SRD_A+1}, s61, 0
        s_cmp_eq_u32 s63, 0
        s_cselect_b32 s{SRD_A}, s{S_WSRE}, s{SRD_A}
        s_cselect_b32 s{SRD_A+1}, s{S_WSRE+1}, s{SRD_A+1}
        s_cmp_eq_u32 s63, 1
        s_cselect_b32 s{SRD_A}, s{S_WSIM}, s{SRD_A}
        s_cselect_b32 s{SRD_A+1}, s{S_WSIM+1}, s{SRD_A+1}
        s_and_b32 s{SRD_A+1}, s{SRD_A+1}, 0xffff
        s_and_b32 s57, s62, 31
        s_lshl_b32 s57, s57, 7
        s_add_u32 s57, s57, s49
        """)
        issue_k(a, 8, 4096, SRD_A, 3, LDF)
        a.label("LA_end")
    loader_loop(a, "LA", 8, SA, 0, issueA, False)

    a.label("K_loadB")
    a(f"""
    s_sub_u32 s59, s3, 10
    s_cmp_ge_u32 s{S_N1}, 3
    s_cselect_b32 s60, s{S_WDIM}, s{S_WDRE}
    s_cselect_b32 s61, s{S_WDIM+1}, s{S_WDRE+1}
    """)
    srd(a, SRD_B, 60, WD_BYTES)
    srd(a, SRD_C, S_W1, W1_BYTES)
    voff_ktype(a, 1152, 1, 2)
    voff_ntype(a, 9216, 3)
    voff_ntype(a, 1152, 6)
    a(f"""
    s_mul_i32 s56, s59, {32*9216}
    s_add_u32 s41, s{S_N1}, 9
    s_mul_i32 s49, s41, 384
    s_add_u32 s49, s49, s56
    s_sub_u32 s41, s{S_N1}, 6
    s_mul_i32 s55, s41, 384
    s_add_u32 s55, s55, s56
    s_cmp_ge_u32 s{S_N1}, 6
    s_cbranch_scc1 LB_s1
    s_cmp_ge_u32 s{S_N1}, 3
    s_cselect_b32 s41, 3, 0
    s_sub_u32 s41, s{S_N1}, s41
    s_mul_i32 s41, s41, 192
    s_mul_i32 s56, s59, 96
    s_add_u32 s41, s41, s56
    s_mul_i32 s55, s41, 1152
    """)
    a.label("LB_s1")
    a(f"""
    s_mul_i32 s48, s{S_NT2}, 384
    s_mul_i32 s56, s59, {32*1152}
    s_add_u32 s48, s48, s56
    s_mul_i32 s56, s59, 12288
    s_add_u32 s60, s{S_WS}, {WS_AB}
    s_addc_u32 s61, s{S_WS+1}, 0
    s_mov_b32 s{SRD_A+3}, 0x00020000
    """)

    def issueB():
        a("s_add_u32 s58, s51, s56")
        a("s_cmp_ge_u32 s50, 18")
        a("s_cbranch_scc1 LB_g2")
        a("s_cmp_ge_u32 s50, 9")
        a("s_cbranch_scc1 LB_t2")
        a(f"s_cmp_ge_u32 s{S_N1}, 6")
        a("s_cbranch_scc1 LB_t1kn")
        a("s_lshl_b32 s57, s50, 7")
        a("s_add_u32 s57, s57, s55")
        issue_k(a, 12, 1152, SRD_B, 1)
        a("s_branch LB_end")
        a.label("LB_t1kn")
        a(f"s_mul_i32 s57, s50, {64*9216}")
        a("s_add_u32 s57, s57, s55")
        a("s_branch LB_kn")
        a.label("LB_t2")
        a("s_sub_u32 s62, s50, 9")
        a(f"s_mul_i32 s57, s62, {64*9216}")
        a("s_add_u32 s57, s57, s49")
        a.label("LB_kn")
        issue_n(a, 9216, SRD_C, 3)
        a("s_branch LB_end")
        a.label("LB_g2")
        a("s_cmp_lg_u32 s50, 18")
        a("s_cbranch_scc1 LB_np")
        get_nonce(a)
        a(f"s_cmp_ge_u32 s{S_SPLIT}, 3")
        a("s_cbranch_scc1 LB_p2")
        a(f"s_lshl_b32 s41, s{S_NT2}, 8")
        a(f"s_add_u32 s41, s41, {C_AB*256}")
        poll(a, 41, 0xffff)
        a.label("LB_p2")
        a(f"s_cmp_lt_u32 s{S_SPLIT}, 2")
        a("s_cbranch_scc1 LB_np")
        a(f"s_lshl_b32 s41, s{S_NT2}, 8")
        a(f"s_add_u32 s41, s41, {(C_AB+3)*256}")
        poll(a, 41, 0xffff)
        a.label("LB_np")
        g2_kk(a)
        a(f"""
        s_sub_u32 s63, s62, 64
        s_cmp_lt_u32 s62, 64
        s_cselect_b32 s63, s62, s63
        s_cselect_b32 s{SRD_A}, s60, s{S_W2}
        s_cselect_b32 s{SRD_A+1}, s61, s{S_W2+1}
        s_mov_b32 s{SRD_A+2}, {W2_BYTES}
        s_cselect_b32 s{SRD_A+2}, {AB_BYTES}, s{SRD_A+2}
        s_and_b32 s{SRD_A+1}, s{SRD_A+1}, 0xffff
        s_mul_i32 s57, s63, {64*1152}
        s_add_u32 s57, s57, s48
        """)
        issue_n(a, 1152, SRD_A, 6, LDF)
        a.label("LB_end")
    loader_loop(a, "LB", 12, SB, LDS_B, issueB, True, HOLD)
    a.label("K_done")
    a("s_endpgm")
    return name


def main():
    a = Asm()
    name = gen_kernel(a)
    head = f"; generated by gen3.py\n; @launch grid=({NWG},1,1) block=(768,1,1) lds={LDS_TOTAL}\n"
    head += '.amdgcn_target "amdgcn-amd-amdhsa--gfx950"\n.text\n'
    tail = f""".section .rodata,"a"
.p2align 6
.amdhsa_kernel {name}
  .amdhsa_next_free_vgpr 168
  .amdhsa_next_free_sgpr 102
  .amdhsa_accum_offset 168
  .amdhsa_group_segment_fixed_size 0
  .amdhsa_kernarg_size 88
  .amdhsa_user_sgpr_count 2
  .amdhsa_user_sgpr_kernarg_segment_ptr 1
  .amdhsa_system_sgpr_workgroup_id_x 1
  .amdhsa_float_denorm_mode_32 3
  .amdhsa_float_denorm_mode_16_64 3
.end_amdhsa_kernel
"""
    open(OUT, "w").write(head + a.text() + tail)


if __name__ == "__main__":
    main()
```

```python
import os
import gen2 as g
from gen2 import (Asm, srd, srd_off, stamp, flush_stamps, get_nonce, signal, poll, ln_phase, frag, reads_for,
                  LgkmTracker, substep, consumer_addr_setup, voff_ktype, voff_ntype,
                  S_X, S_WSRE, S_WSIM, S_WDRE, S_WDIM, S_W1, S_W2, S_OUT, S_DBG, S_WS,
                  S_SPLIT, S_TILE, S_MT2, S_NT2, SRD_DBG, S_L, S_NT1, S_MT1, S_WM, S_WN, SRD_A, SRD_B, SRD_C, SRD_F,
                  WS_XN, WS_AB, WS_H, WS_P, WS_F, F_BYTES, XN_BYTES, AB_BYTES, PANEL, W1_BYTES, W2_BYTES, WD_BYTES,
                  V_AB, V_AA, V_BB, V_BA, FR0, FR1, ACC, NAME, STAMP)

OUT = os.environ.get("OUT", "cdna_kernels/%s.s" % NAME)
TOUCH = int(os.environ.get("TOUCH3", "1"))
NWG = 240
NS = 4
SA, SB = 16384, 24576
LDS_B = NS * SA
g.LDS_B = LDS_B
LDS_TOTAL = LDS_B + NS * SB
WTOUCH = int(os.environ.get("WTOUCH", "1"))
TSTART = int(os.environ.get("TSTART", "0"))
NB1 = int(os.environ.get("NB1", "6"))
HOLD = (14, 15, 17) if int(os.environ.get("HOLD", "1")) else None
LDF = os.environ.get("LDF", "sc1")
TSPAN = int(os.environ.get("TSPAN", "9"))
PBF16 = int(os.environ.get("PBF16", "1"))
PEL = 2 if PBF16 else 4
P_TILE = 128 * 192 * PEL
PW = P_TILE // 4
PB = PW // 6
P_BYTES = NWG * P_TILE
C_LN, C_AB, C_H, C_P = 0, 8, 16, 32
S_NF, S_N2, S_NT, S_M, S_N1, S_NR = 66, 67, 36, 64, 65, 89


V_AB, V_AA, V_BB, V_BA = 1, 3, 5, 11
FA, FB = 20, 36


def acc_reg(mb, nb):
    return ACC + 16 * (3 * (mb >> 1) + (nb >> 1)) + 4 * (2 * (mb & 1) + (nb & 1))


def consumer_addr_setup(a, btype):
    a(f"""
    v_and_b32 v60, 15, v0
    v_bfe_u32 v61, v0, 4, 2
    v_lshrrev_b32 v63, 1, v60
    s_lshl_b32 s40, s{S_WM}, 6
    v_add_u32 v17, s40, v60
    v_lshlrev_b32 v17, 7, v17
    """)
    for js in range(2):
        a(f"v_add_u32 v18, {4*js}, v61")
        a("v_xor_b32 v18, v18, v63")
        a(f"v_lshl_add_u32 v{V_AB+js}, v18, 4, v17")
    if btype == "NK":
        a(f"""
        s_mul_i32 s40, s{S_WN}, 96
        v_add_u32 v17, s40, v60
        v_lshlrev_b32 v17, 7, v17
        v_add_u32 v17, {LDS_B}, v17
        """)
        for js in range(2):
            a(f"v_add_u32 v18, {4*js}, v61")
            a("v_xor_b32 v18, v18, v63")
            a(f"v_lshl_add_u32 v{V_BB+js}, v18, 4, v17")
    else:
        a(f"""
        v_lshrrev_b32 v18, 2, v60
        v_lshl_add_u32 v18, v61, 3, v18
        v_mul_u32_u24 v18, 384, v18
        v_add_u32 v18, {LDS_B}, v18
        v_and_b32 v19, 1, v60
        v_lshl_add_u32 v18, v19, 3, v18
        v_lshrrev_b32 v19, 3, v60
        v_lshlrev_b32 v19, 2, v19
        v_and_b32 v62, 1, v61
        v_lshl_or_b32 v19, v62, 1, v19
        v_bfe_u32 v62, v60, 1, 1
        s_mul_i32 s40, s{S_WN}, 12
        """)
        for nb in range(6):
            a(f"s_add_u32 s41, s40, {2*nb}")
            a("v_add_u32 v17, s41, v62")
            a("v_xor_b32 v17, v17, v19")
            a(f"v_lshl_add_u32 v{V_BB+nb}, v17, 4, v18")


def rd_a(mb, js):
    d = FA + 4 * mb
    return [(f"A{mb}", f"ds_read_b128 v[{d}:{d+3}], v{V_AA+js} offset:{2048*mb}")]


def rd_b(btype, nb, js):
    d = FB + 4 * nb
    if btype == "NK":
        return [(f"B{nb}", f"ds_read_b128 v[{d}:{d+3}], v{V_BA+js} offset:{2048*nb}")]
    return [(f"B{nb}", f"ds_read_b64_tr_b16 v[{d}:{d+1}], v{V_BA+nb} offset:{32*js*384}"),
            (f"B{nb}", f"ds_read_b64_tr_b16 v[{d+2}:{d+3}], v{V_BA+nb} offset:{(32*js+4)*384}")]


def half(a, trk, btype, h, js_next_for_h1, js_cur):
    if h == 0:
        pend = [r for nb in (3, 4, 5) for r in rd_b(btype, nb, js_cur)]
    else:
        pend = [r for nb in (0, 1, 2) for r in rd_b(btype, nb, js_next_for_h1)]
    k = 0
    for mb in range(4):
        for nb in range(3 * h, 3 * h + 3):
            trk.need([f"A{mb}", f"B{nb}"])
            c = acc_reg(mb, nb)
            a(f"v_mfma_f32_16x16x32_bf16 v[{c}:{c+3}], v[{FB+4*nb}:{FB+4*nb+3}], v[{FA+4*mb}:{FA+4*mb+3}], v[{c}:{c+3}]")
            if pend:
                t, ins = pend.pop(0)
                trk.issue(t, ins)
            k += 1
        if h == 1:
            for t, ins in rd_a(mb, js_next_for_h1):
                trk.issue(t, ins)
    assert not pend


def cons_loop(a, pfx, btype, nsteps, t0):
    nb_ = 2 if btype == "NK" else 6
    sl = t0 % NS
    a(f"s_mov_b32 s44, {sl*SA}")
    a(f"s_mov_b32 s45, {sl*SB}")
    a("s_mov_b32 s46, 0")
    for j in range(2):
        a(f"v_add_u32 v{V_AA+j}, {sl*SA}, v{V_AB+j}")
    for j in range(nb_):
        a(f"v_add_u32 v{V_BA+j}, {sl*SB}, v{V_BB+j}")
    trk = LgkmTracker(a)
    pend = [r for nb in (0, 1, 2) for r in rd_b(btype, nb, 0)]
    order = []
    for mb in range(4):
        for nb in range(3):
            if pend:
                order.append(pend.pop(0))
        order += rd_a(mb, 0)
    for t, ins in order:
        trk.issue(t, ins)
    a.label(f"{pfx}_loop")
    entry_state = list(trk.out)
    half(a, trk, btype, 0, None, 0)
    half(a, trk, btype, 1, 1, 0)
    half(a, trk, btype, 0, None, 1)
    a(f"""
    s_add_u32 s44, s44, {SA}
    s_add_u32 s45, s45, {SB}
    s_cmp_ge_u32 s44, {SA*NS}
    s_cselect_b32 s44, 0, s44
    s_cselect_b32 s45, 0, s45
    """)
    trk.drain()
    for j in range(2):
        a(f"v_add_u32 v{V_AA+j}, s44, v{V_AB+j}")
    for j in range(nb_):
        a(f"v_add_u32 v{V_BA+j}, s45, v{V_BB+j}")
    a("s_barrier")
    half(a, trk, btype, 1, 0, 1)
    assert trk.out == entry_state, (trk.out, entry_state)
    a(f"""
    s_add_u32 s46, s46, 1
    s_cmp_lt_u32 s46, {nsteps}
    s_cbranch_scc1 {pfx}_loop
    s_waitcnt lgkmcnt(0)
    s_nop 15
    """)


def voff_ntype(a, stride, vb):
    for p in range(384):
        assert (p * 2731) >> 16 == p // 24
    a("v_and_b32 v60, 63, v0")
    for b in range(6):
        a(f"""
        v_add_u32 v61, {64*b}, v60
        v_mul_u32_u24 v62, 2731, v61
        v_lshrrev_b32 v62, 16, v62
        v_mul_u32_u24 v63, 24, v62
        v_sub_u32 v61, v61, v63
        v_and_b32 v63, 2, v62
        v_lshlrev_b32 v63, 1, v63
        v_xor_b32 v61, v61, v63
        v_lshrrev_b32 v63, 2, v62
        v_and_b32 v63, 2, v63
        v_xor_b32 v61, v61, v63
        v_mul_u32_u24 v62, {stride}, v62
        v_lshl_add_u32 v{vb+b}, v61, 4, v62
        """)


def zero_acc(a):
    for i in range(96):
        a(f"v_mov_b32 v{ACC+i}, 0")


def loader_loop(a, pfx, L, slot_bytes, ring_base, issue_fn, first_extra_barrier, hold=None):
    a("s_mov_b32 s50, 0")
    a(f"s_mov_b32 s51, {ring_base}")
    a(f"s_mov_b32 s52, {-NS}")
    a.label(f"{pfx}_loop")
    a("s_cmp_lt_i32 s52, -1")
    a(f"s_cbranch_scc1 {pfx}_iss0")
    if first_extra_barrier:
        a("s_cmp_lg_i32 s52, -1")
        a(f"s_cbranch_scc1 {pfx}_nx")
        a("s_barrier")
        a.label(f"{pfx}_nx")
    a("s_sub_i32 s53, s50, s52")
    for c in range(NS - 2, 0, -1):
        a(f"s_cmp_ge_i32 s53, {c+2}")
        a(f"s_cbranch_scc1 {pfx}_w{c}")
    a("s_waitcnt vmcnt(0)")
    a(f"s_branch {pfx}_bar")
    for c in range(1, NS - 1):
        a.label(f"{pfx}_w{c}")
        a(f"s_waitcnt vmcnt({c*L})")
        if c != NS - 2:
            a(f"s_branch {pfx}_bar")
    a.label(f"{pfx}_bar")
    a("s_barrier")
    a.label(f"{pfx}_iss0")
    a(f"s_add_i32 s43, s52, {NS}")
    if hold:
        a(f"s_cmp_ge_i32 s52, {hold[0]}")
        a(f"s_cselect_b32 s42, {hold[2]}, s43")
        a(f"s_cmp_le_i32 s52, {hold[1]}")
        a("s_cselect_b32 s43, s42, s43")
    a(f"s_sub_u32 s42, s{S_NT}, 1")
    a("s_min_i32 s43, s43, s42")
    a.label(f"{pfx}_iss")
    a("s_cmp_gt_i32 s50, s43")
    a(f"s_cbranch_scc1 {pfx}_skip")
    issue_fn()
    a("s_add_u32 s50, s50, 1")
    a(f"s_add_u32 s51, s51, {slot_bytes}")
    a(f"s_cmp_ge_u32 s51, {ring_base + NS*slot_bytes}")
    a(f"s_cselect_b32 s51, {ring_base}, s51")
    a(f"s_branch {pfx}_iss")
    a.label(f"{pfx}_skip")
    a(f"""
    s_add_i32 s52, s52, 1
    s_cmp_lt_i32 s52, s{S_NT}
    s_cbranch_scc1 {pfx}_loop
    s_endpgm
    """)


def issue_k(a, nq, stride, srdr, ve, flags=""):
    for q in range(nq):
        a(f"s_add_u32 m0, s58, {q*1024}")
        a(f"s_add_u32 s54, s57, {q*8*stride}")
        a(f"buffer_load_dwordx4 v{ve+1 if q & 1 else ve}, s[{srdr}:{srdr+3}], s54 offen {flags} lds")


def issue_n(a, stride, srdr, vb, flags=""):
    for aa in range(2):
        for b in range(6):
            a(f"s_add_u32 m0, s58, {(6*aa+b)*1024}")
            a(f"s_add_u32 s54, s57, {aa*16*stride}")
            a(f"buffer_load_dwordx4 v{vb+b}, s[{srdr}:{srdr+3}], s54 offen {flags} lds")


def g2_kk(a):
    a(f"""
    s_sub_u32 s62, s50, 18
    s_mul_i32 s63, s{S_SPLIT}, 13
    s_cmp_lt_u32 s62, s{S_NF}
    s_cbranch_scc1 1f
    s_cmp_lt_u32 s62, s{S_NR}
    s_cbranch_scc1 2f
    s_sub_u32 s62, s62, s{S_NR}
    s_mul_i32 s63, s{S_SPLIT}, 9
    s_add_u32 s63, s63, 91
    s_branch 1f
    """)
    a.lines.append("2:")
    a(f"""
    s_sub_u32 s62, s62, s{S_NF}
    s_mul_i32 s63, s{S_SPLIT}, 5
    s_add_u32 s63, s63, 64
    s_cmp_eq_u32 s{S_SPLIT}, 4
    s_addc_u32 s63, s63, 0
    """)
    a.lines.append("1:")
    a("s_add_u32 s62, s62, s63")


def ws_touch_setup(a):
    a(f"""
    v_and_b32 v162, 63, v0
    s_mul_i32 s40, s{S_NT2}, 43
    v_add_u32 v163, s40, v162
    s_lshl_b32 s40, s{S_MT2}, 7
    v_add_u32 v161, s40, v163
    v_lshlrev_b32 v161, 12, v161
    v_mov_b32 v164, 0x7f000000
    v_cmp_gt_u32 vcc, 43, v162
    s_nop 1
    v_cndmask_b32 v161, v164, v161, vcc
    v_cmp_gt_u32 vcc, 128, v163
    s_nop 1
    v_cndmask_b32 v161, v164, v161, vcc
    s_mov_b32 s{SRD_C+2}, {PANEL}
    s_mov_b32 s{SRD_C+3}, 0x00020000
    """)


def ws_touch(a, j, wave):
    lb = a.new("tch")
    a(f"""
    s_cmp_lg_u32 s3, {wave}
    s_cbranch_scc1 {lb}
    s_cmp_le_u32 s{S_NF}, {j}
    s_cbranch_scc1 {lb}
    s_mul_i32 s40, s{S_SPLIT}, 13
    s_add_u32 s40, s40, {j}
    s_cmp_lt_u32 s40, 32
    s_cselect_b32 s{SRD_C}, s{S_WSRE}, s{S_WSIM}
    s_cselect_b32 s{SRD_C+1}, s{S_WSRE+1}, s{S_WSIM+1}
    s_and_b32 s{SRD_C+1}, s{SRD_C+1}, 0xffff
    s_and_b32 s40, s40, 31
    s_lshl_b32 s40, s40, 7
    buffer_load_dword v160, v161, s[{SRD_C}:{SRD_C+3}], s40 offen
    """)
    a.label(lb)


def w2_touch(a):
    for p in range(64):
        assert (p * 5462) >> 16 == p // 12 and ((p % 12) * 21846) >> 16 == (p % 12) // 3
    lb = a.new("w2t")
    srd(a, SRD_C, S_W2, W2_BYTES)
    a(f"""
    s_cmp_ge_u32 s3, 7
    s_cbranch_scc1 {lb}
    v_and_b32 v162, 63, v0
    v_mul_u32_u24 v163, 5462, v162
    v_lshrrev_b32 v163, 16, v163
    v_mul_u32_u24 v164, 12, v163
    v_sub_u32 v164, v162, v164
    v_mul_u32_u24 v165, 21846, v164
    v_lshrrev_b32 v165, 16, v165
    v_mul_u32_u24 v166, 3, v165
    v_sub_u32 v166, v164, v166
    s_sub_u32 s40, s3, 4
    s_mul_i32 s40, s40, 5
    v_add_u32 v163, s40, v163
    s_sub_u32 s44, s{S_N2}, s{S_NF}
    v_cmp_gt_u32 vcc, s44, v163
    v_cmp_gt_u32 s[44:45], 60, v162
    s_mul_i32 s40, s{S_SPLIT}, 14
    s_cmp_eq_u32 s{S_SPLIT}, 4
    s_addc_u32 s40, s40, 0
    s_and_b64 vcc, vcc, s[44:45]
    v_add_u32 v163, s40, v163
    v_lshlrev_b32 v163, 6, v163
    s_lshl_b32 s40, s{S_MT2}, 2
    v_add3_u32 v163, v163, v165, s40
    v_mul_u32_u24 v163, 1152, v163
    v_lshl_add_u32 v163, v166, 7, v163
    v_mov_b32 v164, 0x7f000000
    v_cndmask_b32 v163, v164, v163, vcc
    s_mul_i32 s40, s{S_NT2}, 384
    buffer_load_dword v160, v163, s[{SRD_C}:{SRD_C+3}], s40 offen
    """)
    a.label(lb)


def gen_kernel(a):
    name = NAME + "_kernel"
    a.lines.append(f".globl {name}")
    a.lines.append(".p2align 8")
    a.lines.append(f".type {name},@function")
    a.label(name)
    a(f"""
    s_cmp_ge_u32 s2, {NWG}
    s_cbranch_scc1 K_done
    """)
    stamp(a, 0)
    a(f"""
    s_load_dwordx8 s[4:11], s[0:1], 0
    s_load_dwordx2 s[12:13], s[0:1], 32
    s_load_dwordx4 s[16:19], s[0:1], 48
    s_load_dwordx4 s[20:23], s[0:1], 64
    s_load_dwordx2 s[24:25], s[0:1], 80
    v_lshrrev_b32 v1, 6, v0
    s_and_b32 s33, s2, 7
    s_mul_i32 s33, s33, 30
    s_lshr_b32 s34, s2, 3
    v_readfirstlane_b32 s3, v1
    s_add_u32 s{S_L}, s33, s34
    s_lshr_b32 s{S_NT1}, s{S_L}, 3
    s_and_b32 s{S_MT1}, s{S_L}, 7
    s_cmp_ge_u32 s{S_L}, 120
    s_cselect_b32 s40, 120, 0
    s_cselect_b32 s41, 8, 0
    s_sub_u32 s40, s{S_L}, s40
    s_lshr_b32 s{S_N1}, s40, 3
    s_and_b32 s{S_M}, s40, 7
    s_add_u32 s{S_M}, s{S_M}, s41
    s_mul_i32 s{S_SPLIT}, s{S_L}, 1366
    s_lshr_b32 s{S_SPLIT}, s{S_SPLIT}, 16
    s_mul_i32 s40, s{S_SPLIT}, 48
    s_sub_u32 s{S_TILE}, s{S_L}, s40
    s_mul_i32 s{S_MT2}, s{S_TILE}, 21846
    s_lshr_b32 s{S_MT2}, s{S_MT2}, 16
    s_mul_i32 s40, s{S_MT2}, 3
    s_sub_u32 s{S_NT2}, s{S_TILE}, s40
    s_cmp_eq_u32 s{S_SPLIT}, 4
    s_cselect_b32 s{S_NF}, 12, 13
    s_cmp_eq_u32 s{S_SPLIT}, 3
    s_cselect_b32 s{S_N2}, 28, 27
    s_add_u32 s{S_NT}, s{S_N2}, 18
    s_sub_u32 s{S_NR}, s{S_N2}, 9
    s_waitcnt lgkmcnt(0)
    """)
    srd(a, SRD_DBG, S_DBG, 256)
    srd_off(a, SRD_F, S_WS, WS_F, F_BYTES)
    a(f"""
    s_or_b32 s40, s2, s3
    s_cmp_lg_u32 s40, 0
    s_cbranch_scc1 K_nopub
    s_memrealtime s[40:41]
    s_waitcnt lgkmcnt(0)
    s_or_b32 s40, s40, 1
    v_mov_b32 v60, s40
    v_mov_b32 v61, s41
    v_mov_b32 v63, 0
    s_mov_b64 exec, 1
    buffer_store_dwordx2 v[60:61], v63, s[{SRD_DBG}:{SRD_DBG+3}], 0 offen sc1
    s_mov_b64 exec, -1
    """)
    a.label("K_nopub")
    a("s_cmp_ge_u32 s3, 8")
    a("s_cbranch_scc1 K_loader")
    a("s_and_b32 s40, s3, 3")
    a(f"s_lshr_b32 s{S_WM}, s40, 1")
    a(f"s_and_b32 s{S_WN}, s40, 1")
    a("s_cmp_ge_u32 s3, 4")
    a("s_cbranch_scc1 K_g1")
    a("s_cmp_ge_u32 s3, 3")
    a("s_cbranch_scc1 K_lnskip")
    ln_phase(a)
    a.label("K_lnskip")
    a("s_barrier")
    a("s_cmp_lg_u32 s3, 0")
    a("s_cbranch_scc1 K_lnsig")
    get_nonce(a)
    a(f"s_lshl_b32 s41, s{S_MT1}, 8")
    a(f"s_lshl_b32 s40, s{S_NT1}, 3")
    a("s_add_u32 s41, s41, s40")
    a(f"s_add_u32 s41, s41, {C_LN*256}")
    signal(a, 41)
    a.label("K_lnsig")
    stamp(a, 1)
    zero_acc(a)
    a(f"s_cmp_ge_u32 s{S_N1}, 6")
    a("s_cbranch_scc1 T1_KN")
    consumer_addr_setup(a, "NK")
    a("s_barrier")
    stamp(a, 2)
    cons_loop(a, "T1nk", "NK", 9, 0)
    a("s_branch T1_done")
    a.label("T1_KN")
    consumer_addr_setup(a, "KN")
    a("s_barrier")
    stamp(a, 2)
    cons_loop(a, "T1kn", "KN", 9, 0)
    a.label("T1_done")
    stamp(a, 3)
    a(f"s_mov_b32 s46, s{S_N1}")
    a("s_branch K_epi")
    a.label("K_g1")
    if WTOUCH == 2:
        a("s_barrier")
    if WTOUCH:
        srd(a, SRD_C, S_W1, W1_BYTES)
        a(f"""
        v_subrev_u32 v56, 256, v0
        v_mul_u32_u24 v57, 21846, v56
        v_lshrrev_b32 v57, 16, v57
        v_mul_u32_u24 v59, 3, v57
        v_sub_u32 v59, v56, v59
        s_mul_i32 s40, s{S_M}, 36
        v_add_u32 v57, s40, v57
        v_mul_u32_u24 v57, 9216, v57
        v_lshl_add_u32 v57, v59, 7, v57
        v_mov_b32 v59, 0x7f000000
        v_cmp_gt_u32 vcc, 108, v56
        s_add_u32 s40, s{S_N1}, 9
        s_mul_i32 s40, s40, 384
        v_cndmask_b32 v57, v59, v57, vcc
        buffer_load_dword v160, v57, s[{SRD_C}:{SRD_C+3}], s40 offen
        s_cmp_lt_u32 s{S_N1}, 6
        s_cbranch_scc1 K_wt2
        s_sub_u32 s40, s{S_N1}, 6
        s_mul_i32 s40, s40, 384
        buffer_load_dword v160, v57, s[{SRD_C}:{SRD_C+3}], s40 offen
        s_branch K_wt3
        """)
        a.label("K_wt2")
        a(f"""
        s_cmp_ge_u32 s{S_N1}, 3
        s_cselect_b32 s60, s{S_WDIM}, s{S_WDRE}
        s_cselect_b32 s61, s{S_WDIM+1}, s{S_WDRE+1}
        s_cselect_b32 s40, 3, 0
        s_sub_u32 s40, s{S_N1}, s40
        s_mul_i32 s40, s40, 192
        s_mul_i32 s41, s{S_M}, 12
        s_add_u32 s40, s40, s41
        s_mul_i32 s40, s40, 1152
        v_lshlrev_b32 v57, 7, v56
        v_cndmask_b32 v57, v59, v57, vcc
        """)
        srd(a, SRD_C, 60, WD_BYTES)
        a(f"buffer_load_dword v160, v57, s[{SRD_C}:{SRD_C+3}], s40 offen")
        a.label("K_wt3")
    if WTOUCH != 2:
        a("s_barrier")
    zero_acc(a)
    consumer_addr_setup(a, "KN")
    a("s_barrier")
    if TOUCH:
        ws_touch_setup(a)
        sched = {1: [0], 2: [1], 4: [2], 5: [3], 7: [4], 8: [5]}
        for t in range(9):
            for j in sched.get(t, []):
                ws_touch(a, j, 4 + (j & 3))
            a("s_barrier")
    else:
        for _ in range(9):
            a("s_barrier")
    cons_loop(a, "T2", "KN", 9, 9)
    if TOUCH:
        w2_touch(a)
    a(f"s_add_u32 s46, s{S_N1}, 15")
    a.label("K_epi")
    srd_off(a, SRD_A, S_WS, WS_AB, AB_BYTES)
    srd_off(a, SRD_B, S_WS, WS_H, 3 * PANEL)
    a(f"""
    s_lshl_b32 s49, s{S_M}, 7
    s_cmp_ge_u32 s46, 6
    s_cbranch_scc1 E_h
    s_mov_b32 s43, 0x80008000
    s_cmp_ge_u32 s46, 3
    s_cselect_b32 s42, 0x80008000, 0
    s_cselect_b32 s41, 2048, 0
    s_cselect_b32 s40, 3, 0
    s_add_u32 s49, s49, s41
    s_sub_u32 s40, s46, s40
    s_mul_i32 s48, s40, 192
    s_mov_b32 s47, 1152
    s_lshl_b32 s41, s46, 8
    s_lshl_b32 s40, s{S_M}, 3
    s_add_u32 s41, s41, s40
    s_add_u32 s41, s41, {C_AB*256}
    s_branch E_go
    """)
    a.label("E_h")
    a(f"""
    s_mov_b32 s42, 0
    s_mov_b32 s43, 0
    s_mov_b32 s{SRD_A}, s{SRD_B}
    s_mov_b32 s{SRD_A+1}, s{SRD_B+1}
    s_mov_b32 s{SRD_A+2}, s{SRD_B+2}
    s_sub_u32 s40, s46, 6
    s_mul_i32 s48, s40, 192
    s_mov_b32 s47, 4096
    s_lshl_b32 s41, s{S_M}, 8
    s_lshl_b32 s40, s40, 3
    s_add_u32 s41, s41, s40
    s_add_u32 s41, s41, {C_H*256}
    """)
    a.label("E_go")
    a(f"""
    s_lshl_b32 s40, s{S_WM}, 6
    s_add_u32 s49, s49, s40
    s_mul_i32 s40, s{S_WN}, 96
    s_add_u32 s48, s48, s40
    v_and_b32 v60, 15, v0
    v_add_u32 v60, s49, v60
    v_mul_lo_u32 v60, v60, s47
    v_bfe_u32 v61, v0, 4, 1
    v_bfe_u32 v62, v0, 5, 1
    v_lshlrev_b32 v61, 4, v61
    v_lshl_add_u32 v61, v62, 3, v61
    v_add_u32 v61, s48, v61
    """)
    for ni in range(3):
        a(f"""
        v_add_u32 v62, {32*ni}, v61
        v_lshrrev_b32 v63, 11, v62
        v_lshlrev_b32 v63, 23, v63
        v_and_b32 v62, 2047, v62
        v_add_u32 v63, v60, v63
        v_lshl_add_u32 v{2+ni}, v62, 1, v63
        """)
    for mi in range(2):
        a(f"s_mul_i32 s44, s47, {32*mi}")
        a(f"s_mul_i32 s45, s47, {32*mi+16}")
        for ni in range(3):
            c = ACC + 16 * (3 * mi + ni)
            t = 20 + 8 * (ni & 1)
            for r in range(8):
                a(f"v_cvt_pk_bf16_f32 v{t+r}, v{c+2*r}, v{c+2*r+1}")
            for r in range(8):
                a(f"v_pk_max_i16 v{t+r}, v{t+r}, s43")
            for r in range(8):
                a(f"v_xor_b32 v{t+r}, s42, v{t+r}")
            a("s_nop 1")
            a(f"v_permlane16_swap_b32 v{t}, v{t+2}")
            a(f"v_permlane16_swap_b32 v{t+1}, v{t+3}")
            a(f"v_permlane16_swap_b32 v{t+4}, v{t+6}")
            a(f"v_permlane16_swap_b32 v{t+5}, v{t+7}")
            a(f"buffer_store_dwordx4 v[{t}:{t+3}], v{2+ni}, s[{SRD_A}:{SRD_A+3}], s44 offen sc1")
            a(f"buffer_store_dwordx4 v[{t+4}:{t+7}], v{2+ni}, s[{SRD_A}:{SRD_A+3}], s45 offen sc1")
        a("s_barrier")
    a(f"""
    s_mov_b32 s44, 5
    s_cmp_lt_u32 s46, 6
    s_cselect_b32 s44, 2, s44
    s_cmp_ge_u32 s3, 4
    s_cselect_b32 s44, {NB1}, s44
    s_sub_u32 s45, 6, s44
    """)
    a.label("E_w1")
    a("s_barrier")
    a("s_sub_u32 s44, s44, 1")
    a("s_cmp_lg_u32 s44, 0")
    a("s_cbranch_scc1 E_w1")
    a("s_waitcnt vmcnt(0)")
    a("s_barrier")
    a("s_and_b32 s40, s3, 3")
    a("s_cmp_lg_u32 s40, 0")
    a("s_cbranch_scc1 E_sig")
    a("s_cmp_eq_u32 s3, 0")
    a("s_cbranch_scc1 E_sig0")
    get_nonce(a)
    a.label("E_sig0")
    signal(a, 41)
    a.label("E_sig")
    a("s_cmp_lt_u32 s3, 4")
    a("s_cbranch_scc1 E_g0")
    a("s_endpgm")
    a.label("E_g0")
    if TOUCH:
        ws_touch_setup(a)
        for j in range(6, 13):
            ws_touch(a, j, (j + 3) & 3)
    zero_acc(a)
    consumer_addr_setup(a, "KN")
    stamp(a, 4)
    a.label("E_w2")
    a("s_barrier")
    a("s_sub_u32 s45, s45, 1")
    a("s_cmp_lg_u32 s45, 0")
    a("s_cbranch_scc1 E_w2")
    stamp(a, 5)
    cons_loop(a, "G2c", "KN", f"s{S_N2}", 18)
    stamp(a, 6)
    srd_off(a, SRD_A, S_WS, WS_P, P_BYTES)
    a(f"""
    s_mul_i32 s42, s{S_L}, {P_TILE}
    s_mul_i32 s41, s3, {PW}
    s_add_u32 s42, s42, s41
    v_and_b32 v7, 63, v0
    v_lshlrev_b32 v7, 4, v7
    s_add_u32 s43, s3, 5
    s_sub_u32 s43, s43, s{S_SPLIT}
    """)
    for i in range(6):
        sk = a.new("pst")
        a(f"s_add_u32 s40, s43, {i}")
        a("s_cmp_eq_u32 s40, 5")
        a(f"s_cbranch_scc1 {sk}")
        a("s_cmp_eq_u32 s40, 10")
        a(f"s_cbranch_scc1 {sk}")
        a(f"s_add_u32 s41, s42, {i*PB}")
        t = 20 + 8 * (i & 1)
        if PBF16:
            for r in range(8):
                a(f"v_cvt_pk_bf16_f32 v{t+r}, v{ACC+16*i+2*r}, v{ACC+16*i+2*r+1}")
            a(f"buffer_store_dwordx4 v[{t}:{t+3}], v7, s[{SRD_A}:{SRD_A+3}], s41 offen sc1")
            a(f"buffer_store_dwordx4 v[{t+4}:{t+7}], v7, s[{SRD_A}:{SRD_A+3}], s41 offen offset:1024 sc1")
        else:
            for q in range(4):
                c = ACC + 16 * i + 4 * q
                a(f"buffer_store_dwordx4 v[{c}:{c+3}], v7, s[{SRD_A}:{SRD_A+3}], s41 offen offset:{q*1024} sc1")
        a.label(sk)
    a("s_waitcnt vmcnt(0)")
    a("s_barrier")
    a(f"""
    s_lshl_b32 s41, s{S_TILE}, 8
    s_add_u32 s41, s41, {C_P*256}
    s_lshl_b32 s47, s{S_SPLIT}, 3
    s_add_u32 s47, s47, s41
    s_cmp_lg_u32 s3, 0
    s_cbranch_scc1 K_psig
    """)
    signal(a, 47)
    a("s_branch K_psig2")
    a.label("K_psig")
    get_nonce(a)
    a.label("K_psig2")
    srd(a, SRD_B, S_X, XN_BYTES)
    srd(a, SRD_C, S_OUT, XN_BYTES)
    a(f"""
    s_lshl_b32 s49, s{S_MT2}, 7
    s_lshl_b32 s40, s{S_WM}, 6
    s_add_u32 s49, s49, s40
    s_mul_i32 s48, s{S_NT2}, 384
    s_mul_i32 s40, s{S_WN}, 192
    s_add_u32 s48, s48, s40
    v_and_b32 v3, 15, v0
    v_bfe_u32 v4, v0, 4, 2
    v_add_u32 v3, s49, v3
    v_mul_u32_u24 v3, 1152, v3
    v_add_u32 v3, s48, v3
    v_lshl_add_u32 v5, v4, 3, v3
    v_bfe_u32 v2, v0, 4, 1
    v_lshl_add_u32 v6, v2, 5, v3
    v_bfe_u32 v2, v0, 5, 1
    v_lshl_add_u32 v6, v2, 4, v6
    s_mul_i32 s42, s{S_TILE}, {P_TILE}
    s_mul_i32 s40, s3, {PW}
    s_add_u32 s42, s42, s40
    s_mov_b32 s46, 5
    """)
    poll(a, 41, 0x1f)
    stamp(a, 7)
    a.label("F_loop")
    a("s_sub_i32 s45, s46, s43")
    a("s_cmp_lt_i32 s45, 0")
    a("s_cbranch_scc1 F_next")
    a("s_cmp_gt_i32 s45, 5")
    a("s_cbranch_scc1 F_next")
    a(f"""
    s_cmp_ge_u32 s45, 3
    s_cselect_b32 s40, 3, 0
    s_cselect_b32 s47, {32*1152}, 0
    s_sub_u32 s40, s45, s40
    s_lshl_b32 s40, s40, 6
    s_add_u32 s47, s47, s40
    s_mul_i32 s48, s45, {PB}
    s_add_u32 s48, s48, s42
    """)
    XR, PR, W = 160, 8, 40
    a(f"s_add_u32 s49, s47, {16*1152}")
    for gq in range(4):
        a(f"buffer_load_dwordx2 v[{XR+2*gq}:{XR+1+2*gq}], v5, s[{SRD_B}:{SRD_B+3}], s{49 if gq >= 2 else 47} offen offset:{(gq&1)*32}")
    def src_addr(d):
        a(f"""
        s_add_u32 s44, s{S_SPLIT}, {d}
        s_sub_u32 s40, s44, 5
        s_cmp_ge_u32 s44, 5
        s_cselect_b32 s44, s40, s44
        s_mul_i32 s44, s44, {48*P_TILE}
        s_add_u32 s44, s44, s48
        """)

    def movs():
        for i in range(6):
            a(f"s_cmp_lg_u32 s45, {i}")
            a(f"s_cbranch_scc1 F_m{i}")
            for r in range(16):
                a(f"v_mov_b32 v{W+r}, v{ACC+16*i+r}")
            a.label(f"F_m{i}")
    if PBF16:
        for d in range(1, 5):
            r0 = PR + 8 * (d - 1)
            src_addr(d)
            a(f"buffer_load_dwordx4 v[{r0}:{r0+3}], v7, s[{SRD_A}:{SRD_A+3}], s44 offen sc1")
            a(f"buffer_load_dwordx4 v[{r0+4}:{r0+7}], v7, s[{SRD_A}:{SRD_A+3}], s44 offen offset:1024 sc1")
        movs()
        for d in range(1, 5):
            a(f"s_waitcnt vmcnt({2*(4-d)})")
            for r in range(8):
                src = PR + 8 * (d - 1) + r
                a(f"""
                v_lshlrev_b32 v56, 16, v{src}
                v_and_b32 v57, 0xffff0000, v{src}
                v_add_f32 v{W+2*r}, v{W+2*r}, v56
                v_add_f32 v{W+2*r+1}, v{W+2*r+1}, v57
                """)
    else:
        for half in range(2):
            for dd in range(2):
                src_addr(1 + 2 * half + dd)
                for q in range(4):
                    r0 = PR + 16 * dd + 4 * q
                    a(f"buffer_load_dwordx4 v[{r0}:{r0+3}], v7, s[{SRD_A}:{SRD_A+3}], s44 offen offset:{q*1024} sc1")
            if half == 0:
                movs()
            for dd in range(2):
                a(f"s_waitcnt vmcnt({4 if dd == 0 else 0})")
                for r in range(16):
                    a(f"v_add_f32 v{W+r}, v{W+r}, v{PR+16*dd+r}")
    for gq in range(4):
        c = W + 4 * gq
        a(f"""
        v_lshlrev_b32 v56, 16, v{XR+2*gq}
        v_and_b32 v57, 0xffff0000, v{XR+2*gq}
        v_lshlrev_b32 v58, 16, v{XR+1+2*gq}
        v_and_b32 v59, 0xffff0000, v{XR+1+2*gq}
        v_add_f32 v{c}, v{c}, v56
        v_add_f32 v{c+1}, v{c+1}, v57
        v_add_f32 v{c+2}, v{c+2}, v58
        v_add_f32 v{c+3}, v{c+3}, v59
        v_cvt_pk_bf16_f32 v{8+2*gq}, v{c}, v{c+1}
        v_cvt_pk_bf16_f32 v{9+2*gq}, v{c+2}, v{c+3}
        """)
    a(f"""
    s_nop 1
    v_permlane16_swap_b32 v8, v10
    v_permlane16_swap_b32 v9, v11
    v_permlane16_swap_b32 v12, v14
    v_permlane16_swap_b32 v13, v15
    buffer_store_dwordx4 v[8:11], v6, s[{SRD_C}:{SRD_C+3}], s47 offen
    buffer_store_dwordx4 v[12:15], v6, s[{SRD_C}:{SRD_C+3}], s49 offen
    s_nop 1
    """)
    a.label("F_next")
    a("s_add_u32 s46, s46, 5")
    a("s_cmp_le_u32 s46, 10")
    a("s_cbranch_scc1 F_loop")
    if STAMP:
        a("s_waitcnt vmcnt(0)")
    flush_stamps(a, 9)
    a("s_endpgm")

    a.label("K_loader")
    a("s_cmp_ge_u32 s3, 10")
    a("s_cbranch_scc1 K_loadB")
    srd_off(a, SRD_B, S_WS, WS_XN, XN_BYTES)
    voff_ktype(a, 1152, 1, 2)
    voff_ktype(a, 4096, 3, 4)
    a(f"""
    s_sub_u32 s59, s3, 8
    s_lshl_b32 s41, s{S_M}, 7
    s_lshl_b32 s56, s59, 6
    s_add_u32 s41, s41, s56
    s_mul_i32 s55, s41, 1152
    s_lshl_b32 s41, s{S_MT2}, 7
    s_add_u32 s41, s41, s56
    s_lshl_b32 s49, s41, 12
    s_lshl_b32 s56, s59, 13
    s_add_u32 s60, s{S_WS}, {WS_H}
    s_addc_u32 s61, s{S_WS+1}, 0
    s_mov_b32 s{SRD_A+2}, {PANEL}
    s_mov_b32 s{SRD_A+3}, 0x00020000
    s_barrier
    s_lshr_b32 s41, s{S_M}, 1
    s_lshl_b32 s41, s41, 8
    s_add_u32 s41, s41, {C_LN*256}
    """)
    get_nonce(a)
    poll(a, 41, 0x3fffffff)
    a(f"""
    s_mov_b32 s48, 0x3
    s_cmp_eq_u32 s{S_SPLIT}, 1
    s_cselect_b32 s48, 0xe, s48
    s_cmp_eq_u32 s{S_SPLIT}, 2
    s_cselect_b32 s48, 0x18, s48
    s_cmp_eq_u32 s{S_SPLIT}, 3
    s_cselect_b32 s48, 0x60, s48
    s_cmp_eq_u32 s{S_SPLIT}, 4
    s_cselect_b32 s48, 0x180, s48
    s_mul_i32 s46, s{S_SPLIT}, 3
    s_lshl_b32 s46, 0xe00, s46
    s_lshl_b32 s47, s{S_MT2}, 8
    s_add_u32 s47, s47, {C_H*256}
    """)

    def issueA():
        a("s_add_u32 s58, s51, s56")
        a("s_cmp_ge_u32 s50, 18")
        a("s_cbranch_scc1 LA_g2")
        a("""
        s_sub_u32 s62, s50, 9
        s_cmp_ge_u32 s50, 9
        s_cselect_b32 s62, s62, s50
        s_lshl_b32 s57, s62, 7
        s_add_u32 s57, s57, s55
        """)
        issue_k(a, 8, 1152, SRD_B, 1, LDF)
        a("s_branch LA_end")
        a.label("LA_g2")
        a(f"s_sub_u32 s62, s50, 18")
        a(f"s_cmp_lg_u32 s62, s{S_NF}")
        a("s_cbranch_scc1 LA_np")
        poll(a, 47, "s48")
        a.label("LA_np")
        a(f"s_sub_u32 s62, s50, 18")
        a(f"s_cmp_lg_u32 s62, s{S_NR}")
        a("s_cbranch_scc1 LA_np2")
        poll(a, 47, "s46")
        a.label("LA_np2")
        g2_kk(a)
        a(f"""
        s_lshr_b32 s63, s62, 5
        s_sub_u32 s41, s63, 2
        s_lshl_b32 s41, s41, 23
        s_add_u32 s{SRD_A}, s60, s41
        s_addc_u32 s{SRD_A+1}, s61, 0
        s_cmp_eq_u32 s63, 0
        s_cselect_b32 s{SRD_A}, s{S_WSRE}, s{SRD_A}
        s_cselect_b32 s{SRD_A+1}, s{S_WSRE+1}, s{SRD_A+1}
        s_cmp_eq_u32 s63, 1
        s_cselect_b32 s{SRD_A}, s{S_WSIM}, s{SRD_A}
        s_cselect_b32 s{SRD_A+1}, s{S_WSIM+1}, s{SRD_A+1}
        s_and_b32 s{SRD_A+1}, s{SRD_A+1}, 0xffff
        s_and_b32 s57, s62, 31
        s_lshl_b32 s57, s57, 7
        s_add_u32 s57, s57, s49
        """)
        issue_k(a, 8, 4096, SRD_A, 3, LDF)
        a.label("LA_end")
    loader_loop(a, "LA", 8, SA, 0, issueA, False)

    a.label("K_loadB")
    a(f"""
    s_sub_u32 s59, s3, 10
    s_cmp_ge_u32 s{S_N1}, 3
    s_cselect_b32 s60, s{S_WDIM}, s{S_WDRE}
    s_cselect_b32 s61, s{S_WDIM+1}, s{S_WDRE+1}
    """)
    srd(a, SRD_B, 60, WD_BYTES)
    srd(a, SRD_C, S_W1, W1_BYTES)
    voff_ktype(a, 1152, 1, 2)
    voff_ntype(a, 9216, 3)
    voff_ntype(a, 1152, 9)
    a(f"""
    s_mul_i32 s56, s59, {32*9216}
    s_add_u32 s41, s{S_N1}, 9
    s_mul_i32 s49, s41, 384
    s_add_u32 s49, s49, s56
    s_sub_u32 s41, s{S_N1}, 6
    s_mul_i32 s55, s41, 384
    s_add_u32 s55, s55, s56
    s_cmp_ge_u32 s{S_N1}, 6
    s_cbranch_scc1 LB_s1
    s_cmp_ge_u32 s{S_N1}, 3
    s_cselect_b32 s41, 3, 0
    s_sub_u32 s41, s{S_N1}, s41
    s_mul_i32 s41, s41, 192
    s_mul_i32 s56, s59, 96
    s_add_u32 s41, s41, s56
    s_mul_i32 s55, s41, 1152
    """)
    a.label("LB_s1")
    a(f"""
    s_mul_i32 s48, s{S_NT2}, 384
    s_mul_i32 s56, s59, {32*1152}
    s_add_u32 s48, s48, s56
    s_mul_i32 s56, s59, 12288
    s_add_u32 s60, s{S_WS}, {WS_AB}
    s_addc_u32 s61, s{S_WS+1}, 0
    s_mov_b32 s{SRD_A+3}, 0x00020000
    """)

    def issueB():
        a("s_add_u32 s58, s51, s56")
        a("s_cmp_ge_u32 s50, 18")
        a("s_cbranch_scc1 LB_g2")
        a("s_cmp_ge_u32 s50, 9")
        a("s_cbranch_scc1 LB_t2")
        a(f"s_cmp_ge_u32 s{S_N1}, 6")
        a("s_cbranch_scc1 LB_t1kn")
        a("s_lshl_b32 s57, s50, 7")
        a("s_add_u32 s57, s57, s55")
        issue_k(a, 12, 1152, SRD_B, 1)
        a("s_branch LB_end")
        a.label("LB_t1kn")
        a(f"s_mul_i32 s57, s50, {64*9216}")
        a("s_add_u32 s57, s57, s55")
        a("s_branch LB_kn")
        a.label("LB_t2")
        a("s_sub_u32 s62, s50, 9")
        a(f"s_mul_i32 s57, s62, {64*9216}")
        a("s_add_u32 s57, s57, s49")
        a.label("LB_kn")
        issue_n(a, 9216, SRD_C, 3)
        a("s_branch LB_end")
        a.label("LB_g2")
        a("s_cmp_lg_u32 s50, 18")
        a("s_cbranch_scc1 LB_np")
        get_nonce(a)
        a(f"s_cmp_ge_u32 s{S_SPLIT}, 3")
        a("s_cbranch_scc1 LB_p2")
        a(f"s_lshl_b32 s41, s{S_NT2}, 8")
        a(f"s_add_u32 s41, s41, {C_AB*256}")
        poll(a, 41, 0xffff)
        a.label("LB_p2")
        a(f"s_cmp_lt_u32 s{S_SPLIT}, 2")
        a("s_cbranch_scc1 LB_np")
        a(f"s_lshl_b32 s41, s{S_NT2}, 8")
        a(f"s_add_u32 s41, s41, {(C_AB+3)*256}")
        poll(a, 41, 0xffff)
        a.label("LB_np")
        g2_kk(a)
        a(f"""
        s_sub_u32 s63, s62, 64
        s_cmp_lt_u32 s62, 64
        s_cselect_b32 s63, s62, s63
        s_cselect_b32 s{SRD_A}, s60, s{S_W2}
        s_cselect_b32 s{SRD_A+1}, s61, s{S_W2+1}
        s_mov_b32 s{SRD_A+2}, {W2_BYTES}
        s_cselect_b32 s{SRD_A+2}, {AB_BYTES}, s{SRD_A+2}
        s_and_b32 s{SRD_A+1}, s{SRD_A+1}, 0xffff
        s_mul_i32 s57, s63, {64*1152}
        s_add_u32 s57, s57, s48
        """)
        issue_n(a, 1152, SRD_A, 9, LDF)
        a.label("LB_end")
    loader_loop(a, "LB", 12, SB, LDS_B, issueB, True, HOLD)
    a.label("K_done")
    a("s_endpgm")
    return name


def main():
    a = Asm()
    name = gen_kernel(a)
    head = f"; generated by gen4.py\n; @launch grid=({NWG},1,1) block=(768,1,1) lds={LDS_TOTAL}\n"
    head += '.amdgcn_target "amdgcn-amd-amdhsa--gfx950"\n.text\n'
    tail = f""".section .rodata,"a"
.p2align 6
.amdhsa_kernel {name}
  .amdhsa_next_free_vgpr 168
  .amdhsa_next_free_sgpr 102
  .amdhsa_accum_offset 168
  .amdhsa_group_segment_fixed_size 0
  .amdhsa_kernarg_size 88
  .amdhsa_user_sgpr_count 2
  .amdhsa_user_sgpr_kernarg_segment_ptr 1
  .amdhsa_system_sgpr_workgroup_id_x 1
  .amdhsa_float_denorm_mode_32 3
  .amdhsa_float_denorm_mode_16_64 3
.end_amdhsa_kernel
"""
    open(OUT, "w").write(head + a.text() + tail)


if __name__ == "__main__":
    main()
```

```python
import os
import gen2 as g
from gen2 import (Asm, srd, srd_off, stamp, flush_stamps, get_nonce, signal, poll, ln_phase, frag, reads_for,
                  LgkmTracker, substep, consumer_addr_setup, voff_ktype, voff_ntype,
                  S_X, S_WSRE, S_WSIM, S_WDRE, S_WDIM, S_W1, S_W2, S_OUT, S_DBG, S_WS,
                  S_SPLIT, S_TILE, S_MT2, S_NT2, SRD_DBG, S_L, S_NT1, S_MT1, S_WM, S_WN, SRD_A, SRD_B, SRD_C, SRD_F,
                  WS_XN, WS_AB, WS_H, WS_P, WS_F, F_BYTES, XN_BYTES, AB_BYTES, PANEL, W1_BYTES, W2_BYTES, WD_BYTES,
                  V_AB, V_AA, V_BB, V_BA, FR0, FR1, ACC, NAME, STAMP)

OUT = os.environ.get("OUT", "cdna_kernels/%s.s" % NAME)
TOUCH = int(os.environ.get("TOUCH3", "1"))
NWG = 240
NS = 4
SA, SB = 16384, 24576
LDS_B = NS * SA
g.LDS_B = LDS_B
LDS_TOTAL = LDS_B + NS * SB
WTOUCH = int(os.environ.get("WTOUCH", "1"))
TSTART = int(os.environ.get("TSTART", "0"))
SPREAD = int(os.environ.get("SPREAD", "1"))
WBL2 = int(os.environ.get("WBL2", "0"))
E1ST = os.environ.get("E1ST", "" if WBL2 else "sc1")
NB1 = int(os.environ.get("NB1", "2" if SPREAD else "6"))
HOLD = (14, 15, 17) if int(os.environ.get("HOLD", "1")) else None
LDF = os.environ.get("LDF", "sc1")
TSPAN = int(os.environ.get("TSPAN", "9"))
PBF16 = int(os.environ.get("PBF16", "1"))
PEL = 2 if PBF16 else 4
P_TILE = 128 * 192 * PEL
PW = P_TILE // 4
PB = PW // 6
P_BYTES = NWG * P_TILE
C_LN, C_AB, C_H, C_P = 0, 8, 16, 32
S_NF, S_N2, S_NT, S_M, S_N1, S_NR = 66, 67, 36, 64, 65, 89


V_AB, V_AA, V_BB, V_BA = 1, 3, 5, 11
FA, FB = 20, 36


def acc_reg(mb, nb):
    return ACC + 16 * (3 * (mb >> 1) + (nb >> 1)) + 4 * (2 * (mb & 1) + (nb & 1))


def consumer_addr_setup(a, btype):
    a(f"""
    v_and_b32 v60, 15, v0
    v_bfe_u32 v61, v0, 4, 2
    v_lshrrev_b32 v63, 1, v60
    s_lshl_b32 s40, s{S_WM}, 6
    v_add_u32 v17, s40, v60
    v_lshlrev_b32 v17, 7, v17
    """)
    for js in range(2):
        a(f"v_add_u32 v18, {4*js}, v61")
        a("v_xor_b32 v18, v18, v63")
        a(f"v_lshl_add_u32 v{V_AB+js}, v18, 4, v17")
    if btype == "NK":
        a(f"""
        s_mul_i32 s40, s{S_WN}, 96
        v_add_u32 v17, s40, v60
        v_lshlrev_b32 v17, 7, v17
        v_add_u32 v17, {LDS_B}, v17
        """)
        for js in range(2):
            a(f"v_add_u32 v18, {4*js}, v61")
            a("v_xor_b32 v18, v18, v63")
            a(f"v_lshl_add_u32 v{V_BB+js}, v18, 4, v17")
    else:
        a(f"""
        v_lshrrev_b32 v18, 2, v60
        v_lshl_add_u32 v18, v61, 3, v18
        v_mul_u32_u24 v18, 384, v18
        v_add_u32 v18, {LDS_B}, v18
        v_and_b32 v19, 1, v60
        v_lshl_add_u32 v18, v19, 3, v18
        v_lshrrev_b32 v19, 3, v60
        v_lshlrev_b32 v19, 2, v19
        v_and_b32 v62, 1, v61
        v_lshl_or_b32 v19, v62, 1, v19
        v_bfe_u32 v62, v60, 1, 1
        s_mul_i32 s40, s{S_WN}, 12
        """)
        for nb in range(6):
            a(f"s_add_u32 s41, s40, {2*nb}")
            a("v_add_u32 v17, s41, v62")
            a("v_xor_b32 v17, v17, v19")
            a(f"v_lshl_add_u32 v{V_BB+nb}, v17, 4, v18")


def rd_a(mb, js):
    d = FA + 4 * mb
    return [(f"A{mb}", f"ds_read_b128 v[{d}:{d+3}], v{V_AA+js} offset:{2048*mb}")]


def rd_b(btype, nb, js):
    d = FB + 4 * nb
    if btype == "NK":
        return [(f"B{nb}", f"ds_read_b128 v[{d}:{d+3}], v{V_BA+js} offset:{2048*nb}")]
    return [(f"B{nb}", f"ds_read_b64_tr_b16 v[{d}:{d+1}], v{V_BA+nb} offset:{32*js*384}"),
            (f"B{nb}", f"ds_read_b64_tr_b16 v[{d+2}:{d+3}], v{V_BA+nb} offset:{(32*js+4)*384}")]


def half(a, trk, btype, h, js_next_for_h1, js_cur):
    if h == 0:
        pend = [r for nb in (3, 4, 5) for r in rd_b(btype, nb, js_cur)]
    else:
        pend = [r for nb in (0, 1, 2) for r in rd_b(btype, nb, js_next_for_h1)]
    k = 0
    for mb in range(4):
        for nb in range(3 * h, 3 * h + 3):
            trk.need([f"A{mb}", f"B{nb}"])
            c = acc_reg(mb, nb)
            a(f"v_mfma_f32_16x16x32_bf16 v[{c}:{c+3}], v[{FB+4*nb}:{FB+4*nb+3}], v[{FA+4*mb}:{FA+4*mb+3}], v[{c}:{c+3}]")
            if pend:
                t, ins = pend.pop(0)
                trk.issue(t, ins)
            k += 1
        if h == 1:
            for t, ins in rd_a(mb, js_next_for_h1):
                trk.issue(t, ins)
    assert not pend


def cons_loop(a, pfx, btype, nsteps, t0, hook=False):
    nb_ = 2 if btype == "NK" else 6
    sl = t0 % NS
    a(f"s_mov_b32 s44, {sl*SA}")
    a(f"s_mov_b32 s45, {sl*SB}")
    a("s_mov_b32 s46, 0")
    for j in range(2):
        a(f"v_add_u32 v{V_AA+j}, {sl*SA}, v{V_AB+j}")
    for j in range(nb_):
        a(f"v_add_u32 v{V_BA+j}, {sl*SB}, v{V_BB+j}")
    trk = LgkmTracker(a)
    pend = [r for nb in (0, 1, 2) for r in rd_b(btype, nb, 0)]
    order = []
    for mb in range(4):
        for nb in range(3):
            if pend:
                order.append(pend.pop(0))
        order += rd_a(mb, 0)
    for t, ins in order:
        trk.issue(t, ins)
    a.label(f"{pfx}_loop")
    entry_state = list(trk.out)
    half(a, trk, btype, 0, None, 0)
    half(a, trk, btype, 1, 1, 0)
    half(a, trk, btype, 0, None, 1)
    a(f"""
    s_add_u32 s44, s44, {SA}
    s_add_u32 s45, s45, {SB}
    s_cmp_ge_u32 s44, {SA*NS}
    s_cselect_b32 s44, 0, s44
    s_cselect_b32 s45, 0, s45
    """)
    trk.drain()
    for j in range(2):
        a(f"v_add_u32 v{V_AA+j}, s44, v{V_AB+j}")
    for j in range(nb_):
        a(f"v_add_u32 v{V_BA+j}, s45, v{V_BB+j}")
    if hook:
        a("s_cmp_lg_u32 s46, 3")
        a(f"s_cbranch_scc1 {pfx}_nb")
        a("s_waitcnt vmcnt(0)")
        a("s_barrier")
        a("s_cmp_lg_u32 s3, 0")
        a(f"s_cbranch_scc1 {pfx}_ab")
        a("s_cmp_eq_u32 s90, -1")
        a(f"s_cbranch_scc1 {pfx}_ab")
        if WBL2:
            a("buffer_wbl2 sc1")
        else:
            signal(a, 90)
        a(f"s_branch {pfx}_ab")
        a.label(f"{pfx}_nb")
        if WBL2:
            a("s_cmp_lg_u32 s46, 6")
            a(f"s_cbranch_scc1 {pfx}_nb2")
            a("s_cmp_lg_u32 s3, 0")
            a(f"s_cbranch_scc1 {pfx}_nb2")
            a("s_cmp_eq_u32 s90, -1")
            a(f"s_cbranch_scc1 {pfx}_nb2")
            a("s_waitcnt vmcnt(0)")
            signal(a, 90)
            a.label(f"{pfx}_nb2")
    a("s_barrier")
    if hook:
        a.label(f"{pfx}_ab")
    half(a, trk, btype, 1, 0, 1)
    assert trk.out == entry_state, (trk.out, entry_state)
    a(f"""
    s_add_u32 s46, s46, 1
    s_cmp_lt_u32 s46, {nsteps}
    s_cbranch_scc1 {pfx}_loop
    s_waitcnt lgkmcnt(0)
    s_nop 15
    """)


def voff_ntype(a, stride, vb):
    for p in range(384):
        assert (p * 2731) >> 16 == p // 24
    a("v_and_b32 v60, 63, v0")
    for b in range(6):
        a(f"""
        v_add_u32 v61, {64*b}, v60
        v_mul_u32_u24 v62, 2731, v61
        v_lshrrev_b32 v62, 16, v62
        v_mul_u32_u24 v63, 24, v62
        v_sub_u32 v61, v61, v63
        v_and_b32 v63, 2, v62
        v_lshlrev_b32 v63, 1, v63
        v_xor_b32 v61, v61, v63
        v_lshrrev_b32 v63, 2, v62
        v_and_b32 v63, 2, v63
        v_xor_b32 v61, v61, v63
        v_mul_u32_u24 v62, {stride}, v62
        v_lshl_add_u32 v{vb+b}, v61, 4, v62
        """)


def zero_acc(a):
    for i in range(96):
        a(f"v_mov_b32 v{ACC+i}, 0")


def loader_loop(a, pfx, L, slot_bytes, ring_base, issue_fn, first_extra_barrier, hold=None):
    a("s_mov_b32 s50, 0")
    a(f"s_mov_b32 s51, {ring_base}")
    a(f"s_mov_b32 s52, {-NS}")
    a.label(f"{pfx}_loop")
    a("s_cmp_lt_i32 s52, -1")
    a(f"s_cbranch_scc1 {pfx}_iss0")
    if first_extra_barrier:
        a("s_cmp_lg_i32 s52, -1")
        a(f"s_cbranch_scc1 {pfx}_nx")
        a("s_barrier")
        a.label(f"{pfx}_nx")
    a("s_sub_i32 s53, s50, s52")
    for c in range(NS - 2, 0, -1):
        a(f"s_cmp_ge_i32 s53, {c+2}")
        a(f"s_cbranch_scc1 {pfx}_w{c}")
    a("s_waitcnt vmcnt(0)")
    a(f"s_branch {pfx}_bar")
    for c in range(1, NS - 1):
        a.label(f"{pfx}_w{c}")
        a(f"s_waitcnt vmcnt({c*L})")
        if c != NS - 2:
            a(f"s_branch {pfx}_bar")
    a.label(f"{pfx}_bar")
    a("s_barrier")
    a.label(f"{pfx}_iss0")
    a(f"s_add_i32 s43, s52, {NS}")
    if hold:
        a(f"s_cmp_ge_i32 s52, {hold[0]}")
        a(f"s_cselect_b32 s42, {hold[2]}, s43")
        a(f"s_cmp_le_i32 s52, {hold[1]}")
        a("s_cselect_b32 s43, s42, s43")
    a(f"s_sub_u32 s42, s{S_NT}, 1")
    a("s_min_i32 s43, s43, s42")
    a.label(f"{pfx}_iss")
    a("s_cmp_gt_i32 s50, s43")
    a(f"s_cbranch_scc1 {pfx}_skip")
    issue_fn()
    a("s_add_u32 s50, s50, 1")
    a(f"s_add_u32 s51, s51, {slot_bytes}")
    a(f"s_cmp_ge_u32 s51, {ring_base + NS*slot_bytes}")
    a(f"s_cselect_b32 s51, {ring_base}, s51")
    a(f"s_branch {pfx}_iss")
    a.label(f"{pfx}_skip")
    a(f"""
    s_add_i32 s52, s52, 1
    s_cmp_lt_i32 s52, s{S_NT}
    s_cbranch_scc1 {pfx}_loop
    s_endpgm
    """)


def issue_k(a, nq, stride, srdr, ve, flags=""):
    for q in range(nq):
        a(f"s_add_u32 m0, s58, {q*1024}")
        a(f"s_add_u32 s54, s57, {q*8*stride}")
        a(f"buffer_load_dwordx4 v{ve+1 if q & 1 else ve}, s[{srdr}:{srdr+3}], s54 offen {flags} lds")


def issue_n(a, stride, srdr, vb, flags=""):
    for aa in range(2):
        for b in range(6):
            a(f"s_add_u32 m0, s58, {(6*aa+b)*1024}")
            a(f"s_add_u32 s54, s57, {aa*16*stride}")
            a(f"buffer_load_dwordx4 v{vb+b}, s[{srdr}:{srdr+3}], s54 offen {flags} lds")


def g2_kk(a):
    a(f"""
    s_sub_u32 s62, s50, 18
    s_mul_i32 s63, s{S_SPLIT}, 13
    s_cmp_lt_u32 s62, s{S_NF}
    s_cbranch_scc1 1f
    s_cmp_lt_u32 s62, s{S_NR}
    s_cbranch_scc1 2f
    s_sub_u32 s62, s62, s{S_NR}
    s_mul_i32 s63, s{S_SPLIT}, 9
    s_add_u32 s63, s63, 91
    s_branch 1f
    """)
    a.lines.append("2:")
    a(f"""
    s_sub_u32 s62, s62, s{S_NF}
    s_mul_i32 s63, s{S_SPLIT}, 5
    s_add_u32 s63, s63, 64
    s_cmp_eq_u32 s{S_SPLIT}, 4
    s_addc_u32 s63, s63, 0
    """)
    a.lines.append("1:")
    a("s_add_u32 s62, s62, s63")


def ws_touch_setup(a):
    a(f"""
    v_and_b32 v162, 63, v0
    s_mul_i32 s40, s{S_NT2}, 43
    v_add_u32 v163, s40, v162
    s_lshl_b32 s40, s{S_MT2}, 7
    v_add_u32 v161, s40, v163
    v_lshlrev_b32 v161, 12, v161
    v_mov_b32 v164, 0x7f000000
    v_cmp_gt_u32 vcc, 43, v162
    s_nop 1
    v_cndmask_b32 v161, v164, v161, vcc
    v_cmp_gt_u32 vcc, 128, v163
    s_nop 1
    v_cndmask_b32 v161, v164, v161, vcc
    s_mov_b32 s{SRD_C+2}, {PANEL}
    s_mov_b32 s{SRD_C+3}, 0x00020000
    """)


def ws_touch(a, j, wave):
    lb = a.new("tch")
    a(f"""
    s_cmp_lg_u32 s3, {wave}
    s_cbranch_scc1 {lb}
    s_cmp_le_u32 s{S_NF}, {j}
    s_cbranch_scc1 {lb}
    s_mul_i32 s40, s{S_SPLIT}, 13
    s_add_u32 s40, s40, {j}
    s_cmp_lt_u32 s40, 32
    s_cselect_b32 s{SRD_C}, s{S_WSRE}, s{S_WSIM}
    s_cselect_b32 s{SRD_C+1}, s{S_WSRE+1}, s{S_WSIM+1}
    s_and_b32 s{SRD_C+1}, s{SRD_C+1}, 0xffff
    s_and_b32 s40, s40, 31
    s_lshl_b32 s40, s40, 7
    buffer_load_dword v160, v161, s[{SRD_C}:{SRD_C+3}], s40 offen
    """)
    a.label(lb)


def w2_touch(a):
    for p in range(64):
        assert (p * 5462) >> 16 == p // 12 and ((p % 12) * 21846) >> 16 == (p % 12) // 3
    lb = a.new("w2t")
    srd(a, SRD_C, S_W2, W2_BYTES)
    a(f"""
    s_cmp_ge_u32 s3, 7
    s_cbranch_scc1 {lb}
    v_and_b32 v162, 63, v0
    v_mul_u32_u24 v163, 5462, v162
    v_lshrrev_b32 v163, 16, v163
    v_mul_u32_u24 v164, 12, v163
    v_sub_u32 v164, v162, v164
    v_mul_u32_u24 v165, 21846, v164
    v_lshrrev_b32 v165, 16, v165
    v_mul_u32_u24 v166, 3, v165
    v_sub_u32 v166, v164, v166
    s_sub_u32 s40, s3, 4
    s_mul_i32 s40, s40, 5
    v_add_u32 v163, s40, v163
    s_sub_u32 s44, s{S_N2}, s{S_NF}
    v_cmp_gt_u32 vcc, s44, v163
    v_cmp_gt_u32 s[44:45], 60, v162
    s_mul_i32 s40, s{S_SPLIT}, 14
    s_cmp_eq_u32 s{S_SPLIT}, 4
    s_addc_u32 s40, s40, 0
    s_and_b64 vcc, vcc, s[44:45]
    v_add_u32 v163, s40, v163
    v_lshlrev_b32 v163, 6, v163
    s_lshl_b32 s40, s{S_MT2}, 2
    v_add3_u32 v163, v163, v165, s40
    v_mul_u32_u24 v163, 1152, v163
    v_lshl_add_u32 v163, v166, 7, v163
    v_mov_b32 v164, 0x7f000000
    v_cndmask_b32 v163, v164, v163, vcc
    s_mul_i32 s40, s{S_NT2}, 384
    buffer_load_dword v160, v163, s[{SRD_C}:{SRD_C+3}], s40 offen
    """)
    a.label(lb)


def gen_kernel(a):
    name = NAME + "_kernel"
    a.lines.append(f".globl {name}")
    a.lines.append(".p2align 8")
    a.lines.append(f".type {name},@function")
    a.label(name)
    a(f"""
    s_cmp_ge_u32 s2, {NWG}
    s_cbranch_scc1 K_done
    """)
    stamp(a, 0)
    a(f"""
    s_load_dwordx8 s[4:11], s[0:1], 0
    s_load_dwordx2 s[12:13], s[0:1], 32
    s_load_dwordx4 s[16:19], s[0:1], 48
    s_load_dwordx4 s[20:23], s[0:1], 64
    s_load_dwordx2 s[24:25], s[0:1], 80
    v_lshrrev_b32 v1, 6, v0
    s_and_b32 s33, s2, 7
    s_mul_i32 s33, s33, 30
    s_lshr_b32 s34, s2, 3
    v_readfirstlane_b32 s3, v1
    s_add_u32 s{S_L}, s33, s34
    s_lshr_b32 s{S_NT1}, s{S_L}, 3
    s_and_b32 s{S_MT1}, s{S_L}, 7
    s_cmp_ge_u32 s{S_L}, 120
    s_cselect_b32 s40, 120, 0
    s_cselect_b32 s41, 8, 0
    s_sub_u32 s40, s{S_L}, s40
    s_lshr_b32 s{S_N1}, s40, 3
    s_and_b32 s{S_M}, s40, 7
    s_add_u32 s{S_M}, s{S_M}, s41
    s_mul_i32 s{S_SPLIT}, s{S_L}, 1366
    s_lshr_b32 s{S_SPLIT}, s{S_SPLIT}, 16
    s_mul_i32 s40, s{S_SPLIT}, 48
    s_sub_u32 s{S_TILE}, s{S_L}, s40
    s_mul_i32 s{S_MT2}, s{S_TILE}, 21846
    s_lshr_b32 s{S_MT2}, s{S_MT2}, 16
    s_mul_i32 s40, s{S_MT2}, 3
    s_sub_u32 s{S_NT2}, s{S_TILE}, s40
    s_cmp_eq_u32 s{S_SPLIT}, 4
    s_cselect_b32 s{S_NF}, 12, 13
    s_cmp_eq_u32 s{S_SPLIT}, 3
    s_cselect_b32 s{S_N2}, 28, 27
    s_add_u32 s{S_NT}, s{S_N2}, 18
    s_sub_u32 s{S_NR}, s{S_N2}, 9
    s_waitcnt lgkmcnt(0)
    """)
    srd(a, SRD_DBG, S_DBG, 256)
    srd_off(a, SRD_F, S_WS, WS_F, F_BYTES)
    a(f"""
    s_or_b32 s40, s2, s3
    s_cmp_lg_u32 s40, 0
    s_cbranch_scc1 K_nopub
    s_memrealtime s[40:41]
    s_waitcnt lgkmcnt(0)
    s_or_b32 s40, s40, 1
    v_mov_b32 v60, s40
    v_mov_b32 v61, s41
    v_mov_b32 v63, 0
    s_mov_b64 exec, 1
    buffer_store_dwordx2 v[60:61], v63, s[{SRD_DBG}:{SRD_DBG+3}], 0 offen sc1
    s_mov_b64 exec, -1
    """)
    a.label("K_nopub")
    a("s_cmp_ge_u32 s3, 8")
    a("s_cbranch_scc1 K_loader")
    a("s_and_b32 s40, s3, 3")
    a(f"s_lshr_b32 s{S_WM}, s40, 1")
    a(f"s_and_b32 s{S_WN}, s40, 1")
    a("s_cmp_ge_u32 s3, 4")
    a("s_cbranch_scc1 K_g1")
    a("s_cmp_ge_u32 s3, 3")
    a("s_cbranch_scc1 K_lnskip")
    ln_phase(a)
    a.label("K_lnskip")
    a("s_barrier")
    a("s_cmp_lg_u32 s3, 0")
    a("s_cbranch_scc1 K_lnsig")
    get_nonce(a)
    a(f"s_lshl_b32 s41, s{S_MT1}, 8")
    a(f"s_lshl_b32 s40, s{S_NT1}, 3")
    a("s_add_u32 s41, s41, s40")
    a(f"s_add_u32 s41, s41, {C_LN*256}")
    signal(a, 41)
    a.label("K_lnsig")
    stamp(a, 1)
    zero_acc(a)
    a(f"s_cmp_ge_u32 s{S_N1}, 6")
    a("s_cbranch_scc1 T1_KN")
    consumer_addr_setup(a, "NK")
    a("s_barrier")
    stamp(a, 2)
    cons_loop(a, "T1nk", "NK", 9, 0)
    a("s_branch T1_done")
    a.label("T1_KN")
    consumer_addr_setup(a, "KN")
    a("s_barrier")
    stamp(a, 2)
    cons_loop(a, "T1kn", "KN", 9, 0)
    a.label("T1_done")
    stamp(a, 3)
    a(f"s_mov_b32 s46, s{S_N1}")
    a("s_branch K_epi")
    a.label("K_g1")
    if WTOUCH == 2:
        a("s_barrier")
    if WTOUCH:
        srd(a, SRD_C, S_W1, W1_BYTES)
        a(f"""
        v_subrev_u32 v56, 256, v0
        v_mul_u32_u24 v57, 21846, v56
        v_lshrrev_b32 v57, 16, v57
        v_mul_u32_u24 v59, 3, v57
        v_sub_u32 v59, v56, v59
        s_mul_i32 s40, s{S_M}, 36
        v_add_u32 v57, s40, v57
        v_mul_u32_u24 v57, 9216, v57
        v_lshl_add_u32 v57, v59, 7, v57
        v_mov_b32 v59, 0x7f000000
        v_cmp_gt_u32 vcc, 108, v56
        s_add_u32 s40, s{S_N1}, 9
        s_mul_i32 s40, s40, 384
        v_cndmask_b32 v57, v59, v57, vcc
        buffer_load_dword v160, v57, s[{SRD_C}:{SRD_C+3}], s40 offen
        s_cmp_lt_u32 s{S_N1}, 6
        s_cbranch_scc1 K_wt2
        s_sub_u32 s40, s{S_N1}, 6
        s_mul_i32 s40, s40, 384
        buffer_load_dword v160, v57, s[{SRD_C}:{SRD_C+3}], s40 offen
        s_branch K_wt3
        """)
        a.label("K_wt2")
        a(f"""
        s_cmp_ge_u32 s{S_N1}, 3
        s_cselect_b32 s60, s{S_WDIM}, s{S_WDRE}
        s_cselect_b32 s61, s{S_WDIM+1}, s{S_WDRE+1}
        s_cselect_b32 s40, 3, 0
        s_sub_u32 s40, s{S_N1}, s40
        s_mul_i32 s40, s40, 192
        s_mul_i32 s41, s{S_M}, 12
        s_add_u32 s40, s40, s41
        s_mul_i32 s40, s40, 1152
        v_lshlrev_b32 v57, 7, v56
        v_cndmask_b32 v57, v59, v57, vcc
        """)
        srd(a, SRD_C, 60, WD_BYTES)
        a(f"buffer_load_dword v160, v57, s[{SRD_C}:{SRD_C+3}], s40 offen")
        a.label("K_wt3")
    if WTOUCH != 2:
        a("s_barrier")
    zero_acc(a)
    consumer_addr_setup(a, "KN")
    a("s_barrier")
    if TOUCH:
        ws_touch_setup(a)
        sched = {1: [0], 2: [1], 4: [2], 5: [3], 7: [4], 8: [5]}
        for t in range(9):
            for j in sched.get(t, []):
                ws_touch(a, j, 4 + (j & 3))
            a("s_barrier")
    else:
        for _ in range(9):
            a("s_barrier")
    cons_loop(a, "T2", "KN", 9, 9)
    if TOUCH:
        w2_touch(a)
    a(f"s_add_u32 s46, s{S_N1}, 15")
    a.label("K_epi")
    srd_off(a, SRD_A, S_WS, WS_AB, AB_BYTES)
    srd_off(a, SRD_B, S_WS, WS_H, 3 * PANEL)
    a(f"""
    s_lshl_b32 s49, s{S_M}, 7
    s_cmp_ge_u32 s46, 6
    s_cbranch_scc1 E_h
    s_mov_b32 s43, 0x80008000
    s_cmp_ge_u32 s46, 3
    s_cselect_b32 s42, 0x80008000, 0
    s_cselect_b32 s41, 2048, 0
    s_cselect_b32 s40, 3, 0
    s_add_u32 s49, s49, s41
    s_sub_u32 s40, s46, s40
    s_mul_i32 s48, s40, 192
    s_mov_b32 s47, 1152
    s_lshl_b32 s41, s40, 8
    s_lshl_b32 s40, s{S_M}, 3
    s_add_u32 s41, s41, s40
    s_cmp_ge_u32 s46, 3
    s_cselect_b32 s40, 128, 0
    s_add_u32 s41, s41, s40
    s_add_u32 s41, s41, {C_AB*256}
    s_branch E_go
    """)
    a.label("E_h")
    a(f"""
    s_mov_b32 s42, 0
    s_mov_b32 s43, 0
    s_mov_b32 s{SRD_A}, s{SRD_B}
    s_mov_b32 s{SRD_A+1}, s{SRD_B+1}
    s_mov_b32 s{SRD_A+2}, s{SRD_B+2}
    s_sub_u32 s40, s46, 6
    s_mul_i32 s48, s40, 192
    s_mov_b32 s47, 4096
    s_lshl_b32 s41, s{S_M}, 8
    s_lshl_b32 s40, s40, 3
    s_add_u32 s41, s41, s40
    s_add_u32 s41, s41, {C_H*256}
    """)
    a.label("E_go")
    a(f"""
    s_lshl_b32 s40, s{S_WM}, 6
    s_add_u32 s49, s49, s40
    s_mul_i32 s40, s{S_WN}, 96
    s_add_u32 s48, s48, s40
    v_and_b32 v60, 15, v0
    v_add_u32 v60, s49, v60
    v_mul_lo_u32 v60, v60, s47
    v_bfe_u32 v61, v0, 4, 1
    v_bfe_u32 v62, v0, 5, 1
    v_lshlrev_b32 v61, 4, v61
    v_lshl_add_u32 v61, v62, 3, v61
    v_add_u32 v61, s48, v61
    """)
    for ni in range(3):
        a(f"""
        v_add_u32 v62, {32*ni}, v61
        v_lshrrev_b32 v63, 11, v62
        v_lshlrev_b32 v63, 23, v63
        v_and_b32 v62, 2047, v62
        v_add_u32 v63, v60, v63
        v_lshl_add_u32 v{2+ni}, v62, 1, v63
        """)
    for mi in range(2):
        a(f"s_mul_i32 s44, s47, {32*mi}")
        a(f"s_mul_i32 s45, s47, {32*mi+16}")
        for ni in range(3):
            c = ACC + 16 * (3 * mi + ni)
            t = 20 + 8 * (ni & 1)
            for r in range(8):
                a(f"v_cvt_pk_bf16_f32 v{t+r}, v{c+2*r}, v{c+2*r+1}")
            for r in range(8):
                a(f"v_pk_max_i16 v{t+r}, v{t+r}, s43")
            for r in range(8):
                a(f"v_xor_b32 v{t+r}, s42, v{t+r}")
            a("s_nop 1")
            a(f"v_permlane16_swap_b32 v{t}, v{t+2}")
            a(f"v_permlane16_swap_b32 v{t+1}, v{t+3}")
            a(f"v_permlane16_swap_b32 v{t+4}, v{t+6}")
            a(f"v_permlane16_swap_b32 v{t+5}, v{t+7}")
            if E1ST != "none":
                a(f"buffer_store_dwordx4 v[{t}:{t+3}], v{2+ni}, s[{SRD_A}:{SRD_A+3}], s44 offen {E1ST}")
                a(f"buffer_store_dwordx4 v[{t+4}:{t+7}], v{2+ni}, s[{SRD_A}:{SRD_A+3}], s45 offen {E1ST}")
            if ni < 2 and SPREAD:
                lb = a.new("Esk")
                a("s_cmp_lt_u32 s46, 6")
                a(f"s_cbranch_scc1 {lb}")
                a("s_barrier")
                a.label(lb)
        a("s_barrier")
    a("s_mov_b32 s90, -1")
    if SPREAD:
        a(f"""
        s_cmp_ge_u32 s3, 4
        s_cbranch_scc1 E_na
        s_cmp_lt_u32 s46, 6
        s_cbranch_scc1 E_na
        s_mov_b32 s90, s41
        s_mov_b32 s45, 3
        s_branch E_g0
        """)
        a.label("E_na")
    a(f"""
    s_mov_b32 s44, 5
    s_cmp_lt_u32 s46, 6
    s_cselect_b32 s44, 2, s44
    s_cmp_ge_u32 s3, 4
    s_cselect_b32 s44, {NB1}, s44
    s_sub_u32 s45, 6, s44
    """)
    a.label("E_w1")
    a("s_barrier")
    a("s_sub_u32 s44, s44, 1")
    a("s_cmp_lg_u32 s44, 0")
    a("s_cbranch_scc1 E_w1")
    a("s_waitcnt vmcnt(0)")
    a("s_barrier")
    a("s_and_b32 s40, s3, 3")
    a("s_cmp_lg_u32 s40, 0")
    a("s_cbranch_scc1 E_sig")
    a("s_cmp_eq_u32 s3, 0")
    a("s_cbranch_scc1 E_sig0")
    get_nonce(a)
    a.label("E_sig0")
    if WBL2:
        a("buffer_wbl2 sc1")
        a("s_waitcnt vmcnt(0)")
    signal(a, 41)
    a.label("E_sig")
    a("s_cmp_lt_u32 s3, 4")
    a("s_cbranch_scc1 E_g0")
    a("s_endpgm")
    a.label("E_g0")
    if TOUCH:
        ws_touch_setup(a)
        for j in range(6, 13):
            ws_touch(a, j, (j + 3) & 3)
    zero_acc(a)
    consumer_addr_setup(a, "KN")
    stamp(a, 4)
    a.label("E_w2")
    a("s_barrier")
    a("s_sub_u32 s45, s45, 1")
    a("s_cmp_lg_u32 s45, 0")
    a("s_cbranch_scc1 E_w2")
    stamp(a, 5)
    cons_loop(a, "G2c", "KN", f"s{S_N2}", 18, SPREAD)
    stamp(a, 6)
    srd_off(a, SRD_A, S_WS, WS_P, P_BYTES)
    a(f"""
    s_mul_i32 s42, s{S_L}, {P_TILE}
    s_mul_i32 s41, s3, {PW}
    s_add_u32 s42, s42, s41
    v_and_b32 v7, 63, v0
    v_lshlrev_b32 v7, 4, v7
    s_add_u32 s43, s3, 5
    s_sub_u32 s43, s43, s{S_SPLIT}
    """)
    for i in range(6):
        sk = a.new("pst")
        a(f"s_add_u32 s40, s43, {i}")
        a("s_cmp_eq_u32 s40, 5")
        a(f"s_cbranch_scc1 {sk}")
        a("s_cmp_eq_u32 s40, 10")
        a(f"s_cbranch_scc1 {sk}")
        a(f"s_add_u32 s41, s42, {i*PB}")
        t = 20 + 8 * (i & 1)
        if PBF16:
            for r in range(8):
                a(f"v_cvt_pk_bf16_f32 v{t+r}, v{ACC+16*i+2*r}, v{ACC+16*i+2*r+1}")
            a(f"buffer_store_dwordx4 v[{t}:{t+3}], v7, s[{SRD_A}:{SRD_A+3}], s41 offen sc1")
            a(f"buffer_store_dwordx4 v[{t+4}:{t+7}], v7, s[{SRD_A}:{SRD_A+3}], s41 offen offset:1024 sc1")
        else:
            for q in range(4):
                c = ACC + 16 * i + 4 * q
                a(f"buffer_store_dwordx4 v[{c}:{c+3}], v7, s[{SRD_A}:{SRD_A+3}], s41 offen offset:{q*1024} sc1")
        a.label(sk)
    a("s_waitcnt vmcnt(0)")
    a("s_barrier")
    a(f"""
    s_lshl_b32 s41, s{S_TILE}, 8
    s_add_u32 s41, s41, {C_P*256}
    s_lshl_b32 s47, s{S_SPLIT}, 3
    s_add_u32 s47, s47, s41
    s_cmp_lg_u32 s3, 0
    s_cbranch_scc1 K_psig
    """)
    signal(a, 47)
    a("s_branch K_psig2")
    a.label("K_psig")
    get_nonce(a)
    a.label("K_psig2")
    srd(a, SRD_B, S_X, XN_BYTES)
    srd(a, SRD_C, S_OUT, XN_BYTES)
    a(f"""
    s_lshl_b32 s49, s{S_MT2}, 7
    s_lshl_b32 s40, s{S_WM}, 6
    s_add_u32 s49, s49, s40
    s_mul_i32 s48, s{S_NT2}, 384
    s_mul_i32 s40, s{S_WN}, 192
    s_add_u32 s48, s48, s40
    v_and_b32 v3, 15, v0
    v_bfe_u32 v4, v0, 4, 2
    v_add_u32 v3, s49, v3
    v_mul_u32_u24 v3, 1152, v3
    v_add_u32 v3, s48, v3
    v_lshl_add_u32 v5, v4, 3, v3
    v_bfe_u32 v2, v0, 4, 1
    v_lshl_add_u32 v6, v2, 5, v3
    v_bfe_u32 v2, v0, 5, 1
    v_lshl_add_u32 v6, v2, 4, v6
    s_mul_i32 s42, s{S_TILE}, {P_TILE}
    s_mul_i32 s40, s3, {PW}
    s_add_u32 s42, s42, s40
    s_mov_b32 s46, 5
    """)
    poll(a, 41, 0x1f)
    stamp(a, 7)
    a.label("F_loop")
    a("s_sub_i32 s45, s46, s43")
    a("s_cmp_lt_i32 s45, 0")
    a("s_cbranch_scc1 F_next")
    a("s_cmp_gt_i32 s45, 5")
    a("s_cbranch_scc1 F_next")
    a(f"""
    s_cmp_ge_u32 s45, 3
    s_cselect_b32 s40, 3, 0
    s_cselect_b32 s47, {32*1152}, 0
    s_sub_u32 s40, s45, s40
    s_lshl_b32 s40, s40, 6
    s_add_u32 s47, s47, s40
    s_mul_i32 s48, s45, {PB}
    s_add_u32 s48, s48, s42
    """)
    XR, PR, W = 160, 8, 40
    a(f"s_add_u32 s49, s47, {16*1152}")
    for gq in range(4):
        a(f"buffer_load_dwordx2 v[{XR+2*gq}:{XR+1+2*gq}], v5, s[{SRD_B}:{SRD_B+3}], s{49 if gq >= 2 else 47} offen offset:{(gq&1)*32}")
    def src_addr(d):
        a(f"""
        s_add_u32 s44, s{S_SPLIT}, {d}
        s_sub_u32 s40, s44, 5
        s_cmp_ge_u32 s44, 5
        s_cselect_b32 s44, s40, s44
        s_mul_i32 s44, s44, {48*P_TILE}
        s_add_u32 s44, s44, s48
        """)

    def movs():
        for i in range(6):
            a(f"s_cmp_lg_u32 s45, {i}")
            a(f"s_cbranch_scc1 F_m{i}")
            for r in range(16):
                a(f"v_mov_b32 v{W+r}, v{ACC+16*i+r}")
            a.label(f"F_m{i}")
    if PBF16:
        for d in range(1, 5):
            r0 = PR + 8 * (d - 1)
            src_addr(d)
            a(f"buffer_load_dwordx4 v[{r0}:{r0+3}], v7, s[{SRD_A}:{SRD_A+3}], s44 offen sc1")
            a(f"buffer_load_dwordx4 v[{r0+4}:{r0+7}], v7, s[{SRD_A}:{SRD_A+3}], s44 offen offset:1024 sc1")
        movs()
        for d in range(1, 5):
            a(f"s_waitcnt vmcnt({2*(4-d)})")
            for r in range(8):
                src = PR + 8 * (d - 1) + r
                a(f"""
                v_lshlrev_b32 v56, 16, v{src}
                v_and_b32 v57, 0xffff0000, v{src}
                v_add_f32 v{W+2*r}, v{W+2*r}, v56
                v_add_f32 v{W+2*r+1}, v{W+2*r+1}, v57
                """)
    else:
        for half in range(2):
            for dd in range(2):
                src_addr(1 + 2 * half + dd)
                for q in range(4):
                    r0 = PR + 16 * dd + 4 * q
                    a(f"buffer_load_dwordx4 v[{r0}:{r0+3}], v7, s[{SRD_A}:{SRD_A+3}], s44 offen offset:{q*1024} sc1")
            if half == 0:
                movs()
            for dd in range(2):
                a(f"s_waitcnt vmcnt({4 if dd == 0 else 0})")
                for r in range(16):
                    a(f"v_add_f32 v{W+r}, v{W+r}, v{PR+16*dd+r}")
    for gq in range(4):
        c = W + 4 * gq
        a(f"""
        v_lshlrev_b32 v56, 16, v{XR+2*gq}
        v_and_b32 v57, 0xffff0000, v{XR+2*gq}
        v_lshlrev_b32 v58, 16, v{XR+1+2*gq}
        v_and_b32 v59, 0xffff0000, v{XR+1+2*gq}
        v_add_f32 v{c}, v{c}, v56
        v_add_f32 v{c+1}, v{c+1}, v57
        v_add_f32 v{c+2}, v{c+2}, v58
        v_add_f32 v{c+3}, v{c+3}, v59
        v_cvt_pk_bf16_f32 v{8+2*gq}, v{c}, v{c+1}
        v_cvt_pk_bf16_f32 v{9+2*gq}, v{c+2}, v{c+3}
        """)
    a(f"""
    s_nop 1
    v_permlane16_swap_b32 v8, v10
    v_permlane16_swap_b32 v9, v11
    v_permlane16_swap_b32 v12, v14
    v_permlane16_swap_b32 v13, v15
    buffer_store_dwordx4 v[8:11], v6, s[{SRD_C}:{SRD_C+3}], s47 offen
    buffer_store_dwordx4 v[12:15], v6, s[{SRD_C}:{SRD_C+3}], s49 offen
    s_nop 1
    """)
    a.label("F_next")
    a("s_add_u32 s46, s46, 5")
    a("s_cmp_le_u32 s46, 10")
    a("s_cbranch_scc1 F_loop")
    if STAMP:
        a("s_waitcnt vmcnt(0)")
    flush_stamps(a, 9)
    a("s_endpgm")

    a.label("K_loader")
    a("s_cmp_ge_u32 s3, 10")
    a("s_cbranch_scc1 K_loadB")
    srd_off(a, SRD_B, S_WS, WS_XN, XN_BYTES)
    voff_ktype(a, 1152, 1, 2)
    voff_ktype(a, 4096, 3, 4)
    a(f"""
    s_sub_u32 s59, s3, 8
    s_lshl_b32 s41, s{S_M}, 7
    s_lshl_b32 s56, s59, 6
    s_add_u32 s41, s41, s56
    s_mul_i32 s55, s41, 1152
    s_lshl_b32 s41, s{S_MT2}, 7
    s_add_u32 s41, s41, s56
    s_lshl_b32 s49, s41, 12
    s_lshl_b32 s56, s59, 13
    s_add_u32 s60, s{S_WS}, {WS_H}
    s_addc_u32 s61, s{S_WS+1}, 0
    s_mov_b32 s{SRD_A+2}, {PANEL}
    s_mov_b32 s{SRD_A+3}, 0x00020000
    s_barrier
    s_lshr_b32 s41, s{S_M}, 1
    s_lshl_b32 s41, s41, 8
    s_add_u32 s41, s41, {C_LN*256}
    """)
    get_nonce(a)
    poll(a, 41, 0x3fffffff)
    a(f"""
    s_mov_b32 s48, 0x3
    s_cmp_eq_u32 s{S_SPLIT}, 1
    s_cselect_b32 s48, 0xe, s48
    s_cmp_eq_u32 s{S_SPLIT}, 2
    s_cselect_b32 s48, 0x18, s48
    s_cmp_eq_u32 s{S_SPLIT}, 3
    s_cselect_b32 s48, 0x60, s48
    s_cmp_eq_u32 s{S_SPLIT}, 4
    s_cselect_b32 s48, 0x180, s48
    s_mul_i32 s46, s{S_SPLIT}, 3
    s_lshl_b32 s46, 0xe00, s46
    s_lshl_b32 s47, s{S_MT2}, 8
    s_add_u32 s47, s47, {C_H*256}
    """)

    def issueA():
        a("s_add_u32 s58, s51, s56")
        a("s_cmp_ge_u32 s50, 18")
        a("s_cbranch_scc1 LA_g2")
        a("""
        s_sub_u32 s62, s50, 9
        s_cmp_ge_u32 s50, 9
        s_cselect_b32 s62, s62, s50
        s_lshl_b32 s57, s62, 7
        s_add_u32 s57, s57, s55
        """)
        issue_k(a, 8, 1152, SRD_B, 1, LDF)
        a("s_branch LA_end")
        a.label("LA_g2")
        a(f"s_sub_u32 s62, s50, 18")
        a(f"s_cmp_lg_u32 s62, s{S_NF}")
        a("s_cbranch_scc1 LA_np")
        poll(a, 47, "s48")
        a.label("LA_np")
        a(f"s_sub_u32 s62, s50, 18")
        a(f"s_cmp_lg_u32 s62, s{S_NR}")
        a("s_cbranch_scc1 LA_np2")
        poll(a, 47, "s46")
        a.label("LA_np2")
        g2_kk(a)
        a(f"""
        s_lshr_b32 s63, s62, 5
        s_sub_u32 s41, s63, 2
        s_lshl_b32 s41, s41, 23
        s_add_u32 s{SRD_A}, s60, s41
        s_addc_u32 s{SRD_A+1}, s61, 0
        s_cmp_eq_u32 s63, 0
        s_cselect_b32 s{SRD_A}, s{S_WSRE}, s{SRD_A}
        s_cselect_b32 s{SRD_A+1}, s{S_WSRE+1}, s{SRD_A+1}
        s_cmp_eq_u32 s63, 1
        s_cselect_b32 s{SRD_A}, s{S_WSIM}, s{SRD_A}
        s_cselect_b32 s{SRD_A+1}, s{S_WSIM+1}, s{SRD_A+1}
        s_and_b32 s{SRD_A+1}, s{SRD_A+1}, 0xffff
        s_and_b32 s57, s62, 31
        s_lshl_b32 s57, s57, 7
        s_add_u32 s57, s57, s49
        """)
        issue_k(a, 8, 4096, SRD_A, 3, LDF)
        a.label("LA_end")
    loader_loop(a, "LA", 8, SA, 0, issueA, False)

    a.label("K_loadB")
    a(f"""
    s_sub_u32 s59, s3, 10
    s_cmp_ge_u32 s{S_N1}, 3
    s_cselect_b32 s60, s{S_WDIM}, s{S_WDRE}
    s_cselect_b32 s61, s{S_WDIM+1}, s{S_WDRE+1}
    """)
    srd(a, SRD_B, 60, WD_BYTES)
    srd(a, SRD_C, S_W1, W1_BYTES)
    voff_ktype(a, 1152, 1, 2)
    voff_ntype(a, 9216, 3)
    voff_ntype(a, 1152, 9)
    a(f"""
    s_mul_i32 s56, s59, {32*9216}
    s_add_u32 s41, s{S_N1}, 9
    s_mul_i32 s49, s41, 384
    s_add_u32 s49, s49, s56
    s_sub_u32 s41, s{S_N1}, 6
    s_mul_i32 s55, s41, 384
    s_add_u32 s55, s55, s56
    s_cmp_ge_u32 s{S_N1}, 6
    s_cbranch_scc1 LB_s1
    s_cmp_ge_u32 s{S_N1}, 3
    s_cselect_b32 s41, 3, 0
    s_sub_u32 s41, s{S_N1}, s41
    s_mul_i32 s41, s41, 192
    s_mul_i32 s56, s59, 96
    s_add_u32 s41, s41, s56
    s_mul_i32 s55, s41, 1152
    """)
    a.label("LB_s1")
    a(f"""
    s_mul_i32 s48, s{S_NT2}, 384
    s_mul_i32 s56, s59, {32*1152}
    s_add_u32 s48, s48, s56
    s_mul_i32 s56, s59, 12288
    s_add_u32 s60, s{S_WS}, {WS_AB}
    s_addc_u32 s61, s{S_WS+1}, 0
    s_mov_b32 s{SRD_A+3}, 0x00020000
    """)

    def issueB():
        a("s_add_u32 s58, s51, s56")
        a("s_cmp_ge_u32 s50, 18")
        a("s_cbranch_scc1 LB_g2")
        a("s_cmp_ge_u32 s50, 9")
        a("s_cbranch_scc1 LB_t2")
        a(f"s_cmp_ge_u32 s{S_N1}, 6")
        a("s_cbranch_scc1 LB_t1kn")
        a("s_lshl_b32 s57, s50, 7")
        a("s_add_u32 s57, s57, s55")
        issue_k(a, 12, 1152, SRD_B, 1)
        a("s_branch LB_end")
        a.label("LB_t1kn")
        a(f"s_mul_i32 s57, s50, {64*9216}")
        a("s_add_u32 s57, s57, s55")
        a("s_branch LB_kn")
        a.label("LB_t2")
        a("s_sub_u32 s62, s50, 9")
        a(f"s_mul_i32 s57, s62, {64*9216}")
        a("s_add_u32 s57, s57, s49")
        a.label("LB_kn")
        issue_n(a, 9216, SRD_C, 3)
        a("s_branch LB_end")
        a.label("LB_g2")
        a("s_cmp_lg_u32 s50, 18")
        a("s_cbranch_scc1 LB_n0")
        get_nonce(a)
        a("s_mov_b32 s47, 0")
        a.label("LB_n0")
        g2_kk(a)
        a("s_cmp_ge_u32 s62, 64")
        a("s_cbranch_scc1 LB_np")
        a("s_lshr_b32 s46, s62, 1")
        a("s_bitcmp1_b32 s47, s46")
        a("s_cbranch_scc1 LB_np")
        a("s_mov_b32 s42, s62")
        a(f"s_lshl_b32 s41, s{S_NT2}, 8")
        a(f"s_add_u32 s41, s41, {C_AB*256}")
        a("v_and_b32 v63, 31, v0")
        a("v_lshlrev_b32 v63, 3, v63")
        a("s_mov_b32 s101, 0")
        a.label("LB_pl")
        a("s_add_u32 s101, s101, 1")
        a("s_cmp_ge_u32 s101, 0x40000")
        a("s_cbranch_scc1 LB_pd")
        a(f"buffer_load_dwordx2 v[60:61], v63, s[{SRD_F}:{SRD_F+3}], s41 offen sc1")
        a("s_waitcnt vmcnt(0)")
        a(f"v_cmp_eq_u32 s[62:63], s{g.S_NLO}, v60")
        a(f"v_cmp_eq_u32 vcc, s{g.S_NHI}, v61")
        a("s_nop 1")
        a("s_and_b32 s47, s62, vcc_lo")
        a("s_bitcmp1_b32 s47, s46")
        a("s_cbranch_scc1 LB_pd")
        a("s_sleep 2")
        a("s_branch LB_pl")
        a.label("LB_pd")
        a("s_mov_b32 s62, s42")
        a.label("LB_np")
        a(f"""
        s_sub_u32 s63, s62, 64
        s_cmp_lt_u32 s62, 64
        s_cselect_b32 s63, s62, s63
        s_cselect_b32 s{SRD_A}, s60, s{S_W2}
        s_cselect_b32 s{SRD_A+1}, s61, s{S_W2+1}
        s_mov_b32 s{SRD_A+2}, {W2_BYTES}
        s_cselect_b32 s{SRD_A+2}, {AB_BYTES}, s{SRD_A+2}
        s_and_b32 s{SRD_A+1}, s{SRD_A+1}, 0xffff
        s_mul_i32 s57, s63, {64*1152}
        s_add_u32 s57, s57, s48
        """)
        issue_n(a, 1152, SRD_A, 9, LDF)
        a.label("LB_end")
    loader_loop(a, "LB", 12, SB, LDS_B, issueB, True, HOLD)
    a.label("K_done")
    a("s_endpgm")
    return name


def main():
    a = Asm()
    name = gen_kernel(a)
    head = f"; generated by gen4.py\n; @launch grid=({NWG},1,1) block=(768,1,1) lds={LDS_TOTAL}\n"
    head += '.amdgcn_target "amdgcn-amd-amdhsa--gfx950"\n.text\n'
    tail = f""".section .rodata,"a"
.p2align 6
.amdhsa_kernel {name}
  .amdhsa_next_free_vgpr 168
  .amdhsa_next_free_sgpr 102
  .amdhsa_accum_offset 168
  .amdhsa_group_segment_fixed_size 0
  .amdhsa_kernarg_size 88
  .amdhsa_user_sgpr_count 2
  .amdhsa_user_sgpr_kernarg_segment_ptr 1
  .amdhsa_system_sgpr_workgroup_id_x 1
  .amdhsa_float_denorm_mode_32 3
  .amdhsa_float_denorm_mode_16_64 3
.end_amdhsa_kernel
"""
    open(OUT, "w").write(head + a.text() + tail)


if __name__ == "__main__":
    main()
```

```python
import os
import gen2 as g
from gen2 import (Asm, srd, srd_off, stamp, flush_stamps, get_nonce, signal, poll, ln_phase, frag, reads_for,
                  LgkmTracker, substep, consumer_addr_setup, voff_ktype, voff_ntype,
                  S_X, S_WSRE, S_WSIM, S_WDRE, S_WDIM, S_W1, S_W2, S_OUT, S_DBG, S_WS,
                  S_SPLIT, S_TILE, S_MT2, S_NT2, SRD_DBG, S_L, S_NT1, S_MT1, S_WM, S_WN, SRD_A, SRD_B, SRD_C, SRD_F,
                  WS_XN, WS_AB, WS_H, WS_P, WS_F, F_BYTES, XN_BYTES, AB_BYTES, PANEL, W1_BYTES, W2_BYTES, WD_BYTES,
                  V_AB, V_AA, V_BB, V_BA, FR0, FR1, ACC, NAME, STAMP)

OUT = os.environ.get("OUT", "cdna_kernels/%s.s" % NAME)
TOUCH = int(os.environ.get("TOUCH3", "1"))
NWG = 240
NS = 4
SA, SB = 16384, 24576
LDS_B = NS * SA
g.LDS_B = LDS_B
LDS_TOTAL = LDS_B + NS * SB
WTOUCH = int(os.environ.get("WTOUCH", "1"))
TSTART = int(os.environ.get("TSTART", "0"))
SPREAD = int(os.environ.get("SPREAD", "1"))
WBL2 = int(os.environ.get("WBL2", "0"))
OUTF = os.environ.get("OUTF", "")
PRIO = os.environ.get("PRIO", "")
E1ST = os.environ.get("E1ST", "" if WBL2 else "sc1")
NB1 = int(os.environ.get("NB1", "2" if SPREAD else "6"))
HOLD = (14, 15, 17) if int(os.environ.get("HOLD", "1")) else None
LDF = os.environ.get("LDF", "sc1")
TSPAN = int(os.environ.get("TSPAN", "9"))
PBF16 = int(os.environ.get("PBF16", "1"))
PEL = 2 if PBF16 else 4
P_TILE = 128 * 192 * PEL
PW = P_TILE // 4
PB = PW // 6
P_BYTES = NWG * P_TILE
C_LN, C_AB, C_H, C_P = 0, 8, 16, 32
S_NF, S_N2, S_NT, S_M, S_N1, S_NR = 66, 67, 36, 64, 65, 89


V_AB, V_AA, V_BB, V_BA = 1, 3, 5, 11
FA, FB = 20, 36


def acc_reg(mb, nb):
    return ACC + 16 * (3 * (mb >> 1) + (nb >> 1)) + 4 * (2 * (mb & 1) + (nb & 1))


def consumer_addr_setup(a, btype):
    a(f"""
    v_and_b32 v60, 15, v0
    v_bfe_u32 v61, v0, 4, 2
    v_lshrrev_b32 v63, 1, v60
    s_lshl_b32 s40, s{S_WM}, 6
    v_add_u32 v17, s40, v60
    v_lshlrev_b32 v17, 7, v17
    """)
    for js in range(2):
        a(f"v_add_u32 v18, {4*js}, v61")
        a("v_xor_b32 v18, v18, v63")
        a(f"v_lshl_add_u32 v{V_AB+js}, v18, 4, v17")
    if btype == "NK":
        a(f"""
        s_mul_i32 s40, s{S_WN}, 96
        v_add_u32 v17, s40, v60
        v_lshlrev_b32 v17, 7, v17
        v_add_u32 v17, {LDS_B}, v17
        """)
        for js in range(2):
            a(f"v_add_u32 v18, {4*js}, v61")
            a("v_xor_b32 v18, v18, v63")
            a(f"v_lshl_add_u32 v{V_BB+js}, v18, 4, v17")
    else:
        a(f"""
        v_lshrrev_b32 v18, 2, v60
        v_lshl_add_u32 v18, v61, 3, v18
        v_mul_u32_u24 v18, 384, v18
        v_add_u32 v18, {LDS_B}, v18
        v_and_b32 v19, 1, v60
        v_lshl_add_u32 v18, v19, 3, v18
        v_lshrrev_b32 v19, 3, v60
        v_lshlrev_b32 v19, 2, v19
        v_and_b32 v62, 1, v61
        v_lshl_or_b32 v19, v62, 1, v19
        v_bfe_u32 v62, v60, 1, 1
        s_mul_i32 s40, s{S_WN}, 12
        """)
        for nb in range(6):
            a(f"s_add_u32 s41, s40, {2*nb}")
            a("v_add_u32 v17, s41, v62")
            a("v_xor_b32 v17, v17, v19")
            a(f"v_lshl_add_u32 v{V_BB+nb}, v17, 4, v18")


def rd_a(mb, js):
    d = FA + 4 * mb
    return [(f"A{mb}", f"ds_read_b128 v[{d}:{d+3}], v{V_AA+js} offset:{2048*mb}")]


def rd_b(btype, nb, js):
    d = FB + 4 * nb
    if btype == "NK":
        return [(f"B{nb}", f"ds_read_b128 v[{d}:{d+3}], v{V_BA+js} offset:{2048*nb}")]
    return [(f"B{nb}", f"ds_read_b64_tr_b16 v[{d}:{d+1}], v{V_BA+nb} offset:{32*js*384}"),
            (f"B{nb}", f"ds_read_b64_tr_b16 v[{d+2}:{d+3}], v{V_BA+nb} offset:{(32*js+4)*384}")]


def half(a, trk, btype, h, js_next_for_h1, js_cur):
    if h == 0:
        pend = [r for nb in (3, 4, 5) for r in rd_b(btype, nb, js_cur)]
    else:
        pend = [r for nb in (0, 1, 2) for r in rd_b(btype, nb, js_next_for_h1)]
    k = 0
    for mb in range(4):
        for nb in range(3 * h, 3 * h + 3):
            trk.need([f"A{mb}", f"B{nb}"])
            c = acc_reg(mb, nb)
            a(f"v_mfma_f32_16x16x32_bf16 v[{c}:{c+3}], v[{FB+4*nb}:{FB+4*nb+3}], v[{FA+4*mb}:{FA+4*mb+3}], v[{c}:{c+3}]")
            if pend:
                t, ins = pend.pop(0)
                trk.issue(t, ins)
            k += 1
        if h == 1:
            for t, ins in rd_a(mb, js_next_for_h1):
                trk.issue(t, ins)
    assert not pend


def cons_loop(a, pfx, btype, nsteps, t0, hook=False):
    nb_ = 2 if btype == "NK" else 6
    sl = t0 % NS
    if PRIO == "C":
        a("s_setprio 2")
    a(f"s_mov_b32 s44, {sl*SA}")
    a(f"s_mov_b32 s45, {sl*SB}")
    a("s_mov_b32 s46, 0")
    for j in range(2):
        a(f"v_add_u32 v{V_AA+j}, {sl*SA}, v{V_AB+j}")
    for j in range(nb_):
        a(f"v_add_u32 v{V_BA+j}, {sl*SB}, v{V_BB+j}")
    trk = LgkmTracker(a)
    pend = [r for nb in (0, 1, 2) for r in rd_b(btype, nb, 0)]
    order = []
    for mb in range(4):
        for nb in range(3):
            if pend:
                order.append(pend.pop(0))
        order += rd_a(mb, 0)
    for t, ins in order:
        trk.issue(t, ins)
    a.label(f"{pfx}_loop")
    entry_state = list(trk.out)
    half(a, trk, btype, 0, None, 0)
    half(a, trk, btype, 1, 1, 0)
    half(a, trk, btype, 0, None, 1)
    a(f"""
    s_add_u32 s44, s44, {SA}
    s_add_u32 s45, s45, {SB}
    s_cmp_ge_u32 s44, {SA*NS}
    s_cselect_b32 s44, 0, s44
    s_cselect_b32 s45, 0, s45
    """)
    trk.drain()
    for j in range(2):
        a(f"v_add_u32 v{V_AA+j}, s44, v{V_AB+j}")
    for j in range(nb_):
        a(f"v_add_u32 v{V_BA+j}, s45, v{V_BB+j}")
    if hook:
        a("s_cmp_lg_u32 s46, 3")
        a(f"s_cbranch_scc1 {pfx}_nb")
        a("s_waitcnt vmcnt(0)")
        a("s_barrier")
        a("s_cmp_lg_u32 s3, 0")
        a(f"s_cbranch_scc1 {pfx}_ab")
        a("s_cmp_eq_u32 s90, -1")
        a(f"s_cbranch_scc1 {pfx}_ab")
        if WBL2:
            a("buffer_wbl2 sc1")
        else:
            signal(a, 90)
        a(f"s_branch {pfx}_ab")
        a.label(f"{pfx}_nb")
        if WBL2:
            a("s_cmp_lg_u32 s46, 6")
            a(f"s_cbranch_scc1 {pfx}_nb2")
            a("s_cmp_lg_u32 s3, 0")
            a(f"s_cbranch_scc1 {pfx}_nb2")
            a("s_cmp_eq_u32 s90, -1")
            a(f"s_cbranch_scc1 {pfx}_nb2")
            a("s_waitcnt vmcnt(0)")
            signal(a, 90)
            a.label(f"{pfx}_nb2")
    a("s_barrier")
    if hook:
        a.label(f"{pfx}_ab")
    half(a, trk, btype, 1, 0, 1)
    assert trk.out == entry_state, (trk.out, entry_state)
    a(f"""
    s_add_u32 s46, s46, 1
    s_cmp_lt_u32 s46, {nsteps}
    s_cbranch_scc1 {pfx}_loop
    s_waitcnt lgkmcnt(0)
    s_nop 15
    """)
    if PRIO == "C":
        a("s_setprio 0")


def voff_ntype(a, stride, vb):
    for p in range(384):
        assert (p * 2731) >> 16 == p // 24
    a("v_and_b32 v60, 63, v0")
    for b in range(6):
        a(f"""
        v_add_u32 v61, {64*b}, v60
        v_mul_u32_u24 v62, 2731, v61
        v_lshrrev_b32 v62, 16, v62
        v_mul_u32_u24 v63, 24, v62
        v_sub_u32 v61, v61, v63
        v_and_b32 v63, 2, v62
        v_lshlrev_b32 v63, 1, v63
        v_xor_b32 v61, v61, v63
        v_lshrrev_b32 v63, 2, v62
        v_and_b32 v63, 2, v63
        v_xor_b32 v61, v61, v63
        v_mul_u32_u24 v62, {stride}, v62
        v_lshl_add_u32 v{vb+b}, v61, 4, v62
        """)


def zero_acc(a):
    for i in range(96):
        a(f"v_mov_b32 v{ACC+i}, 0")


def loader_loop(a, pfx, L, slot_bytes, ring_base, issue_fn, first_extra_barrier, hold=None):
    a("s_mov_b32 s50, 0")
    a(f"s_mov_b32 s51, {ring_base}")
    a(f"s_mov_b32 s52, {-NS}")
    a.label(f"{pfx}_loop")
    a("s_cmp_lt_i32 s52, -1")
    a(f"s_cbranch_scc1 {pfx}_iss0")
    if first_extra_barrier:
        a("s_cmp_lg_i32 s52, -1")
        a(f"s_cbranch_scc1 {pfx}_nx")
        a("s_barrier")
        a.label(f"{pfx}_nx")
    a("s_sub_i32 s53, s50, s52")
    for c in range(NS - 2, 0, -1):
        a(f"s_cmp_ge_i32 s53, {c+2}")
        a(f"s_cbranch_scc1 {pfx}_w{c}")
    a("s_waitcnt vmcnt(0)")
    a(f"s_branch {pfx}_bar")
    for c in range(1, NS - 1):
        a.label(f"{pfx}_w{c}")
        a(f"s_waitcnt vmcnt({c*L})")
        if c != NS - 2:
            a(f"s_branch {pfx}_bar")
    a.label(f"{pfx}_bar")
    a("s_barrier")
    a.label(f"{pfx}_iss0")
    a(f"s_add_i32 s43, s52, {NS}")
    if hold:
        a(f"s_cmp_ge_i32 s52, {hold[0]}")
        a(f"s_cselect_b32 s42, {hold[2]}, s43")
        a(f"s_cmp_le_i32 s52, {hold[1]}")
        a("s_cselect_b32 s43, s42, s43")
    a(f"s_sub_u32 s42, s{S_NT}, 1")
    a("s_min_i32 s43, s43, s42")
    a.label(f"{pfx}_iss")
    a("s_cmp_gt_i32 s50, s43")
    a(f"s_cbranch_scc1 {pfx}_skip")
    issue_fn()
    a("s_add_u32 s50, s50, 1")
    a(f"s_add_u32 s51, s51, {slot_bytes}")
    a(f"s_cmp_ge_u32 s51, {ring_base + NS*slot_bytes}")
    a(f"s_cselect_b32 s51, {ring_base}, s51")
    a(f"s_branch {pfx}_iss")
    a.label(f"{pfx}_skip")
    a(f"""
    s_add_i32 s52, s52, 1
    s_cmp_lt_i32 s52, s{S_NT}
    s_cbranch_scc1 {pfx}_loop
    s_endpgm
    """)


def issue_k(a, nq, stride, srdr, ve, flags=""):
    for q in range(nq):
        a(f"s_add_u32 m0, s58, {q*1024}")
        a(f"s_add_u32 s54, s57, {q*8*stride}")
        a(f"buffer_load_dwordx4 v{ve+1 if q & 1 else ve}, s[{srdr}:{srdr+3}], s54 offen {flags} lds")


def issue_n(a, stride, srdr, vb, flags=""):
    for aa in range(2):
        for b in range(6):
            a(f"s_add_u32 m0, s58, {(6*aa+b)*1024}")
            a(f"s_add_u32 s54, s57, {aa*16*stride}")
            a(f"buffer_load_dwordx4 v{vb+b}, s[{srdr}:{srdr+3}], s54 offen {flags} lds")


def g2_kk(a):
    a(f"""
    s_sub_u32 s62, s50, 18
    s_mul_i32 s63, s{S_SPLIT}, 13
    s_cmp_lt_u32 s62, s{S_NF}
    s_cbranch_scc1 1f
    s_cmp_lt_u32 s62, s{S_NR}
    s_cbranch_scc1 2f
    s_sub_u32 s62, s62, s{S_NR}
    s_mul_i32 s63, s{S_SPLIT}, 9
    s_add_u32 s63, s63, 91
    s_branch 1f
    """)
    a.lines.append("2:")
    a(f"""
    s_sub_u32 s62, s62, s{S_NF}
    s_mul_i32 s63, s{S_SPLIT}, 5
    s_add_u32 s63, s63, 64
    s_cmp_eq_u32 s{S_SPLIT}, 4
    s_addc_u32 s63, s63, 0
    """)
    a.lines.append("1:")
    a("s_add_u32 s62, s62, s63")


def ws_touch_setup(a):
    a(f"""
    v_and_b32 v162, 63, v0
    s_mul_i32 s40, s{S_NT2}, 43
    v_add_u32 v163, s40, v162
    s_lshl_b32 s40, s{S_MT2}, 7
    v_add_u32 v161, s40, v163
    v_lshlrev_b32 v161, 12, v161
    v_mov_b32 v164, 0x7f000000
    v_cmp_gt_u32 vcc, 43, v162
    s_nop 1
    v_cndmask_b32 v161, v164, v161, vcc
    v_cmp_gt_u32 vcc, 128, v163
    s_nop 1
    v_cndmask_b32 v161, v164, v161, vcc
    s_mov_b32 s{SRD_C+2}, {PANEL}
    s_mov_b32 s{SRD_C+3}, 0x00020000
    """)


def ws_touch(a, j, wave):
    lb = a.new("tch")
    a(f"""
    s_cmp_lg_u32 s3, {wave}
    s_cbranch_scc1 {lb}
    s_cmp_le_u32 s{S_NF}, {j}
    s_cbranch_scc1 {lb}
    s_mul_i32 s40, s{S_SPLIT}, 13
    s_add_u32 s40, s40, {j}
    s_cmp_lt_u32 s40, 32
    s_cselect_b32 s{SRD_C}, s{S_WSRE}, s{S_WSIM}
    s_cselect_b32 s{SRD_C+1}, s{S_WSRE+1}, s{S_WSIM+1}
    s_and_b32 s{SRD_C+1}, s{SRD_C+1}, 0xffff
    s_and_b32 s40, s40, 31
    s_lshl_b32 s40, s40, 7
    buffer_load_dword v160, v161, s[{SRD_C}:{SRD_C+3}], s40 offen
    """)
    a.label(lb)


def w2_touch(a):
    for p in range(64):
        assert (p * 5462) >> 16 == p // 12 and ((p % 12) * 21846) >> 16 == (p % 12) // 3
    lb = a.new("w2t")
    srd(a, SRD_C, S_W2, W2_BYTES)
    a(f"""
    s_cmp_ge_u32 s3, 7
    s_cbranch_scc1 {lb}
    v_and_b32 v162, 63, v0
    v_mul_u32_u24 v163, 5462, v162
    v_lshrrev_b32 v163, 16, v163
    v_mul_u32_u24 v164, 12, v163
    v_sub_u32 v164, v162, v164
    v_mul_u32_u24 v165, 21846, v164
    v_lshrrev_b32 v165, 16, v165
    v_mul_u32_u24 v166, 3, v165
    v_sub_u32 v166, v164, v166
    s_sub_u32 s40, s3, 4
    s_mul_i32 s40, s40, 5
    v_add_u32 v163, s40, v163
    s_sub_u32 s44, s{S_N2}, s{S_NF}
    v_cmp_gt_u32 vcc, s44, v163
    v_cmp_gt_u32 s[44:45], 60, v162
    s_mul_i32 s40, s{S_SPLIT}, 14
    s_cmp_eq_u32 s{S_SPLIT}, 4
    s_addc_u32 s40, s40, 0
    s_and_b64 vcc, vcc, s[44:45]
    v_add_u32 v163, s40, v163
    v_lshlrev_b32 v163, 6, v163
    s_lshl_b32 s40, s{S_MT2}, 2
    v_add3_u32 v163, v163, v165, s40
    v_mul_u32_u24 v163, 1152, v163
    v_lshl_add_u32 v163, v166, 7, v163
    v_mov_b32 v164, 0x7f000000
    v_cndmask_b32 v163, v164, v163, vcc
    s_mul_i32 s40, s{S_NT2}, 384
    buffer_load_dword v160, v163, s[{SRD_C}:{SRD_C+3}], s40 offen
    """)
    a.label(lb)


def gen_kernel(a):
    name = NAME + "_kernel"
    a.lines.append(f".globl {name}")
    a.lines.append(".p2align 8")
    a.lines.append(f".type {name},@function")
    a.label(name)
    a(f"""
    s_cmp_ge_u32 s2, {NWG}
    s_cbranch_scc1 K_done
    """)
    stamp(a, 0)
    a(f"""
    s_load_dwordx8 s[4:11], s[0:1], 0
    s_load_dwordx2 s[12:13], s[0:1], 32
    s_load_dwordx4 s[16:19], s[0:1], 48
    s_load_dwordx4 s[20:23], s[0:1], 64
    s_load_dwordx2 s[24:25], s[0:1], 80
    v_lshrrev_b32 v1, 6, v0
    s_and_b32 s33, s2, 7
    s_mul_i32 s33, s33, 30
    s_lshr_b32 s34, s2, 3
    v_readfirstlane_b32 s3, v1
    s_add_u32 s{S_L}, s33, s34
    s_lshr_b32 s{S_NT1}, s{S_L}, 3
    s_and_b32 s{S_MT1}, s{S_L}, 7
    s_cmp_ge_u32 s{S_L}, 120
    s_cselect_b32 s40, 120, 0
    s_cselect_b32 s41, 8, 0
    s_sub_u32 s40, s{S_L}, s40
    s_lshr_b32 s{S_N1}, s40, 3
    s_and_b32 s{S_M}, s40, 7
    s_add_u32 s{S_M}, s{S_M}, s41
    s_mul_i32 s{S_SPLIT}, s{S_L}, 1366
    s_lshr_b32 s{S_SPLIT}, s{S_SPLIT}, 16
    s_mul_i32 s40, s{S_SPLIT}, 48
    s_sub_u32 s{S_TILE}, s{S_L}, s40
    s_mul_i32 s{S_MT2}, s{S_TILE}, 21846
    s_lshr_b32 s{S_MT2}, s{S_MT2}, 16
    s_mul_i32 s40, s{S_MT2}, 3
    s_sub_u32 s{S_NT2}, s{S_TILE}, s40
    s_cmp_eq_u32 s{S_SPLIT}, 4
    s_cselect_b32 s{S_NF}, 12, 13
    s_cmp_eq_u32 s{S_SPLIT}, 3
    s_cselect_b32 s{S_N2}, 28, 27
    s_add_u32 s{S_NT}, s{S_N2}, 18
    s_sub_u32 s{S_NR}, s{S_N2}, 9
    s_waitcnt lgkmcnt(0)
    """)
    srd(a, SRD_DBG, S_DBG, 256)
    srd_off(a, SRD_F, S_WS, WS_F, F_BYTES)
    a(f"""
    s_or_b32 s40, s2, s3
    s_cmp_lg_u32 s40, 0
    s_cbranch_scc1 K_nopub
    s_memrealtime s[40:41]
    s_waitcnt lgkmcnt(0)
    s_or_b32 s40, s40, 1
    v_mov_b32 v60, s40
    v_mov_b32 v61, s41
    v_mov_b32 v63, 0
    s_mov_b64 exec, 1
    buffer_store_dwordx2 v[60:61], v63, s[{SRD_DBG}:{SRD_DBG+3}], 0 offen sc1
    s_mov_b64 exec, -1
    """)
    a.label("K_nopub")
    a("s_cmp_ge_u32 s3, 8")
    a("s_cbranch_scc1 K_loader")
    a("s_and_b32 s40, s3, 3")
    a(f"s_lshr_b32 s{S_WM}, s40, 1")
    a(f"s_and_b32 s{S_WN}, s40, 1")
    a("s_cmp_ge_u32 s3, 4")
    a("s_cbranch_scc1 K_g1")
    a("s_cmp_ge_u32 s3, 3")
    a("s_cbranch_scc1 K_lnskip")
    ln_phase(a)
    a.label("K_lnskip")
    a("s_barrier")
    a("s_cmp_lg_u32 s3, 0")
    a("s_cbranch_scc1 K_lnsig")
    get_nonce(a)
    a(f"s_lshl_b32 s41, s{S_MT1}, 8")
    a(f"s_lshl_b32 s40, s{S_NT1}, 3")
    a("s_add_u32 s41, s41, s40")
    a(f"s_add_u32 s41, s41, {C_LN*256}")
    signal(a, 41)
    a.label("K_lnsig")
    stamp(a, 1)
    zero_acc(a)
    a(f"s_cmp_ge_u32 s{S_N1}, 6")
    a("s_cbranch_scc1 T1_KN")
    consumer_addr_setup(a, "NK")
    a("s_barrier")
    stamp(a, 2)
    cons_loop(a, "T1nk", "NK", 9, 0)
    a("s_branch T1_done")
    a.label("T1_KN")
    consumer_addr_setup(a, "KN")
    a("s_barrier")
    stamp(a, 2)
    cons_loop(a, "T1kn", "KN", 9, 0)
    a.label("T1_done")
    stamp(a, 3)
    a(f"s_mov_b32 s46, s{S_N1}")
    a("s_branch K_epi")
    a.label("K_g1")
    if WTOUCH == 2:
        a("s_barrier")
    if WTOUCH:
        srd(a, SRD_C, S_W1, W1_BYTES)
        a(f"""
        v_subrev_u32 v56, 256, v0
        v_mul_u32_u24 v57, 21846, v56
        v_lshrrev_b32 v57, 16, v57
        v_mul_u32_u24 v59, 3, v57
        v_sub_u32 v59, v56, v59
        s_mul_i32 s40, s{S_M}, 36
        v_add_u32 v57, s40, v57
        v_mul_u32_u24 v57, 9216, v57
        v_lshl_add_u32 v57, v59, 7, v57
        v_mov_b32 v59, 0x7f000000
        v_cmp_gt_u32 vcc, 108, v56
        s_add_u32 s40, s{S_N1}, 9
        s_mul_i32 s40, s40, 384
        v_cndmask_b32 v57, v59, v57, vcc
        buffer_load_dword v160, v57, s[{SRD_C}:{SRD_C+3}], s40 offen
        s_cmp_lt_u32 s{S_N1}, 6
        s_cbranch_scc1 K_wt2
        s_sub_u32 s40, s{S_N1}, 6
        s_mul_i32 s40, s40, 384
        buffer_load_dword v160, v57, s[{SRD_C}:{SRD_C+3}], s40 offen
        s_branch K_wt3
        """)
        a.label("K_wt2")
        a(f"""
        s_cmp_ge_u32 s{S_N1}, 3
        s_cselect_b32 s60, s{S_WDIM}, s{S_WDRE}
        s_cselect_b32 s61, s{S_WDIM+1}, s{S_WDRE+1}
        s_cselect_b32 s40, 3, 0
        s_sub_u32 s40, s{S_N1}, s40
        s_mul_i32 s40, s40, 192
        s_mul_i32 s41, s{S_M}, 12
        s_add_u32 s40, s40, s41
        s_mul_i32 s40, s40, 1152
        v_lshlrev_b32 v57, 7, v56
        v_cndmask_b32 v57, v59, v57, vcc
        """)
        srd(a, SRD_C, 60, WD_BYTES)
        a(f"buffer_load_dword v160, v57, s[{SRD_C}:{SRD_C+3}], s40 offen")
        a.label("K_wt3")
    if WTOUCH != 2:
        a("s_barrier")
    zero_acc(a)
    consumer_addr_setup(a, "KN")
    a("s_barrier")
    if TOUCH:
        ws_touch_setup(a)
        sched = {1: [0], 2: [1], 4: [2], 5: [3], 7: [4], 8: [5]}
        for t in range(9):
            for j in sched.get(t, []):
                ws_touch(a, j, 4 + (j & 3))
            a("s_barrier")
    else:
        for _ in range(9):
            a("s_barrier")
    cons_loop(a, "T2", "KN", 9, 9)
    if TOUCH:
        w2_touch(a)
    a(f"s_add_u32 s46, s{S_N1}, 15")
    a.label("K_epi")
    srd_off(a, SRD_A, S_WS, WS_AB, AB_BYTES)
    srd_off(a, SRD_B, S_WS, WS_H, 3 * PANEL)
    a(f"""
    s_lshl_b32 s49, s{S_M}, 7
    s_cmp_ge_u32 s46, 6
    s_cbranch_scc1 E_h
    s_mov_b32 s43, 0x80008000
    s_cmp_ge_u32 s46, 3
    s_cselect_b32 s42, 0x80008000, 0
    s_cselect_b32 s41, 2048, 0
    s_cselect_b32 s40, 3, 0
    s_add_u32 s49, s49, s41
    s_sub_u32 s40, s46, s40
    s_mul_i32 s48, s40, 192
    s_mov_b32 s47, 1152
    s_lshl_b32 s41, s40, 8
    s_lshl_b32 s40, s{S_M}, 3
    s_add_u32 s41, s41, s40
    s_cmp_ge_u32 s46, 3
    s_cselect_b32 s40, 128, 0
    s_add_u32 s41, s41, s40
    s_add_u32 s41, s41, {C_AB*256}
    s_branch E_go
    """)
    a.label("E_h")
    a(f"""
    s_mov_b32 s42, 0
    s_mov_b32 s43, 0
    s_mov_b32 s{SRD_A}, s{SRD_B}
    s_mov_b32 s{SRD_A+1}, s{SRD_B+1}
    s_mov_b32 s{SRD_A+2}, s{SRD_B+2}
    s_sub_u32 s40, s46, 6
    s_mul_i32 s48, s40, 192
    s_mov_b32 s47, 4096
    s_lshl_b32 s41, s{S_M}, 8
    s_lshl_b32 s40, s40, 3
    s_add_u32 s41, s41, s40
    s_add_u32 s41, s41, {C_H*256}
    """)
    a.label("E_go")
    a(f"""
    s_lshl_b32 s40, s{S_WM}, 6
    s_add_u32 s49, s49, s40
    s_mul_i32 s40, s{S_WN}, 96
    s_add_u32 s48, s48, s40
    v_and_b32 v60, 15, v0
    v_add_u32 v60, s49, v60
    v_mul_lo_u32 v60, v60, s47
    v_bfe_u32 v61, v0, 4, 1
    v_bfe_u32 v62, v0, 5, 1
    v_lshlrev_b32 v61, 4, v61
    v_lshl_add_u32 v61, v62, 3, v61
    v_add_u32 v61, s48, v61
    """)
    for ni in range(3):
        a(f"""
        v_add_u32 v62, {32*ni}, v61
        v_lshrrev_b32 v63, 11, v62
        v_lshlrev_b32 v63, 23, v63
        v_and_b32 v62, 2047, v62
        v_add_u32 v63, v60, v63
        v_lshl_add_u32 v{2+ni}, v62, 1, v63
        """)
    for mi in range(2):
        a(f"s_mul_i32 s44, s47, {32*mi}")
        a(f"s_mul_i32 s45, s47, {32*mi+16}")
        for ni in range(3):
            c = ACC + 16 * (3 * mi + ni)
            t = 20 + 8 * (ni & 1)
            for r in range(8):
                a(f"v_cvt_pk_bf16_f32 v{t+r}, v{c+2*r}, v{c+2*r+1}")
            for r in range(8):
                a(f"v_pk_max_i16 v{t+r}, v{t+r}, s43")
            for r in range(8):
                a(f"v_xor_b32 v{t+r}, s42, v{t+r}")
            a("s_nop 1")
            a(f"v_permlane16_swap_b32 v{t}, v{t+2}")
            a(f"v_permlane16_swap_b32 v{t+1}, v{t+3}")
            a(f"v_permlane16_swap_b32 v{t+4}, v{t+6}")
            a(f"v_permlane16_swap_b32 v{t+5}, v{t+7}")
            if E1ST != "none":
                a(f"buffer_store_dwordx4 v[{t}:{t+3}], v{2+ni}, s[{SRD_A}:{SRD_A+3}], s44 offen {E1ST}")
                a(f"buffer_store_dwordx4 v[{t+4}:{t+7}], v{2+ni}, s[{SRD_A}:{SRD_A+3}], s45 offen {E1ST}")
            if ni < 2 and SPREAD:
                lb = a.new("Esk")
                a("s_cmp_lt_u32 s46, 6")
                a(f"s_cbranch_scc1 {lb}")
                a("s_barrier")
                a.label(lb)
        a("s_barrier")
    a("s_mov_b32 s90, -1")
    if SPREAD:
        a(f"""
        s_cmp_ge_u32 s3, 4
        s_cbranch_scc1 E_na
        s_cmp_lt_u32 s46, 6
        s_cbranch_scc1 E_na
        s_mov_b32 s90, s41
        s_mov_b32 s45, 3
        s_branch E_g0
        """)
        a.label("E_na")
    a(f"""
    s_mov_b32 s44, 5
    s_cmp_lt_u32 s46, 6
    s_cselect_b32 s44, 2, s44
    s_cmp_ge_u32 s3, 4
    s_cselect_b32 s44, {NB1}, s44
    s_sub_u32 s45, 6, s44
    """)
    a.label("E_w1")
    a("s_barrier")
    a("s_sub_u32 s44, s44, 1")
    a("s_cmp_lg_u32 s44, 0")
    a("s_cbranch_scc1 E_w1")
    a("s_waitcnt vmcnt(0)")
    a("s_barrier")
    a("s_and_b32 s40, s3, 3")
    a("s_cmp_lg_u32 s40, 0")
    a("s_cbranch_scc1 E_sig")
    a("s_cmp_eq_u32 s3, 0")
    a("s_cbranch_scc1 E_sig0")
    get_nonce(a)
    a.label("E_sig0")
    if WBL2:
        a("buffer_wbl2 sc1")
        a("s_waitcnt vmcnt(0)")
    signal(a, 41)
    a.label("E_sig")
    a("s_cmp_lt_u32 s3, 4")
    a("s_cbranch_scc1 E_g0")
    a("s_endpgm")
    a.label("E_g0")
    if TOUCH:
        ws_touch_setup(a)
        for j in range(6, 13):
            ws_touch(a, j, (j + 3) & 3)
    zero_acc(a)
    consumer_addr_setup(a, "KN")
    stamp(a, 4)
    a.label("E_w2")
    a("s_barrier")
    a("s_sub_u32 s45, s45, 1")
    a("s_cmp_lg_u32 s45, 0")
    a("s_cbranch_scc1 E_w2")
    stamp(a, 5)
    cons_loop(a, "G2c", "KN", f"s{S_N2}", 18, SPREAD)
    stamp(a, 6)
    srd_off(a, SRD_A, S_WS, WS_P, P_BYTES)
    a(f"""
    s_mul_i32 s42, s{S_L}, {P_TILE}
    s_mul_i32 s41, s3, {PW}
    s_add_u32 s42, s42, s41
    v_and_b32 v7, 63, v0
    v_lshlrev_b32 v7, 4, v7
    s_add_u32 s43, s3, 5
    s_sub_u32 s43, s43, s{S_SPLIT}
    """)
    for i in range(6):
        sk = a.new("pst")
        a(f"s_add_u32 s40, s43, {i}")
        a("s_cmp_eq_u32 s40, 5")
        a(f"s_cbranch_scc1 {sk}")
        a("s_cmp_eq_u32 s40, 10")
        a(f"s_cbranch_scc1 {sk}")
        a(f"s_add_u32 s41, s42, {i*PB}")
        t = 20 + 8 * (i & 1)
        if PBF16:
            for r in range(8):
                a(f"v_cvt_pk_bf16_f32 v{t+r}, v{ACC+16*i+2*r}, v{ACC+16*i+2*r+1}")
            a(f"buffer_store_dwordx4 v[{t}:{t+3}], v7, s[{SRD_A}:{SRD_A+3}], s41 offen sc1")
            a(f"buffer_store_dwordx4 v[{t+4}:{t+7}], v7, s[{SRD_A}:{SRD_A+3}], s41 offen offset:1024 sc1")
        else:
            for q in range(4):
                c = ACC + 16 * i + 4 * q
                a(f"buffer_store_dwordx4 v[{c}:{c+3}], v7, s[{SRD_A}:{SRD_A+3}], s41 offen offset:{q*1024} sc1")
        a.label(sk)
    a("s_waitcnt vmcnt(0)")
    a("s_barrier")
    a(f"""
    s_lshl_b32 s41, s{S_TILE}, 8
    s_add_u32 s41, s41, {C_P*256}
    s_lshl_b32 s47, s{S_SPLIT}, 3
    s_add_u32 s47, s47, s41
    s_cmp_lg_u32 s3, 0
    s_cbranch_scc1 K_psig
    """)
    signal(a, 47)
    a("s_branch K_psig2")
    a.label("K_psig")
    get_nonce(a)
    a.label("K_psig2")
    srd(a, SRD_B, S_X, XN_BYTES)
    srd(a, SRD_C, S_OUT, XN_BYTES)
    a(f"""
    s_lshl_b32 s49, s{S_MT2}, 7
    s_lshl_b32 s40, s{S_WM}, 6
    s_add_u32 s49, s49, s40
    s_mul_i32 s48, s{S_NT2}, 384
    s_mul_i32 s40, s{S_WN}, 192
    s_add_u32 s48, s48, s40
    v_and_b32 v3, 15, v0
    v_bfe_u32 v4, v0, 4, 2
    v_add_u32 v3, s49, v3
    v_mul_u32_u24 v3, 1152, v3
    v_add_u32 v3, s48, v3
    v_lshl_add_u32 v5, v4, 3, v3
    v_bfe_u32 v2, v0, 4, 1
    v_lshl_add_u32 v6, v2, 5, v3
    v_bfe_u32 v2, v0, 5, 1
    v_lshl_add_u32 v6, v2, 4, v6
    s_mul_i32 s42, s{S_TILE}, {P_TILE}
    s_mul_i32 s40, s3, {PW}
    s_add_u32 s42, s42, s40
    s_mov_b32 s46, 5
    """)
    poll(a, 41, 0x1f)
    stamp(a, 7)
    a.label("F_loop")
    a("s_sub_i32 s45, s46, s43")
    a("s_cmp_lt_i32 s45, 0")
    a("s_cbranch_scc1 F_next")
    a("s_cmp_gt_i32 s45, 5")
    a("s_cbranch_scc1 F_next")
    a(f"""
    s_cmp_ge_u32 s45, 3
    s_cselect_b32 s40, 3, 0
    s_cselect_b32 s47, {32*1152}, 0
    s_sub_u32 s40, s45, s40
    s_lshl_b32 s40, s40, 6
    s_add_u32 s47, s47, s40
    s_mul_i32 s48, s45, {PB}
    s_add_u32 s48, s48, s42
    """)
    XR, PR, W = 160, 8, 40
    a(f"s_add_u32 s49, s47, {16*1152}")
    for gq in range(4):
        a(f"buffer_load_dwordx2 v[{XR+2*gq}:{XR+1+2*gq}], v5, s[{SRD_B}:{SRD_B+3}], s{49 if gq >= 2 else 47} offen offset:{(gq&1)*32}")
    def src_addr(d):
        a(f"""
        s_add_u32 s44, s{S_SPLIT}, {d}
        s_sub_u32 s40, s44, 5
        s_cmp_ge_u32 s44, 5
        s_cselect_b32 s44, s40, s44
        s_mul_i32 s44, s44, {48*P_TILE}
        s_add_u32 s44, s44, s48
        """)

    def movs():
        for i in range(6):
            a(f"s_cmp_lg_u32 s45, {i}")
            a(f"s_cbranch_scc1 F_m{i}")
            for r in range(16):
                a(f"v_mov_b32 v{W+r}, v{ACC+16*i+r}")
            a.label(f"F_m{i}")
    if PBF16:
        for d in range(1, 5):
            r0 = PR + 8 * (d - 1)
            src_addr(d)
            a(f"buffer_load_dwordx4 v[{r0}:{r0+3}], v7, s[{SRD_A}:{SRD_A+3}], s44 offen sc1")
            a(f"buffer_load_dwordx4 v[{r0+4}:{r0+7}], v7, s[{SRD_A}:{SRD_A+3}], s44 offen offset:1024 sc1")
        movs()
        for d in range(1, 5):
            a(f"s_waitcnt vmcnt({2*(4-d)})")
            for r in range(8):
                src = PR + 8 * (d - 1) + r
                a(f"""
                v_lshlrev_b32 v56, 16, v{src}
                v_and_b32 v57, 0xffff0000, v{src}
                v_add_f32 v{W+2*r}, v{W+2*r}, v56
                v_add_f32 v{W+2*r+1}, v{W+2*r+1}, v57
                """)
    else:
        for half in range(2):
            for dd in range(2):
                src_addr(1 + 2 * half + dd)
                for q in range(4):
                    r0 = PR + 16 * dd + 4 * q
                    a(f"buffer_load_dwordx4 v[{r0}:{r0+3}], v7, s[{SRD_A}:{SRD_A+3}], s44 offen offset:{q*1024} sc1")
            if half == 0:
                movs()
            for dd in range(2):
                a(f"s_waitcnt vmcnt({4 if dd == 0 else 0})")
                for r in range(16):
                    a(f"v_add_f32 v{W+r}, v{W+r}, v{PR+16*dd+r}")
    for gq in range(4):
        c = W + 4 * gq
        a(f"""
        v_lshlrev_b32 v56, 16, v{XR+2*gq}
        v_and_b32 v57, 0xffff0000, v{XR+2*gq}
        v_lshlrev_b32 v58, 16, v{XR+1+2*gq}
        v_and_b32 v59, 0xffff0000, v{XR+1+2*gq}
        v_add_f32 v{c}, v{c}, v56
        v_add_f32 v{c+1}, v{c+1}, v57
        v_add_f32 v{c+2}, v{c+2}, v58
        v_add_f32 v{c+3}, v{c+3}, v59
        v_cvt_pk_bf16_f32 v{8+2*gq}, v{c}, v{c+1}
        v_cvt_pk_bf16_f32 v{9+2*gq}, v{c+2}, v{c+3}
        """)
    a(f"""
    s_nop 1
    v_permlane16_swap_b32 v8, v10
    v_permlane16_swap_b32 v9, v11
    v_permlane16_swap_b32 v12, v14
    v_permlane16_swap_b32 v13, v15
    buffer_store_dwordx4 v[8:11], v6, s[{SRD_C}:{SRD_C+3}], s47 offen {OUTF}
    buffer_store_dwordx4 v[12:15], v6, s[{SRD_C}:{SRD_C+3}], s49 offen {OUTF}
    s_nop 1
    """)
    a.label("F_next")
    a("s_add_u32 s46, s46, 5")
    a("s_cmp_le_u32 s46, 10")
    a("s_cbranch_scc1 F_loop")
    if STAMP:
        a("s_waitcnt vmcnt(0)")
    flush_stamps(a, 9)
    a("s_endpgm")

    a.label("K_loader")
    if PRIO == "L":
        a("s_setprio 2")
    a("s_cmp_ge_u32 s3, 10")
    a("s_cbranch_scc1 K_loadB")
    srd_off(a, SRD_B, S_WS, WS_XN, XN_BYTES)
    voff_ktype(a, 1152, 1, 2)
    voff_ktype(a, 4096, 3, 4)
    a(f"""
    s_sub_u32 s59, s3, 8
    s_lshl_b32 s41, s{S_M}, 7
    s_lshl_b32 s56, s59, 6
    s_add_u32 s41, s41, s56
    s_mul_i32 s55, s41, 1152
    s_lshl_b32 s41, s{S_MT2}, 7
    s_add_u32 s41, s41, s56
    s_lshl_b32 s49, s41, 12
    s_lshl_b32 s56, s59, 13
    s_add_u32 s60, s{S_WS}, {WS_H}
    s_addc_u32 s61, s{S_WS+1}, 0
    s_mov_b32 s{SRD_A+2}, {PANEL}
    s_mov_b32 s{SRD_A+3}, 0x00020000
    s_barrier
    s_lshr_b32 s41, s{S_M}, 1
    s_lshl_b32 s41, s41, 8
    s_add_u32 s41, s41, {C_LN*256}
    """)
    get_nonce(a)
    poll(a, 41, 0x3fffffff)
    a(f"""
    s_mov_b32 s48, 0x3
    s_cmp_eq_u32 s{S_SPLIT}, 1
    s_cselect_b32 s48, 0xe, s48
    s_cmp_eq_u32 s{S_SPLIT}, 2
    s_cselect_b32 s48, 0x18, s48
    s_cmp_eq_u32 s{S_SPLIT}, 3
    s_cselect_b32 s48, 0x60, s48
    s_cmp_eq_u32 s{S_SPLIT}, 4
    s_cselect_b32 s48, 0x180, s48
    s_mul_i32 s46, s{S_SPLIT}, 3
    s_lshl_b32 s46, 0xe00, s46
    s_lshl_b32 s47, s{S_MT2}, 8
    s_add_u32 s47, s47, {C_H*256}
    """)

    def issueA():
        a("s_add_u32 s58, s51, s56")
        a("s_cmp_ge_u32 s50, 18")
        a("s_cbranch_scc1 LA_g2")
        a("""
        s_sub_u32 s62, s50, 9
        s_cmp_ge_u32 s50, 9
        s_cselect_b32 s62, s62, s50
        s_lshl_b32 s57, s62, 7
        s_add_u32 s57, s57, s55
        """)
        issue_k(a, 8, 1152, SRD_B, 1, LDF)
        a("s_branch LA_end")
        a.label("LA_g2")
        a(f"s_sub_u32 s62, s50, 18")
        a(f"s_cmp_lg_u32 s62, s{S_NF}")
        a("s_cbranch_scc1 LA_np")
        poll(a, 47, "s48")
        a.label("LA_np")
        a(f"s_sub_u32 s62, s50, 18")
        a(f"s_cmp_lg_u32 s62, s{S_NR}")
        a("s_cbranch_scc1 LA_np2")
        poll(a, 47, "s46")
        a.label("LA_np2")
        g2_kk(a)
        a(f"""
        s_lshr_b32 s63, s62, 5
        s_sub_u32 s41, s63, 2
        s_lshl_b32 s41, s41, 23
        s_add_u32 s{SRD_A}, s60, s41
        s_addc_u32 s{SRD_A+1}, s61, 0
        s_cmp_eq_u32 s63, 0
        s_cselect_b32 s{SRD_A}, s{S_WSRE}, s{SRD_A}
        s_cselect_b32 s{SRD_A+1}, s{S_WSRE+1}, s{SRD_A+1}
        s_cmp_eq_u32 s63, 1
        s_cselect_b32 s{SRD_A}, s{S_WSIM}, s{SRD_A}
        s_cselect_b32 s{SRD_A+1}, s{S_WSIM+1}, s{SRD_A+1}
        s_and_b32 s{SRD_A+1}, s{SRD_A+1}, 0xffff
        s_and_b32 s57, s62, 31
        s_lshl_b32 s57, s57, 7
        s_add_u32 s57, s57, s49
        """)
        issue_k(a, 8, 4096, SRD_A, 3, LDF)
        a.label("LA_end")
    loader_loop(a, "LA", 8, SA, 0, issueA, False)

    a.label("K_loadB")
    a(f"""
    s_sub_u32 s59, s3, 10
    s_cmp_ge_u32 s{S_N1}, 3
    s_cselect_b32 s60, s{S_WDIM}, s{S_WDRE}
    s_cselect_b32 s61, s{S_WDIM+1}, s{S_WDRE+1}
    """)
    srd(a, SRD_B, 60, WD_BYTES)
    srd(a, SRD_C, S_W1, W1_BYTES)
    voff_ktype(a, 1152, 1, 2)
    voff_ntype(a, 9216, 3)
    voff_ntype(a, 1152, 9)
    a(f"""
    s_mul_i32 s56, s59, {32*9216}
    s_add_u32 s41, s{S_N1}, 9
    s_mul_i32 s49, s41, 384
    s_add_u32 s49, s49, s56
    s_sub_u32 s41, s{S_N1}, 6
    s_mul_i32 s55, s41, 384
    s_add_u32 s55, s55, s56
    s_cmp_ge_u32 s{S_N1}, 6
    s_cbranch_scc1 LB_s1
    s_cmp_ge_u32 s{S_N1}, 3
    s_cselect_b32 s41, 3, 0
    s_sub_u32 s41, s{S_N1}, s41
    s_mul_i32 s41, s41, 192
    s_mul_i32 s56, s59, 96
    s_add_u32 s41, s41, s56
    s_mul_i32 s55, s41, 1152
    """)
    a.label("LB_s1")
    a(f"""
    s_mul_i32 s48, s{S_NT2}, 384
    s_mul_i32 s56, s59, {32*1152}
    s_add_u32 s48, s48, s56
    s_mul_i32 s56, s59, 12288
    s_add_u32 s60, s{S_WS}, {WS_AB}
    s_addc_u32 s61, s{S_WS+1}, 0
    s_mov_b32 s{SRD_A+3}, 0x00020000
    """)

    def issueB():
        a("s_add_u32 s58, s51, s56")
        a("s_cmp_ge_u32 s50, 18")
        a("s_cbranch_scc1 LB_g2")
        a("s_cmp_ge_u32 s50, 9")
        a("s_cbranch_scc1 LB_t2")
        a(f"s_cmp_ge_u32 s{S_N1}, 6")
        a("s_cbranch_scc1 LB_t1kn")
        a("s_lshl_b32 s57, s50, 7")
        a("s_add_u32 s57, s57, s55")
        issue_k(a, 12, 1152, SRD_B, 1)
        a("s_branch LB_end")
        a.label("LB_t1kn")
        a(f"s_mul_i32 s57, s50, {64*9216}")
        a("s_add_u32 s57, s57, s55")
        a("s_branch LB_kn")
        a.label("LB_t2")
        a("s_sub_u32 s62, s50, 9")
        a(f"s_mul_i32 s57, s62, {64*9216}")
        a("s_add_u32 s57, s57, s49")
        a.label("LB_kn")
        issue_n(a, 9216, SRD_C, 3)
        a("s_branch LB_end")
        a.label("LB_g2")
        a("s_cmp_lg_u32 s50, 18")
        a("s_cbranch_scc1 LB_n0")
        get_nonce(a)
        a("s_mov_b32 s47, 0")
        a.label("LB_n0")
        g2_kk(a)
        a("s_cmp_ge_u32 s62, 64")
        a("s_cbranch_scc1 LB_np")
        a("s_lshr_b32 s46, s62, 1")
        a("s_bitcmp1_b32 s47, s46")
        a("s_cbranch_scc1 LB_np")
        a("s_mov_b32 s42, s62")
        a(f"s_lshl_b32 s41, s{S_NT2}, 8")
        a(f"s_add_u32 s41, s41, {C_AB*256}")
        a("v_and_b32 v63, 31, v0")
        a("v_lshlrev_b32 v63, 3, v63")
        a("s_mov_b32 s101, 0")
        a.label("LB_pl")
        a("s_add_u32 s101, s101, 1")
        a("s_cmp_ge_u32 s101, 0x40000")
        a("s_cbranch_scc1 LB_pd")
        a(f"buffer_load_dwordx2 v[60:61], v63, s[{SRD_F}:{SRD_F+3}], s41 offen sc1")
        a("s_waitcnt vmcnt(0)")
        a(f"v_cmp_eq_u32 s[62:63], s{g.S_NLO}, v60")
        a(f"v_cmp_eq_u32 vcc, s{g.S_NHI}, v61")
        a("s_nop 1")
        a("s_and_b32 s47, s62, vcc_lo")
        a("s_bitcmp1_b32 s47, s46")
        a("s_cbranch_scc1 LB_pd")
        a("s_sleep 2")
        a("s_branch LB_pl")
        a.label("LB_pd")
        a("s_mov_b32 s62, s42")
        a.label("LB_np")
        a(f"""
        s_sub_u32 s63, s62, 64
        s_cmp_lt_u32 s62, 64
        s_cselect_b32 s63, s62, s63
        s_cselect_b32 s{SRD_A}, s60, s{S_W2}
        s_cselect_b32 s{SRD_A+1}, s61, s{S_W2+1}
        s_mov_b32 s{SRD_A+2}, {W2_BYTES}
        s_cselect_b32 s{SRD_A+2}, {AB_BYTES}, s{SRD_A+2}
        s_and_b32 s{SRD_A+1}, s{SRD_A+1}, 0xffff
        s_mul_i32 s57, s63, {64*1152}
        s_add_u32 s57, s57, s48
        """)
        issue_n(a, 1152, SRD_A, 9, LDF)
        a.label("LB_end")
    loader_loop(a, "LB", 12, SB, LDS_B, issueB, True, HOLD)
    a.label("K_done")
    a("s_endpgm")
    return name


def main():
    a = Asm()
    name = gen_kernel(a)
    head = f"; generated by gen4.py\n; @launch grid=({NWG},1,1) block=(768,1,1) lds={LDS_TOTAL}\n"
    head += '.amdgcn_target "amdgcn-amd-amdhsa--gfx950"\n.text\n'
    tail = f""".section .rodata,"a"
.p2align 6
.amdhsa_kernel {name}
  .amdhsa_next_free_vgpr 168
  .amdhsa_next_free_sgpr 102
  .amdhsa_accum_offset 168
  .amdhsa_group_segment_fixed_size 0
  .amdhsa_kernarg_size 88
  .amdhsa_user_sgpr_count 2
  .amdhsa_user_sgpr_kernarg_segment_ptr 1
  .amdhsa_system_sgpr_workgroup_id_x 1
  .amdhsa_float_denorm_mode_32 3
  .amdhsa_float_denorm_mode_16_64 3
.end_amdhsa_kernel
"""
    open(OUT, "w").write(head + a.text() + tail)


if __name__ == "__main__":
    main()
```

```python
import os
import gen2 as g
from gen2 import (Asm, srd, srd_off, stamp, flush_stamps, get_nonce, signal, poll, ln_phase, frag, reads_for,
                  LgkmTracker, substep, consumer_addr_setup, voff_ktype, voff_ntype,
                  S_X, S_WSRE, S_WSIM, S_WDRE, S_WDIM, S_W1, S_W2, S_OUT, S_DBG, S_WS,
                  S_SPLIT, S_TILE, S_MT2, S_NT2, SRD_DBG, S_L, S_NT1, S_MT1, S_WM, S_WN, SRD_A, SRD_B, SRD_C, SRD_F,
                  WS_XN, WS_AB, WS_H, WS_P, WS_F, F_BYTES, XN_BYTES, AB_BYTES, PANEL, W1_BYTES, W2_BYTES, WD_BYTES,
                  V_AB, V_AA, V_BB, V_BA, FR0, FR1, ACC, NAME, STAMP)

OUT = os.environ.get("OUT", "cdna_kernels/%s.s" % NAME)
TOUCH = int(os.environ.get("TOUCH3", "1"))
NWG = 240
NS = 4
SA, SB = 16384, 24576
LDS_B = NS * SA
g.LDS_B = LDS_B
LDS_TOTAL = LDS_B + NS * SB
WTOUCH = int(os.environ.get("WTOUCH", "1"))
TSTART = int(os.environ.get("TSTART", "0"))
SPREAD = int(os.environ.get("SPREAD", "1"))
WBL2 = int(os.environ.get("WBL2", "0"))
OUTF = os.environ.get("OUTF", "")
PRIO = os.environ.get("PRIO", "")
E1ST = os.environ.get("E1ST", "" if WBL2 else "sc1")
NB1 = int(os.environ.get("NB1", "2" if SPREAD else "6"))
HOLD = (14, 15, 17) if int(os.environ.get("HOLD", "1")) else None
LDF = os.environ.get("LDF", "sc1")
TSPAN = int(os.environ.get("TSPAN", "9"))
PBF16 = int(os.environ.get("PBF16", "1"))
PEL = 2 if PBF16 else 4
P_TILE = 128 * 192 * PEL
PW = P_TILE // 4
PB = PW // 6
P_BYTES = NWG * P_TILE
C_LN, C_AB, C_H, C_P = 0, 8, 16, 32
S_NF, S_N2, S_NT, S_M, S_N1, S_NR = 66, 67, 36, 64, 65, 89


V_AB, V_AA, V_BB, V_BA = 1, 3, 5, 11
FA, FB = 20, 36


def acc_reg(mb, nb):
    return ACC + 16 * (3 * (mb >> 1) + (nb >> 1)) + 4 * (2 * (mb & 1) + (nb & 1))


def consumer_addr_setup(a, btype):
    a(f"""
    v_and_b32 v60, 15, v0
    v_bfe_u32 v61, v0, 4, 2
    v_lshrrev_b32 v63, 1, v60
    s_lshl_b32 s40, s{S_WM}, 6
    v_add_u32 v17, s40, v60
    v_lshlrev_b32 v17, 7, v17
    """)
    for js in range(2):
        a(f"v_add_u32 v18, {4*js}, v61")
        a("v_xor_b32 v18, v18, v63")
        a(f"v_lshl_add_u32 v{V_AB+js}, v18, 4, v17")
    if btype == "NK":
        a(f"""
        s_mul_i32 s40, s{S_WN}, 96
        v_add_u32 v17, s40, v60
        v_lshlrev_b32 v17, 7, v17
        v_add_u32 v17, {LDS_B}, v17
        """)
        for js in range(2):
            a(f"v_add_u32 v18, {4*js}, v61")
            a("v_xor_b32 v18, v18, v63")
            a(f"v_lshl_add_u32 v{V_BB+js}, v18, 4, v17")
    else:
        a(f"""
        v_lshrrev_b32 v18, 2, v60
        v_lshl_add_u32 v18, v61, 3, v18
        v_mul_u32_u24 v18, 384, v18
        v_add_u32 v18, {LDS_B}, v18
        v_and_b32 v19, 1, v60
        v_lshl_add_u32 v18, v19, 3, v18
        v_lshrrev_b32 v19, 3, v60
        v_lshlrev_b32 v19, 2, v19
        v_and_b32 v62, 1, v61
        v_lshl_or_b32 v19, v62, 1, v19
        v_bfe_u32 v62, v60, 1, 1
        s_mul_i32 s40, s{S_WN}, 12
        """)
        for nb in range(6):
            a(f"s_add_u32 s41, s40, {2*nb}")
            a("v_add_u32 v17, s41, v62")
            a("v_xor_b32 v17, v17, v19")
            a(f"v_lshl_add_u32 v{V_BB+nb}, v17, 4, v18")


def rd_a(mb, js):
    d = FA + 4 * mb
    return [(f"A{mb}", f"ds_read_b128 v[{d}:{d+3}], v{V_AA+js} offset:{2048*mb}")]


def rd_b(btype, nb, js):
    d = FB + 4 * nb
    if btype == "NK":
        return [(f"B{nb}", f"ds_read_b128 v[{d}:{d+3}], v{V_BA+js} offset:{2048*nb}")]
    return [(f"B{nb}", f"ds_read_b64_tr_b16 v[{d}:{d+1}], v{V_BA+nb} offset:{32*js*384}"),
            (f"B{nb}", f"ds_read_b64_tr_b16 v[{d+2}:{d+3}], v{V_BA+nb} offset:{(32*js+4)*384}")]


def half(a, trk, btype, h, js_next_for_h1, js_cur):
    if h == 0:
        pend = [r for nb in (3, 4, 5) for r in rd_b(btype, nb, js_cur)]
    else:
        pend = [r for nb in (0, 1, 2) for r in rd_b(btype, nb, js_next_for_h1)]
    k = 0
    for mb in range(4):
        for nb in range(3 * h, 3 * h + 3):
            trk.need([f"A{mb}", f"B{nb}"])
            c = acc_reg(mb, nb)
            a(f"v_mfma_f32_16x16x32_bf16 v[{c}:{c+3}], v[{FB+4*nb}:{FB+4*nb+3}], v[{FA+4*mb}:{FA+4*mb+3}], v[{c}:{c+3}]")
            if pend:
                t, ins = pend.pop(0)
                trk.issue(t, ins)
            k += 1
        if h == 1:
            for t, ins in rd_a(mb, js_next_for_h1):
                trk.issue(t, ins)
    assert not pend


def cons_loop(a, pfx, btype, nsteps, t0, hook=False):
    nb_ = 2 if btype == "NK" else 6
    sl = t0 % NS
    if PRIO == "C":
        a("s_setprio 2")
    a(f"s_mov_b32 s44, {sl*SA}")
    a(f"s_mov_b32 s45, {sl*SB}")
    a("s_mov_b32 s46, 0")
    for j in range(2):
        a(f"v_add_u32 v{V_AA+j}, {sl*SA}, v{V_AB+j}")
    for j in range(nb_):
        a(f"v_add_u32 v{V_BA+j}, {sl*SB}, v{V_BB+j}")
    trk = LgkmTracker(a)
    pend = [r for nb in (0, 1, 2) for r in rd_b(btype, nb, 0)]
    order = []
    for mb in range(4):
        for nb in range(3):
            if pend:
                order.append(pend.pop(0))
        order += rd_a(mb, 0)
    for t, ins in order:
        trk.issue(t, ins)
    a.label(f"{pfx}_loop")
    entry_state = list(trk.out)
    half(a, trk, btype, 0, None, 0)
    half(a, trk, btype, 1, 1, 0)
    half(a, trk, btype, 0, None, 1)
    a(f"""
    s_add_u32 s44, s44, {SA}
    s_add_u32 s45, s45, {SB}
    s_cmp_ge_u32 s44, {SA*NS}
    s_cselect_b32 s44, 0, s44
    s_cselect_b32 s45, 0, s45
    """)
    trk.drain()
    if os.environ.get("FINE") and t0 != 9:
        a("s_memrealtime s[98:99]")
        a(f"s_add_u32 m0, s46, {0 if t0 == 0 else 16}")
        a("s_waitcnt lgkmcnt(0)")
        a("v_writelane_b32 v167, s98, m0")
    for j in range(2):
        a(f"v_add_u32 v{V_AA+j}, s44, v{V_AB+j}")
    for j in range(nb_):
        a(f"v_add_u32 v{V_BA+j}, s45, v{V_BB+j}")
    if hook:
        a("s_cmp_lg_u32 s46, 3")
        a(f"s_cbranch_scc1 {pfx}_nb")
        a("s_waitcnt vmcnt(0)")
        a("s_barrier")
        a("s_cmp_lg_u32 s3, 0")
        a(f"s_cbranch_scc1 {pfx}_ab")
        a("s_cmp_eq_u32 s90, -1")
        a(f"s_cbranch_scc1 {pfx}_ab")
        if WBL2:
            a("buffer_wbl2 sc1")
        else:
            signal(a, 90)
        a(f"s_branch {pfx}_ab")
        a.label(f"{pfx}_nb")
        if WBL2:
            a("s_cmp_lg_u32 s46, 6")
            a(f"s_cbranch_scc1 {pfx}_nb2")
            a("s_cmp_lg_u32 s3, 0")
            a(f"s_cbranch_scc1 {pfx}_nb2")
            a("s_cmp_eq_u32 s90, -1")
            a(f"s_cbranch_scc1 {pfx}_nb2")
            a("s_waitcnt vmcnt(0)")
            signal(a, 90)
            a.label(f"{pfx}_nb2")
    a("s_barrier")
    if hook:
        a.label(f"{pfx}_ab")
    half(a, trk, btype, 1, 0, 1)
    assert trk.out == entry_state, (trk.out, entry_state)
    a(f"""
    s_add_u32 s46, s46, 1
    s_cmp_lt_u32 s46, {nsteps}
    s_cbranch_scc1 {pfx}_loop
    s_waitcnt lgkmcnt(0)
    s_nop 15
    """)
    if PRIO == "C":
        a("s_setprio 0")


def voff_ntype(a, stride, vb):
    for p in range(384):
        assert (p * 2731) >> 16 == p // 24
    a("v_and_b32 v60, 63, v0")
    for b in range(6):
        a(f"""
        v_add_u32 v61, {64*b}, v60
        v_mul_u32_u24 v62, 2731, v61
        v_lshrrev_b32 v62, 16, v62
        v_mul_u32_u24 v63, 24, v62
        v_sub_u32 v61, v61, v63
        v_and_b32 v63, 2, v62
        v_lshlrev_b32 v63, 1, v63
        v_xor_b32 v61, v61, v63
        v_lshrrev_b32 v63, 2, v62
        v_and_b32 v63, 2, v63
        v_xor_b32 v61, v61, v63
        v_mul_u32_u24 v62, {stride}, v62
        v_lshl_add_u32 v{vb+b}, v61, 4, v62
        """)


def zero_acc(a):
    for i in range(96):
        a(f"v_mov_b32 v{ACC+i}, 0")


def loader_loop(a, pfx, L, slot_bytes, ring_base, issue_fn, first_extra_barrier, hold=None):
    a("s_mov_b32 s50, 0")
    a(f"s_mov_b32 s51, {ring_base}")
    a(f"s_mov_b32 s52, {-NS}")
    a.label(f"{pfx}_loop")
    a("s_cmp_lt_i32 s52, -1")
    a(f"s_cbranch_scc1 {pfx}_iss0")
    if first_extra_barrier:
        a("s_cmp_lg_i32 s52, -1")
        a(f"s_cbranch_scc1 {pfx}_nx")
        a("s_barrier")
        a.label(f"{pfx}_nx")
    a("s_sub_i32 s53, s50, s52")
    for c in range(NS - 2, 0, -1):
        a(f"s_cmp_ge_i32 s53, {c+2}")
        a(f"s_cbranch_scc1 {pfx}_w{c}")
    a("s_waitcnt vmcnt(0)")
    a(f"s_branch {pfx}_bar")
    for c in range(1, NS - 1):
        a.label(f"{pfx}_w{c}")
        a(f"s_waitcnt vmcnt({c*L})")
        if c != NS - 2:
            a(f"s_branch {pfx}_bar")
    a.label(f"{pfx}_bar")
    a("s_barrier")
    a.label(f"{pfx}_iss0")
    a(f"s_add_i32 s43, s52, {NS}")
    if hold:
        a(f"s_cmp_ge_i32 s52, {hold[0]}")
        a(f"s_cselect_b32 s42, {hold[2]}, s43")
        a(f"s_cmp_le_i32 s52, {hold[1]}")
        a("s_cselect_b32 s43, s42, s43")
    a(f"s_sub_u32 s42, s{S_NT}, 1")
    a("s_min_i32 s43, s43, s42")
    a.label(f"{pfx}_iss")
    a("s_cmp_gt_i32 s50, s43")
    a(f"s_cbranch_scc1 {pfx}_skip")
    issue_fn()
    a("s_add_u32 s50, s50, 1")
    a(f"s_add_u32 s51, s51, {slot_bytes}")
    a(f"s_cmp_ge_u32 s51, {ring_base + NS*slot_bytes}")
    a(f"s_cselect_b32 s51, {ring_base}, s51")
    a(f"s_branch {pfx}_iss")
    a.label(f"{pfx}_skip")
    a(f"""
    s_add_i32 s52, s52, 1
    s_cmp_lt_i32 s52, s{S_NT}
    s_cbranch_scc1 {pfx}_loop
    s_endpgm
    """)


def issue_k(a, nq, stride, srdr, ve, flags=""):
    for q in range(nq):
        a(f"s_add_u32 m0, s58, {q*1024}")
        a(f"s_add_u32 s54, s57, {q*8*stride}")
        a(f"buffer_load_dwordx4 v{ve+1 if q & 1 else ve}, s[{srdr}:{srdr+3}], s54 offen {flags} lds")


def issue_n(a, stride, srdr, vb, flags=""):
    for aa in range(2):
        for b in range(6):
            a(f"s_add_u32 m0, s58, {(6*aa+b)*1024}")
            a(f"s_add_u32 s54, s57, {aa*16*stride}")
            a(f"buffer_load_dwordx4 v{vb+b}, s[{srdr}:{srdr+3}], s54 offen {flags} lds")


def g2_kk(a):
    a(f"""
    s_sub_u32 s62, s50, 18
    s_mul_i32 s63, s{S_SPLIT}, 13
    s_cmp_lt_u32 s62, s{S_NF}
    s_cbranch_scc1 1f
    s_cmp_lt_u32 s62, s{S_NR}
    s_cbranch_scc1 2f
    s_sub_u32 s62, s62, s{S_NR}
    s_mul_i32 s63, s{S_SPLIT}, 9
    s_add_u32 s63, s63, 91
    s_branch 1f
    """)
    a.lines.append("2:")
    a(f"""
    s_sub_u32 s62, s62, s{S_NF}
    s_mul_i32 s63, s{S_SPLIT}, 5
    s_add_u32 s63, s63, 64
    s_cmp_eq_u32 s{S_SPLIT}, 4
    s_addc_u32 s63, s63, 0
    """)
    a.lines.append("1:")
    a("s_add_u32 s62, s62, s63")


def ws_touch_setup(a):
    a(f"""
    v_and_b32 v162, 63, v0
    s_mul_i32 s40, s{S_NT2}, 43
    v_add_u32 v163, s40, v162
    s_lshl_b32 s40, s{S_MT2}, 7
    v_add_u32 v161, s40, v163
    v_lshlrev_b32 v161, 12, v161
    v_mov_b32 v164, 0x7f000000
    v_cmp_gt_u32 vcc, 43, v162
    s_nop 1
    v_cndmask_b32 v161, v164, v161, vcc
    v_cmp_gt_u32 vcc, 128, v163
    s_nop 1
    v_cndmask_b32 v161, v164, v161, vcc
    s_mov_b32 s{SRD_C+2}, {PANEL}
    s_mov_b32 s{SRD_C+3}, 0x00020000
    """)


def ws_touch(a, j, wave):
    lb = a.new("tch")
    a(f"""
    s_cmp_lg_u32 s3, {wave}
    s_cbranch_scc1 {lb}
    s_cmp_le_u32 s{S_NF}, {j}
    s_cbranch_scc1 {lb}
    s_mul_i32 s40, s{S_SPLIT}, 13
    s_add_u32 s40, s40, {j}
    s_cmp_lt_u32 s40, 32
    s_cselect_b32 s{SRD_C}, s{S_WSRE}, s{S_WSIM}
    s_cselect_b32 s{SRD_C+1}, s{S_WSRE+1}, s{S_WSIM+1}
    s_and_b32 s{SRD_C+1}, s{SRD_C+1}, 0xffff
    s_and_b32 s40, s40, 31
    s_lshl_b32 s40, s40, 7
    buffer_load_dword v160, v161, s[{SRD_C}:{SRD_C+3}], s40 offen
    """)
    a.label(lb)


def w2_touch(a):
    for p in range(64):
        assert (p * 5462) >> 16 == p // 12 and ((p % 12) * 21846) >> 16 == (p % 12) // 3
    lb = a.new("w2t")
    srd(a, SRD_C, S_W2, W2_BYTES)
    a(f"""
    s_cmp_ge_u32 s3, 7
    s_cbranch_scc1 {lb}
    v_and_b32 v162, 63, v0
    v_mul_u32_u24 v163, 5462, v162
    v_lshrrev_b32 v163, 16, v163
    v_mul_u32_u24 v164, 12, v163
    v_sub_u32 v164, v162, v164
    v_mul_u32_u24 v165, 21846, v164
    v_lshrrev_b32 v165, 16, v165
    v_mul_u32_u24 v166, 3, v165
    v_sub_u32 v166, v164, v166
    s_sub_u32 s40, s3, 4
    s_mul_i32 s40, s40, 5
    v_add_u32 v163, s40, v163
    s_sub_u32 s44, s{S_N2}, s{S_NF}
    v_cmp_gt_u32 vcc, s44, v163
    v_cmp_gt_u32 s[44:45], 60, v162
    s_mul_i32 s40, s{S_SPLIT}, 14
    s_cmp_eq_u32 s{S_SPLIT}, 4
    s_addc_u32 s40, s40, 0
    s_and_b64 vcc, vcc, s[44:45]
    v_add_u32 v163, s40, v163
    v_lshlrev_b32 v163, 6, v163
    s_lshl_b32 s40, s{S_MT2}, 2
    v_add3_u32 v163, v163, v165, s40
    v_mul_u32_u24 v163, 1152, v163
    v_lshl_add_u32 v163, v166, 7, v163
    v_mov_b32 v164, 0x7f000000
    v_cndmask_b32 v163, v164, v163, vcc
    s_mul_i32 s40, s{S_NT2}, 384
    buffer_load_dword v160, v163, s[{SRD_C}:{SRD_C+3}], s40 offen
    """)
    a.label(lb)


def gen_kernel(a):
    name = NAME + "_kernel"
    a.lines.append(f".globl {name}")
    a.lines.append(".p2align 8")
    a.lines.append(f".type {name},@function")
    a.label(name)
    a(f"""
    s_cmp_ge_u32 s2, {NWG}
    s_cbranch_scc1 K_done
    """)
    stamp(a, 0)
    a(f"""
    s_load_dwordx8 s[4:11], s[0:1], 0
    s_load_dwordx2 s[12:13], s[0:1], 32
    s_load_dwordx4 s[16:19], s[0:1], 48
    s_load_dwordx4 s[20:23], s[0:1], 64
    s_load_dwordx2 s[24:25], s[0:1], 80
    v_lshrrev_b32 v1, 6, v0
    s_and_b32 s33, s2, 7
    s_mul_i32 s33, s33, 30
    s_lshr_b32 s34, s2, 3
    v_readfirstlane_b32 s3, v1
    s_add_u32 s{S_L}, s33, s34
    s_lshr_b32 s{S_NT1}, s{S_L}, 3
    s_and_b32 s{S_MT1}, s{S_L}, 7
    s_cmp_ge_u32 s{S_L}, 120
    s_cselect_b32 s40, 120, 0
    s_cselect_b32 s41, 8, 0
    s_sub_u32 s40, s{S_L}, s40
    s_lshr_b32 s{S_N1}, s40, 3
    s_and_b32 s{S_M}, s40, 7
    s_add_u32 s{S_M}, s{S_M}, s41
    s_mul_i32 s{S_SPLIT}, s{S_L}, 1366
    s_lshr_b32 s{S_SPLIT}, s{S_SPLIT}, 16
    s_mul_i32 s40, s{S_SPLIT}, 48
    s_sub_u32 s{S_TILE}, s{S_L}, s40
    s_mul_i32 s{S_MT2}, s{S_TILE}, 21846
    s_lshr_b32 s{S_MT2}, s{S_MT2}, 16
    s_mul_i32 s40, s{S_MT2}, 3
    s_sub_u32 s{S_NT2}, s{S_TILE}, s40
    s_cmp_eq_u32 s{S_SPLIT}, 4
    s_cselect_b32 s{S_NF}, 12, 13
    s_cmp_eq_u32 s{S_SPLIT}, 3
    s_cselect_b32 s{S_N2}, 28, 27
    s_add_u32 s{S_NT}, s{S_N2}, 18
    s_sub_u32 s{S_NR}, s{S_N2}, 9
    s_waitcnt lgkmcnt(0)
    """)
    srd(a, SRD_DBG, S_DBG, 256)
    srd_off(a, SRD_F, S_WS, WS_F, F_BYTES)
    a(f"""
    s_or_b32 s40, s2, s3
    s_cmp_lg_u32 s40, 0
    s_cbranch_scc1 K_nopub
    s_memrealtime s[40:41]
    s_waitcnt lgkmcnt(0)
    s_or_b32 s40, s40, 1
    v_mov_b32 v60, s40
    v_mov_b32 v61, s41
    v_mov_b32 v63, 0
    s_mov_b64 exec, 1
    buffer_store_dwordx2 v[60:61], v63, s[{SRD_DBG}:{SRD_DBG+3}], 0 offen sc1
    s_mov_b64 exec, -1
    """)
    a.label("K_nopub")
    a("s_cmp_ge_u32 s3, 8")
    a("s_cbranch_scc1 K_loader")
    a("s_and_b32 s40, s3, 3")
    a(f"s_lshr_b32 s{S_WM}, s40, 1")
    a(f"s_and_b32 s{S_WN}, s40, 1")
    a("s_cmp_ge_u32 s3, 4")
    a("s_cbranch_scc1 K_g1")
    a("s_cmp_ge_u32 s3, 3")
    a("s_cbranch_scc1 K_lnskip")
    ln_phase(a)
    a.label("K_lnskip")
    a("s_barrier")
    a("s_cmp_lg_u32 s3, 0")
    a("s_cbranch_scc1 K_lnsig")
    get_nonce(a)
    a(f"s_lshl_b32 s41, s{S_MT1}, 8")
    a(f"s_lshl_b32 s40, s{S_NT1}, 3")
    a("s_add_u32 s41, s41, s40")
    a(f"s_add_u32 s41, s41, {C_LN*256}")
    signal(a, 41)
    a.label("K_lnsig")
    stamp(a, 1)
    zero_acc(a)
    a(f"s_cmp_ge_u32 s{S_N1}, 6")
    a("s_cbranch_scc1 T1_KN")
    consumer_addr_setup(a, "NK")
    a("s_barrier")
    stamp(a, 2)
    cons_loop(a, "T1nk", "NK", 9, 0)
    a("s_branch T1_done")
    a.label("T1_KN")
    consumer_addr_setup(a, "KN")
    a("s_barrier")
    stamp(a, 2)
    cons_loop(a, "T1kn", "KN", 9, 0)
    a.label("T1_done")
    stamp(a, 3)
    a(f"s_mov_b32 s46, s{S_N1}")
    a("s_branch K_epi")
    a.label("K_g1")
    if WTOUCH == 2:
        a("s_barrier")
    if WTOUCH:
        srd(a, SRD_C, S_W1, W1_BYTES)
        a(f"""
        v_subrev_u32 v56, 256, v0
        v_mul_u32_u24 v57, 21846, v56
        v_lshrrev_b32 v57, 16, v57
        v_mul_u32_u24 v59, 3, v57
        v_sub_u32 v59, v56, v59
        s_mul_i32 s40, s{S_M}, 36
        v_add_u32 v57, s40, v57
        v_mul_u32_u24 v57, 9216, v57
        v_lshl_add_u32 v57, v59, 7, v57
        v_mov_b32 v59, 0x7f000000
        v_cmp_gt_u32 vcc, 108, v56
        s_add_u32 s40, s{S_N1}, 9
        s_mul_i32 s40, s40, 384
        v_cndmask_b32 v57, v59, v57, vcc
        buffer_load_dword v160, v57, s[{SRD_C}:{SRD_C+3}], s40 offen
        s_cmp_lt_u32 s{S_N1}, 6
        s_cbranch_scc1 K_wt2
        s_sub_u32 s40, s{S_N1}, 6
        s_mul_i32 s40, s40, 384
        buffer_load_dword v160, v57, s[{SRD_C}:{SRD_C+3}], s40 offen
        s_branch K_wt3
        """)
        a.label("K_wt2")
        a(f"""
        s_cmp_ge_u32 s{S_N1}, 3
        s_cselect_b32 s60, s{S_WDIM}, s{S_WDRE}
        s_cselect_b32 s61, s{S_WDIM+1}, s{S_WDRE+1}
        s_cselect_b32 s40, 3, 0
        s_sub_u32 s40, s{S_N1}, s40
        s_mul_i32 s40, s40, 192
        s_mul_i32 s41, s{S_M}, 12
        s_add_u32 s40, s40, s41
        s_mul_i32 s40, s40, 1152
        v_lshlrev_b32 v57, 7, v56
        v_cndmask_b32 v57, v59, v57, vcc
        """)
        srd(a, SRD_C, 60, WD_BYTES)
        a(f"buffer_load_dword v160, v57, s[{SRD_C}:{SRD_C+3}], s40 offen")
        a.label("K_wt3")
    if WTOUCH != 2:
        a("s_barrier")
    zero_acc(a)
    consumer_addr_setup(a, "KN")
    a("s_barrier")
    if TOUCH:
        ws_touch_setup(a)
        sched = {1: [0], 2: [1], 4: [2], 5: [3], 7: [4], 8: [5]}
        for t in range(9):
            for j in sched.get(t, []):
                ws_touch(a, j, 4 + (j & 3))
            a("s_barrier")
    else:
        for _ in range(9):
            a("s_barrier")
    cons_loop(a, "T2", "KN", 9, 9)
    if TOUCH:
        w2_touch(a)
    a(f"s_add_u32 s46, s{S_N1}, 15")
    a.label("K_epi")
    srd_off(a, SRD_A, S_WS, WS_AB, AB_BYTES)
    srd_off(a, SRD_B, S_WS, WS_H, 3 * PANEL)
    a(f"""
    s_lshl_b32 s49, s{S_M}, 7
    s_cmp_ge_u32 s46, 6
    s_cbranch_scc1 E_h
    s_mov_b32 s43, 0x80008000
    s_cmp_ge_u32 s46, 3
    s_cselect_b32 s42, 0x80008000, 0
    s_cselect_b32 s41, 2048, 0
    s_cselect_b32 s40, 3, 0
    s_add_u32 s49, s49, s41
    s_sub_u32 s40, s46, s40
    s_mul_i32 s48, s40, 192
    s_mov_b32 s47, 1152
    s_lshl_b32 s41, s40, 8
    s_lshl_b32 s40, s{S_M}, 3
    s_add_u32 s41, s41, s40
    s_cmp_ge_u32 s46, 3
    s_cselect_b32 s40, 128, 0
    s_add_u32 s41, s41, s40
    s_add_u32 s41, s41, {C_AB*256}
    s_branch E_go
    """)
    a.label("E_h")
    a(f"""
    s_mov_b32 s42, 0
    s_mov_b32 s43, 0
    s_mov_b32 s{SRD_A}, s{SRD_B}
    s_mov_b32 s{SRD_A+1}, s{SRD_B+1}
    s_mov_b32 s{SRD_A+2}, s{SRD_B+2}
    s_sub_u32 s40, s46, 6
    s_mul_i32 s48, s40, 192
    s_mov_b32 s47, 4096
    s_lshl_b32 s41, s{S_M}, 8
    s_lshl_b32 s40, s40, 3
    s_add_u32 s41, s41, s40
    s_add_u32 s41, s41, {C_H*256}
    """)
    a.label("E_go")
    a(f"""
    s_lshl_b32 s40, s{S_WM}, 6
    s_add_u32 s49, s49, s40
    s_mul_i32 s40, s{S_WN}, 96
    s_add_u32 s48, s48, s40
    v_and_b32 v60, 15, v0
    v_add_u32 v60, s49, v60
    v_mul_lo_u32 v60, v60, s47
    v_bfe_u32 v61, v0, 4, 1
    v_bfe_u32 v62, v0, 5, 1
    v_lshlrev_b32 v61, 4, v61
    v_lshl_add_u32 v61, v62, 3, v61
    v_add_u32 v61, s48, v61
    """)
    for ni in range(3):
        a(f"""
        v_add_u32 v62, {32*ni}, v61
        v_lshrrev_b32 v63, 11, v62
        v_lshlrev_b32 v63, 23, v63
        v_and_b32 v62, 2047, v62
        v_add_u32 v63, v60, v63
        v_lshl_add_u32 v{2+ni}, v62, 1, v63
        """)
    for mi in range(2):
        a(f"s_mul_i32 s44, s47, {32*mi}")
        a(f"s_mul_i32 s45, s47, {32*mi+16}")
        for ni in range(3):
            c = ACC + 16 * (3 * mi + ni)
            t = 20 + 8 * (ni & 1)
            for r in range(8):
                a(f"v_cvt_pk_bf16_f32 v{t+r}, v{c+2*r}, v{c+2*r+1}")
            for r in range(8):
                a(f"v_pk_max_i16 v{t+r}, v{t+r}, s43")
            for r in range(8):
                a(f"v_xor_b32 v{t+r}, s42, v{t+r}")
            a("s_nop 1")
            a(f"v_permlane16_swap_b32 v{t}, v{t+2}")
            a(f"v_permlane16_swap_b32 v{t+1}, v{t+3}")
            a(f"v_permlane16_swap_b32 v{t+4}, v{t+6}")
            a(f"v_permlane16_swap_b32 v{t+5}, v{t+7}")
            if E1ST != "none":
                a(f"buffer_store_dwordx4 v[{t}:{t+3}], v{2+ni}, s[{SRD_A}:{SRD_A+3}], s44 offen {E1ST}")
                a(f"buffer_store_dwordx4 v[{t+4}:{t+7}], v{2+ni}, s[{SRD_A}:{SRD_A+3}], s45 offen {E1ST}")
            if ni < 2 and SPREAD:
                lb = a.new("Esk")
                a("s_cmp_lt_u32 s46, 6")
                a(f"s_cbranch_scc1 {lb}")
                a("s_barrier")
                a.label(lb)
        a("s_barrier")
    a("s_mov_b32 s90, -1")
    if SPREAD:
        a(f"""
        s_cmp_ge_u32 s3, 4
        s_cbranch_scc1 E_na
        s_cmp_lt_u32 s46, 6
        s_cbranch_scc1 E_na
        s_mov_b32 s90, s41
        s_mov_b32 s45, 3
        s_branch E_g0
        """)
        a.label("E_na")
    a(f"""
    s_mov_b32 s44, 5
    s_cmp_lt_u32 s46, 6
    s_cselect_b32 s44, 2, s44
    s_cmp_ge_u32 s3, 4
    s_cselect_b32 s44, {NB1}, s44
    s_sub_u32 s45, 6, s44
    """)
    a.label("E_w1")
    a("s_barrier")
    a("s_sub_u32 s44, s44, 1")
    a("s_cmp_lg_u32 s44, 0")
    a("s_cbranch_scc1 E_w1")
    a("s_waitcnt vmcnt(0)")
    a("s_barrier")
    a("s_and_b32 s40, s3, 3")
    a("s_cmp_lg_u32 s40, 0")
    a("s_cbranch_scc1 E_sig")
    a("s_cmp_eq_u32 s3, 0")
    a("s_cbranch_scc1 E_sig0")
    get_nonce(a)
    a.label("E_sig0")
    if WBL2:
        a("buffer_wbl2 sc1")
        a("s_waitcnt vmcnt(0)")
    signal(a, 41)
    a.label("E_sig")
    a("s_cmp_lt_u32 s3, 4")
    a("s_cbranch_scc1 E_g0")
    a("s_endpgm")
    a.label("E_g0")
    if TOUCH:
        ws_touch_setup(a)
        for j in range(6, 13):
            ws_touch(a, j, (j + 3) & 3)
    zero_acc(a)
    consumer_addr_setup(a, "KN")
    stamp(a, 4)
    a.label("E_w2")
    a("s_barrier")
    a("s_sub_u32 s45, s45, 1")
    a("s_cmp_lg_u32 s45, 0")
    a("s_cbranch_scc1 E_w2")
    stamp(a, 5)
    cons_loop(a, "G2c", "KN", f"s{S_N2}", 18, SPREAD)
    stamp(a, 6)
    if os.environ.get("FINE"):
        a("v_mov_b32 v19, v167")
    srd_off(a, SRD_A, S_WS, WS_P, P_BYTES)
    a(f"""
    s_mul_i32 s42, s{S_L}, {P_TILE}
    s_mul_i32 s41, s3, {PW}
    s_add_u32 s42, s42, s41
    v_and_b32 v7, 63, v0
    v_lshlrev_b32 v7, 4, v7
    s_add_u32 s43, s3, 5
    s_sub_u32 s43, s43, s{S_SPLIT}
    """)
    for i in range(6):
        sk = a.new("pst")
        a(f"s_add_u32 s40, s43, {i}")
        a("s_cmp_eq_u32 s40, 5")
        a(f"s_cbranch_scc1 {sk}")
        a("s_cmp_eq_u32 s40, 10")
        a(f"s_cbranch_scc1 {sk}")
        a(f"s_add_u32 s41, s42, {i*PB}")
        t = 20 + 8 * (i & 1)
        if PBF16:
            for r in range(8):
                a(f"v_cvt_pk_bf16_f32 v{t+r}, v{ACC+16*i+2*r}, v{ACC+16*i+2*r+1}")
            a(f"buffer_store_dwordx4 v[{t}:{t+3}], v7, s[{SRD_A}:{SRD_A+3}], s41 offen sc1")
            a(f"buffer_store_dwordx4 v[{t+4}:{t+7}], v7, s[{SRD_A}:{SRD_A+3}], s41 offen offset:1024 sc1")
        else:
            for q in range(4):
                c = ACC + 16 * i + 4 * q
                a(f"buffer_store_dwordx4 v[{c}:{c+3}], v7, s[{SRD_A}:{SRD_A+3}], s41 offen offset:{q*1024} sc1")
        a.label(sk)
    a("s_waitcnt vmcnt(0)")
    a("s_barrier")
    a(f"""
    s_lshl_b32 s41, s{S_TILE}, 8
    s_add_u32 s41, s41, {C_P*256}
    s_lshl_b32 s47, s{S_SPLIT}, 3
    s_add_u32 s47, s47, s41
    s_cmp_lg_u32 s3, 0
    s_cbranch_scc1 K_psig
    """)
    signal(a, 47)
    a("s_branch K_psig2")
    a.label("K_psig")
    get_nonce(a)
    a.label("K_psig2")
    srd(a, SRD_B, S_X, XN_BYTES)
    srd(a, SRD_C, S_OUT, XN_BYTES)
    a(f"""
    s_lshl_b32 s49, s{S_MT2}, 7
    s_lshl_b32 s40, s{S_WM}, 6
    s_add_u32 s49, s49, s40
    s_mul_i32 s48, s{S_NT2}, 384
    s_mul_i32 s40, s{S_WN}, 192
    s_add_u32 s48, s48, s40
    v_and_b32 v3, 15, v0
    v_bfe_u32 v4, v0, 4, 2
    v_add_u32 v3, s49, v3
    v_mul_u32_u24 v3, 1152, v3
    v_add_u32 v3, s48, v3
    v_lshl_add_u32 v5, v4, 3, v3
    v_bfe_u32 v2, v0, 4, 1
    v_lshl_add_u32 v6, v2, 5, v3
    v_bfe_u32 v2, v0, 5, 1
    v_lshl_add_u32 v6, v2, 4, v6
    s_mul_i32 s42, s{S_TILE}, {P_TILE}
    s_mul_i32 s40, s3, {PW}
    s_add_u32 s42, s42, s40
    s_mov_b32 s46, 5
    """)
    poll(a, 41, 0x1f)
    stamp(a, 7)
    a.label("F_loop")
    a("s_sub_i32 s45, s46, s43")
    a("s_cmp_lt_i32 s45, 0")
    a("s_cbranch_scc1 F_next")
    a("s_cmp_gt_i32 s45, 5")
    a("s_cbranch_scc1 F_next")
    a(f"""
    s_cmp_ge_u32 s45, 3
    s_cselect_b32 s40, 3, 0
    s_cselect_b32 s47, {32*1152}, 0
    s_sub_u32 s40, s45, s40
    s_lshl_b32 s40, s40, 6
    s_add_u32 s47, s47, s40
    s_mul_i32 s48, s45, {PB}
    s_add_u32 s48, s48, s42
    """)
    XR, PR, W = 160, 8, 40
    a(f"s_add_u32 s49, s47, {16*1152}")
    for gq in range(4):
        a(f"buffer_load_dwordx2 v[{XR+2*gq}:{XR+1+2*gq}], v5, s[{SRD_B}:{SRD_B+3}], s{49 if gq >= 2 else 47} offen offset:{(gq&1)*32}")
    def src_addr(d):
        a(f"""
        s_add_u32 s44, s{S_SPLIT}, {d}
        s_sub_u32 s40, s44, 5
        s_cmp_ge_u32 s44, 5
        s_cselect_b32 s44, s40, s44
        s_mul_i32 s44, s44, {48*P_TILE}
        s_add_u32 s44, s44, s48
        """)

    def movs():
        for i in range(6):
            a(f"s_cmp_lg_u32 s45, {i}")
            a(f"s_cbranch_scc1 F_m{i}")
            for r in range(16):
                a(f"v_mov_b32 v{W+r}, v{ACC+16*i+r}")
            a.label(f"F_m{i}")
    if PBF16:
        for d in range(1, 5):
            r0 = PR + 8 * (d - 1)
            src_addr(d)
            a(f"buffer_load_dwordx4 v[{r0}:{r0+3}], v7, s[{SRD_A}:{SRD_A+3}], s44 offen sc1")
            a(f"buffer_load_dwordx4 v[{r0+4}:{r0+7}], v7, s[{SRD_A}:{SRD_A+3}], s44 offen offset:1024 sc1")
        movs()
        for d in range(1, 5):
            a(f"s_waitcnt vmcnt({2*(4-d)})")
            for r in range(8):
                src = PR + 8 * (d - 1) + r
                a(f"""
                v_lshlrev_b32 v56, 16, v{src}
                v_and_b32 v57, 0xffff0000, v{src}
                v_add_f32 v{W+2*r}, v{W+2*r}, v56
                v_add_f32 v{W+2*r+1}, v{W+2*r+1}, v57
                """)
    else:
        for half in range(2):
            for dd in range(2):
                src_addr(1 + 2 * half + dd)
                for q in range(4):
                    r0 = PR + 16 * dd + 4 * q
                    a(f"buffer_load_dwordx4 v[{r0}:{r0+3}], v7, s[{SRD_A}:{SRD_A+3}], s44 offen offset:{q*1024} sc1")
            if half == 0:
                movs()
            for dd in range(2):
                a(f"s_waitcnt vmcnt({4 if dd == 0 else 0})")
                for r in range(16):
                    a(f"v_add_f32 v{W+r}, v{W+r}, v{PR+16*dd+r}")
    for gq in range(4):
        c = W + 4 * gq
        a(f"""
        v_lshlrev_b32 v56, 16, v{XR+2*gq}
        v_and_b32 v57, 0xffff0000, v{XR+2*gq}
        v_lshlrev_b32 v58, 16, v{XR+1+2*gq}
        v_and_b32 v59, 0xffff0000, v{XR+1+2*gq}
        v_add_f32 v{c}, v{c}, v56
        v_add_f32 v{c+1}, v{c+1}, v57
        v_add_f32 v{c+2}, v{c+2}, v58
        v_add_f32 v{c+3}, v{c+3}, v59
        v_cvt_pk_bf16_f32 v{8+2*gq}, v{c}, v{c+1}
        v_cvt_pk_bf16_f32 v{9+2*gq}, v{c+2}, v{c+3}
        """)
    a(f"""
    s_nop 1
    v_permlane16_swap_b32 v8, v10
    v_permlane16_swap_b32 v9, v11
    v_permlane16_swap_b32 v12, v14
    v_permlane16_swap_b32 v13, v15
    buffer_store_dwordx4 v[8:11], v6, s[{SRD_C}:{SRD_C+3}], s47 offen {OUTF}
    buffer_store_dwordx4 v[12:15], v6, s[{SRD_C}:{SRD_C+3}], s49 offen {OUTF}
    s_nop 1
    """)
    a.label("F_next")
    a("s_add_u32 s46, s46, 5")
    a("s_cmp_le_u32 s46, 10")
    a("s_cbranch_scc1 F_loop")
    if STAMP:
        a("s_waitcnt vmcnt(0)")
    flush_stamps(a, 9)
    if os.environ.get("FINE"):
        lb = a.new("fine")
        a("s_cmp_lg_u32 s3, 0")
        a(f"s_cbranch_scc1 {lb}")
        srd_off(a, SRD_A, S_WS, g.WS_STAMP + 0x10000, 0x10000)
        a("s_lshl_b32 s100, s2, 8")
        a("v_and_b32 v1, 63, v0")
        a("v_lshlrev_b32 v1, 2, v1")
        a(f"buffer_store_dword v19, v1, s[{SRD_A}:{SRD_A+3}], s100 offen")
        a.label(lb)
    a("s_endpgm")

    a.label("K_loader")
    if PRIO == "L":
        a("s_setprio 2")
    a("s_cmp_ge_u32 s3, 10")
    a("s_cbranch_scc1 K_loadB")
    srd_off(a, SRD_B, S_WS, WS_XN, XN_BYTES)
    voff_ktype(a, 1152, 1, 2)
    voff_ktype(a, 4096, 3, 4)
    a(f"""
    s_sub_u32 s59, s3, 8
    s_lshl_b32 s41, s{S_M}, 7
    s_lshl_b32 s56, s59, 6
    s_add_u32 s41, s41, s56
    s_mul_i32 s55, s41, 1152
    s_lshl_b32 s41, s{S_MT2}, 7
    s_add_u32 s41, s41, s56
    s_lshl_b32 s49, s41, 12
    s_lshl_b32 s56, s59, 13
    s_add_u32 s60, s{S_WS}, {WS_H}
    s_addc_u32 s61, s{S_WS+1}, 0
    s_mov_b32 s{SRD_A+2}, {PANEL}
    s_mov_b32 s{SRD_A+3}, 0x00020000
    s_barrier
    s_lshr_b32 s41, s{S_M}, 1
    s_lshl_b32 s41, s41, 8
    s_add_u32 s41, s41, {C_LN*256}
    """)
    get_nonce(a)
    poll(a, 41, 0x3fffffff)
    a(f"""
    s_mov_b32 s48, 0x3
    s_cmp_eq_u32 s{S_SPLIT}, 1
    s_cselect_b32 s48, 0xe, s48
    s_cmp_eq_u32 s{S_SPLIT}, 2
    s_cselect_b32 s48, 0x18, s48
    s_cmp_eq_u32 s{S_SPLIT}, 3
    s_cselect_b32 s48, 0x60, s48
    s_cmp_eq_u32 s{S_SPLIT}, 4
    s_cselect_b32 s48, 0x180, s48
    s_mul_i32 s46, s{S_SPLIT}, 3
    s_lshl_b32 s46, 0xe00, s46
    s_lshl_b32 s47, s{S_MT2}, 8
    s_add_u32 s47, s47, {C_H*256}
    """)

    def issueA():
        a("s_add_u32 s58, s51, s56")
        a("s_cmp_ge_u32 s50, 18")
        a("s_cbranch_scc1 LA_g2")
        a("""
        s_sub_u32 s62, s50, 9
        s_cmp_ge_u32 s50, 9
        s_cselect_b32 s62, s62, s50
        s_lshl_b32 s57, s62, 7
        s_add_u32 s57, s57, s55
        """)
        issue_k(a, 8, 1152, SRD_B, 1, LDF)
        a("s_branch LA_end")
        a.label("LA_g2")
        a(f"s_sub_u32 s62, s50, 18")
        a(f"s_cmp_lg_u32 s62, s{S_NF}")
        a("s_cbranch_scc1 LA_np")
        poll(a, 47, "s48")
        a.label("LA_np")
        a(f"s_sub_u32 s62, s50, 18")
        a(f"s_cmp_lg_u32 s62, s{S_NR}")
        a("s_cbranch_scc1 LA_np2")
        poll(a, 47, "s46")
        a.label("LA_np2")
        g2_kk(a)
        a(f"""
        s_lshr_b32 s63, s62, 5
        s_sub_u32 s41, s63, 2
        s_lshl_b32 s41, s41, 23
        s_add_u32 s{SRD_A}, s60, s41
        s_addc_u32 s{SRD_A+1}, s61, 0
        s_cmp_eq_u32 s63, 0
        s_cselect_b32 s{SRD_A}, s{S_WSRE}, s{SRD_A}
        s_cselect_b32 s{SRD_A+1}, s{S_WSRE+1}, s{SRD_A+1}
        s_cmp_eq_u32 s63, 1
        s_cselect_b32 s{SRD_A}, s{S_WSIM}, s{SRD_A}
        s_cselect_b32 s{SRD_A+1}, s{S_WSIM+1}, s{SRD_A+1}
        s_and_b32 s{SRD_A+1}, s{SRD_A+1}, 0xffff
        s_and_b32 s57, s62, 31
        s_lshl_b32 s57, s57, 7
        s_add_u32 s57, s57, s49
        """)
        issue_k(a, 8, 4096, SRD_A, 3, LDF)
        a.label("LA_end")
    loader_loop(a, "LA", 8, SA, 0, issueA, False)

    a.label("K_loadB")
    a(f"""
    s_sub_u32 s59, s3, 10
    s_cmp_ge_u32 s{S_N1}, 3
    s_cselect_b32 s60, s{S_WDIM}, s{S_WDRE}
    s_cselect_b32 s61, s{S_WDIM+1}, s{S_WDRE+1}
    """)
    srd(a, SRD_B, 60, WD_BYTES)
    srd(a, SRD_C, S_W1, W1_BYTES)
    voff_ktype(a, 1152, 1, 2)
    voff_ntype(a, 9216, 3)
    voff_ntype(a, 1152, 9)
    a(f"""
    s_mul_i32 s56, s59, {32*9216}
    s_add_u32 s41, s{S_N1}, 9
    s_mul_i32 s49, s41, 384
    s_add_u32 s49, s49, s56
    s_sub_u32 s41, s{S_N1}, 6
    s_mul_i32 s55, s41, 384
    s_add_u32 s55, s55, s56
    s_cmp_ge_u32 s{S_N1}, 6
    s_cbranch_scc1 LB_s1
    s_cmp_ge_u32 s{S_N1}, 3
    s_cselect_b32 s41, 3, 0
    s_sub_u32 s41, s{S_N1}, s41
    s_mul_i32 s41, s41, 192
    s_mul_i32 s56, s59, 96
    s_add_u32 s41, s41, s56
    s_mul_i32 s55, s41, 1152
    """)
    a.label("LB_s1")
    a(f"""
    s_mul_i32 s48, s{S_NT2}, 384
    s_mul_i32 s56, s59, {32*1152}
    s_add_u32 s48, s48, s56
    s_mul_i32 s56, s59, 12288
    s_add_u32 s60, s{S_WS}, {WS_AB}
    s_addc_u32 s61, s{S_WS+1}, 0
    s_mov_b32 s{SRD_A+3}, 0x00020000
    """)

    def issueB():
        a("s_add_u32 s58, s51, s56")
        a("s_cmp_ge_u32 s50, 18")
        a("s_cbranch_scc1 LB_g2")
        a("s_cmp_ge_u32 s50, 9")
        a("s_cbranch_scc1 LB_t2")
        a(f"s_cmp_ge_u32 s{S_N1}, 6")
        a("s_cbranch_scc1 LB_t1kn")
        a("s_lshl_b32 s57, s50, 7")
        a("s_add_u32 s57, s57, s55")
        issue_k(a, 12, 1152, SRD_B, 1)
        a("s_branch LB_end")
        a.label("LB_t1kn")
        a(f"s_mul_i32 s57, s50, {64*9216}")
        a("s_add_u32 s57, s57, s55")
        a("s_branch LB_kn")
        a.label("LB_t2")
        a("s_sub_u32 s62, s50, 9")
        a(f"s_mul_i32 s57, s62, {64*9216}")
        a("s_add_u32 s57, s57, s49")
        a.label("LB_kn")
        issue_n(a, 9216, SRD_C, 3)
        a("s_branch LB_end")
        a.label("LB_g2")
        a("s_cmp_lg_u32 s50, 18")
        a("s_cbranch_scc1 LB_n0")
        get_nonce(a)
        a("s_mov_b32 s47, 0")
        a.label("LB_n0")
        g2_kk(a)
        a("s_cmp_ge_u32 s62, 64")
        a("s_cbranch_scc1 LB_np")
        a("s_lshr_b32 s46, s62, 1")
        a("s_bitcmp1_b32 s47, s46")
        a("s_cbranch_scc1 LB_np")
        a("s_mov_b32 s42, s62")
        a(f"s_lshl_b32 s41, s{S_NT2}, 8")
        a(f"s_add_u32 s41, s41, {C_AB*256}")
        a("v_and_b32 v63, 31, v0")
        a("v_lshlrev_b32 v63, 3, v63")
        a("s_mov_b32 s101, 0")
        a.label("LB_pl")
        a("s_add_u32 s101, s101, 1")
        a("s_cmp_ge_u32 s101, 0x40000")
        a("s_cbranch_scc1 LB_pd")
        a(f"buffer_load_dwordx2 v[60:61], v63, s[{SRD_F}:{SRD_F+3}], s41 offen sc1")
        a("s_waitcnt vmcnt(0)")
        a(f"v_cmp_eq_u32 s[62:63], s{g.S_NLO}, v60")
        a(f"v_cmp_eq_u32 vcc, s{g.S_NHI}, v61")
        a("s_nop 1")
        a("s_and_b32 s47, s62, vcc_lo")
        a("s_bitcmp1_b32 s47, s46")
        a("s_cbranch_scc1 LB_pd")
        a("s_sleep 2")
        a("s_branch LB_pl")
        a.label("LB_pd")
        a("s_mov_b32 s62, s42")
        a.label("LB_np")
        a(f"""
        s_sub_u32 s63, s62, 64
        s_cmp_lt_u32 s62, 64
        s_cselect_b32 s63, s62, s63
        s_cselect_b32 s{SRD_A}, s60, s{S_W2}
        s_cselect_b32 s{SRD_A+1}, s61, s{S_W2+1}
        s_mov_b32 s{SRD_A+2}, {W2_BYTES}
        s_cselect_b32 s{SRD_A+2}, {AB_BYTES}, s{SRD_A+2}
        s_and_b32 s{SRD_A+1}, s{SRD_A+1}, 0xffff
        s_mul_i32 s57, s63, {64*1152}
        s_add_u32 s57, s57, s48
        """)
        issue_n(a, 1152, SRD_A, 9, LDF)
        a.label("LB_end")
    loader_loop(a, "LB", 12, SB, LDS_B, issueB, True, HOLD)
    a.label("K_done")
    a("s_endpgm")
    return name


def main():
    a = Asm()
    name = gen_kernel(a)
    head = f"; generated by gen4.py\n; @launch grid=({NWG},1,1) block=(768,1,1) lds={LDS_TOTAL}\n"
    head += '.amdgcn_target "amdgcn-amd-amdhsa--gfx950"\n.text\n'
    tail = f""".section .rodata,"a"
.p2align 6
.amdhsa_kernel {name}
  .amdhsa_next_free_vgpr 168
  .amdhsa_next_free_sgpr 102
  .amdhsa_accum_offset 168
  .amdhsa_group_segment_fixed_size 0
  .amdhsa_kernarg_size 88
  .amdhsa_user_sgpr_count 2
  .amdhsa_user_sgpr_kernarg_segment_ptr 1
  .amdhsa_system_sgpr_workgroup_id_x 1
  .amdhsa_float_denorm_mode_32 3
  .amdhsa_float_denorm_mode_16_64 3
.end_amdhsa_kernel
"""
    open(OUT, "w").write(head + a.text() + tail)


if __name__ == "__main__":
    main()
```
